```python
import torch

def _softmax(x, axis=-1):
    return torch.softmax(x, dim=axis)
def _gelu(x):
    return torch.nn.functional.gelu(x, approximate="tanh")
def _silu(x):
    return torch.nn.functional.silu(x)
def _sigmoid(x):
    return torch.sigmoid(x)
def _layernorm(x, axis=-1, eps=1e-5):
    m = x.mean(dim=axis, keepdim=True)
    v = x.var(dim=axis, keepdim=True, unbiased=False)
    return (x - m) / torch.sqrt(v + eps)
def _scatter_add(tgt, idx, src, axis=0):
    return tgt.clone().index_add_(axis, idx, src)
def _segment_sum(src, seg, n):
    out = torch.zeros((n,) + src.shape[1:], dtype=src.dtype)
    return out.index_add_(0, seg, src)
def _pad(x, pw):
    flat = tuple(v for pair in reversed(pw) for v in pair)
    return torch.nn.functional.pad(x, flat)

kernel_name = 'parallel_sum__compressed_kv_cla__geglu_ffn__decode'

def setup_inputs():

    _w = (lambda a: (lambda t: t.to(torch.bfloat16) if t.is_floating_point() else t)(torch.as_tensor(a)))
    def _A_setup():
        B, H, Sq, Sk, D, M = 8, 32, 1, 4096, 128, 512
        Dc = 4 * D
        return {
            "x": _w((lambda *s: torch.randn(*s, dtype=torch.bfloat16) * 0.05)(B, Sq, M)),
            "c_kv": _w((lambda *s: torch.randn(*s, dtype=torch.bfloat16) * 1.6)(B, Sk, Dc)),
            "w_q": _w((lambda *s: torch.randn(*s, dtype=torch.bfloat16) * 3.2)(M, H, D) * (M ** -0.5)),
            "w_uk": _w((lambda *s: torch.randn(*s, dtype=torch.bfloat16) * 3.2)(Dc, H, D) * (Dc ** -0.5)),
            "w_uv": _w((lambda *s: torch.randn(*s, dtype=torch.bfloat16) * 1.6)(Dc, H, D) * (Dc ** -0.5)),
            "w_o": _w((lambda *s: torch.randn(*s, dtype=torch.bfloat16) * 1.6)(H, D, M) * ((H * D) ** -0.5)),
        }
    _A_in = _A_setup()

    def _B_setup():
        B, S, D, F = 8, 1, 512, 1376
        return {
            "x": _w((lambda *s: torch.randn(*s, dtype=torch.bfloat16) * 0.05)(B, S, D)),
            "w_gate": _w((lambda *s: torch.randn(*s, dtype=torch.bfloat16) * 0.1)(D, F)),
            "w_up": _w((lambda *s: torch.randn(*s, dtype=torch.bfloat16) * 0.1)(D, F)),
            "w_down": _w((lambda *s: torch.randn(*s, dtype=torch.bfloat16) * 0.1)(F, D)),
        }
    _B_in = _B_setup()

    return {
        "A_x": _A_in["x"],
        "A_c_kv": _A_in["c_kv"],
        "A_w_q": _A_in["w_q"],
        "A_w_uk": _A_in["w_uk"],
        "A_w_uv": _A_in["w_uv"],
        "A_w_o": _A_in["w_o"],
        "B_x": _B_in["x"],
        "B_w_gate": _B_in["w_gate"],
        "B_w_up": _B_in["w_up"],
        "B_w_down": _B_in["w_down"],
    }

def reference(A_x, A_c_kv, A_w_q, A_w_uk, A_w_uv, A_w_o, B_x, B_w_gate, B_w_up, B_w_down):
    def _A_ref(x, c_kv, w_q, w_uk, w_uv, w_o):
        B, Sq, M = x.shape[0], x.shape[1], x.shape[2]
        Sk = c_kv.shape[1]
        H, D = w_q.shape[1], w_q.shape[2]
        q = torch.einsum("bqm,mhd->bhqd", x, w_q)
        k = torch.einsum("bkc,chd->bhkd", c_kv, w_uk)
        v = torch.einsum("bkc,chd->bhkd", c_kv, w_uv)
        scores = torch.einsum("bhqd,bhkd->bhqk", q, k) * (D ** -0.5)
        off = Sk - Sq
        qi = torch.arange(Sq)[:, None]
        kj = torch.arange(Sk)[None, :]
        cmask = kj <= (qi + off)
        scores = torch.where(cmask[None, None], scores, -1e9)
        p = _softmax(scores, axis=-1)
        ctx = torch.einsum("bhqk,bhkd->bhqd", p, v)
        return torch.einsum("bhqd,hdm->bqm", ctx, w_o)

    def _B_ref(x, w_gate, w_up, w_down):
        return (_gelu(x @ w_gate) * (x @ w_up)) @ w_down

    x = A_x
    xn = _layernorm(x, axis=-1)
    return x + _A_ref(xn, A_c_kv, A_w_q, A_w_uk, A_w_uv, A_w_o) + _B_ref(xn, B_w_gate, B_w_up, B_w_down)
```

```python
import sys

HDR = open('parallel_sum__compressed_kv_cla__geglu_ffn__decode.s.ref').read().split('; Override launch')[0]

class Asm:
    def __init__(self):
        self.L = []
    def __call__(self, s, *a):
        for line in s.split('\n'):
            line = line.strip()
            if line:
                self.L.append('    ' + line)
    def label(self, l):
        self.L.append(l + ':')
    def raw(self, s):
        self.L.append(s)
    def nop(self, n):
        while n > 0:
            k = min(n, 16)
            self(f's_nop {k-1}')
            n -= k

WS_QABS = 0x0
WS_FFNP = 0x40000
WS_STATS = 0x100000
WS_OPART = 0x200000
WS_ATTP = 0xA00000

KA = dict(x=0, ckv=8, wq=16, wuk=24, wuv=32, wo=40, bx=48, wg=56, wu=64, wd=72, out=80, dbg=88, ws=96)

def srd(a, r, ptr, nbytes, off=0):
    if off:
        a(f's_add_u32 s{r}, s{ptr}, {off}')
        a(f's_addc_u32 s{r+1}, s{ptr+1}, 0')
        a(f's_and_b32 s{r+1}, s{r+1}, 0xffff')
    else:
        a(f's_mov_b32 s{r}, s{ptr}')
        a(f's_and_b32 s{r+1}, s{ptr+1}, 0xffff')
    a(f's_mov_b32 s{r+2}, {nbytes}')
    a(f's_mov_b32 s{r+3}, 0x00020000')

def bf16_round_pair(a, d0, d1, s0, s1, tmp):
    a(f'v_cvt_pk_bf16_f32 v{tmp}, v{s0}, v{s1}')
    a(f'v_lshlrev_b32 v{d0}, 16, v{tmp}')
    a(f'v_and_b32 v{d1}, 0xffff0000, v{tmp}')

def swz_reduce32(a, v, tmp, op):
    for m in (1, 2, 4, 8, 16):
        a(f'ds_swizzle_b32 v{tmp}, v{v} offset:{(m << 10) | 0x1f}')
        a('s_waitcnt lgkmcnt(0)')
        a(f'{op} v{v}, v{v}, v{tmp}')

XN_STRIDE = 1056
def layernorm(a, srd_x, s_wave, v_lane, xn_off, vb):
    t = vb
    a(f'v_lshrrev_b32 v{t}, 5, v{v_lane}')
    a(f's_lshl_b32 s40, s{s_wave}, 1')
    a(f'v_add_u32 v{t}, s40, v{t}')
    a(f'v_and_b32 v{t+1}, 31, v{v_lane}')
    a(f'v_lshlrev_b32 v{t+1}, 5, v{t+1}')
    a(f'v_lshl_add_u32 v{t+2}, v{t}, 10, v{t+1}')
    a(f'buffer_load_dwordx4 v[{t+4}:{t+7}], v{t+2}, s[{srd_x}:{srd_x+3}], 0 offen')
    a(f'buffer_load_dwordx4 v[{t+8}:{t+11}], v{t+2}, s[{srd_x}:{srd_x+3}], 0 offen offset:16')
    a(f's_mov_b32 s40, {XN_STRIDE}')
    a(f'v_mul_lo_u32 v{t+3}, v{t}, s40')
    a(f'v_add_u32 v{t+3}, v{t+3}, v{t+1}')
    a(f'v_add_u32 v{t+3}, {xn_off}, v{t+3}')
    return t

def layernorm_finish(a, t, vmcnt_after):
    a(f's_waitcnt vmcnt({vmcnt_after})')
    for i in range(8):
        a(f'v_lshlrev_b32 v{t+12+2*i}, 16, v{t+4+i}')
        a(f'v_and_b32 v{t+12+2*i+1}, 0xffff0000, v{t+4+i}')
    X = t + 12
    S = t + 28; TMP = t + 29; M = t + 30; V = t + 31
    a(f'v_add_f32 v{S}, v{X}, v{X+1}')
    for i in range(2, 16):
        a(f'v_add_f32 v{S}, v{S}, v{X+i}')
    swz_reduce32(a, S, TMP, 'v_add_f32')
    a(f'v_mul_f32 v{M}, 0x3b000000, v{S}')
    a(f'v_sub_f32 v{TMP}, v{X}, v{M}')
    a(f'v_mul_f32 v{V}, v{TMP}, v{TMP}')
    for i in range(1, 16):
        a(f'v_sub_f32 v{TMP}, v{X+i}, v{M}')
        a(f'v_fmac_f32 v{V}, v{TMP}, v{TMP}')
    swz_reduce32(a, V, TMP, 'v_add_f32')
    a(f'v_mul_f32 v{V}, 0x3b000000, v{V}')
    bf16_round_pair(a, M, V, M, V, TMP)
    a(f'v_add_f32 v{V}, 0x3727c5ac, v{V}')
    bf16_round_pair(a, V, TMP, V, V, S)
    a(f'v_sqrt_f32 v{V}, v{V}')
    a('s_nop 0')
    bf16_round_pair(a, V, TMP, V, V, S)
    R = t + 32
    a(f'v_rcp_f32 v{R}, v{V}')
    a('s_nop 0')
    for i in range(8):
        a(f'v_sub_f32 v{X+2*i}, v{X+2*i}, v{M}')
        a(f'v_sub_f32 v{X+2*i+1}, v{X+2*i+1}, v{M}')
        bf16_round_pair(a, X+2*i, X+2*i+1, X+2*i, X+2*i+1, TMP)
    for i in range(16):
        a(f'v_mul_f32 v{TMP}, v{X+i}, v{R}')
        a(f'v_fma_f32 v{S}, -v{TMP}, v{V}, v{X+i}')
        a(f'v_fma_f32 v{X+i}, v{S}, v{R}, v{TMP}')
    for i in range(8):
        a(f'v_cvt_pk_bf16_f32 v{t+4+i}, v{X+2*i}, v{X+2*i+1}')
    a(f'ds_write_b128 v{t+3}, v[{t+4}:{t+7}]')
    a(f'ds_write_b128 v{t+3}, v[{t+8}:{t+11}] offset:16')

def prologue(a, nwg, exit_label):
    a(f's_cmp_ge_u32 s2, {nwg}')
    a(f's_cbranch_scc1 {exit_label}')

def wave_lane(a, s_wave, v_lane):
    a(f'v_lshrrev_b32 v1, 6, v0')
    a(f'v_and_b32 v{v_lane}, 63, v0')
    a(f'v_readfirstlane_b32 s{s_wave}, v1')
    a('s_nop 3')

K1_LDS_XN = 131072
K1_LDS_QB = K1_LDS_XN + 8 * XN_STRIDE
K1_LDS = K1_LDS_QB + 8 * 288
def gen_k1(a):
    a.label('k1_kernel')
    prologue(a, 75, 'K1_EXIT')
    a('s_load_dwordx2 s[4:5], s[0:1], 0')
    a('s_load_dwordx4 s[8:11], s[0:1], 16')
    a('s_load_dwordx4 s[12:15], s[0:1], 56')
    a('s_load_dwordx2 s[16:17], s[0:1], 72')
    a('s_load_dwordx2 s[18:19], s[0:1], 96')
    wave_lane(a, 3, 2)
    a('s_waitcnt lgkmcnt(0)')
    srd(a, 20, 4, 8192)
    t = layernorm(a, 20, 3, 2, K1_LDS_XN, 60)
    a('v_and_b32 v3, 15, v2')
    a('v_lshrrev_b32 v4, 4, v2')
    a('v_and_b32 v5, 7, v2')
    a('v_lshrrev_b32 v6, 2, v2')
    a('v_and_b32 v6, 3, v6')
    a('v_and_b32 v7, 3, v2')
    a(f's_mov_b32 s40, {XN_STRIDE}')
    a('v_mul_lo_u32 v8, v5, s40')
    a('v_lshl_add_u32 v8, v4, 4, v8')
    a(f'v_add_u32 v8, {K1_LDS_XN}, v8')
    a('s_mov_b32 s40, 288')
    a('v_mul_lo_u32 v9, v5, s40')
    a(f'v_add_u32 v9, {K1_LDS_QB}, v9')
    a('v_lshl_add_u32 v10, v4, 4, v9')
    a('v_lshl_add_u32 v11, v4, 3, v9')
    a('s_cmp_ge_u32 s2, 32')
    a('s_cbranch_scc1 K1_FFN')

    srd(a, 24, 8, 4194304)
    srd(a, 28, 10, 4194304)
    srd(a, 32, 18, 262144, WS_QABS)
    a('v_lshlrev_b32 v12, 1, v4')
    a('v_xor_b32 v12, v12, v3')
    a('v_lshlrev_b32 v12, 4, v12')
    a('v_lshl_add_u32 v12, v4, 13, v12')
    a('v_xor_b32 v13, 128, v12')
    a('s_lshl_b32 s41, s2, 8')
    a('s_lshl_b32 s42, s3, 20')
    a('s_add_u32 s41, s41, s42')
    a('s_lshl_b32 s43, s3, 15')
    for i in range(32):
        a(f's_mov_b32 m0, s43')
        a(f's_add_u32 s43, s43, 1024')
        v = 13 if (i >> 1) & 1 else 12
        a(f'buffer_load_dwordx4 v{v}, s[24:27], s41 offen lds')
        a(f's_add_u32 s41, s41, 32768')
    a('v_lshlrev_b32 v14, 13, v3')
    a('v_lshl_add_u32 v14, v4, 4, v14')
    a('s_lshl_b32 s41, s2, 8')
    a('s_lshl_b32 s42, s3, 20')
    a('s_add_u32 s41, s41, s42')
    for tt in range(8):
        for st in range(4):
            r = 128 + (tt * 4 + st) * 4
            a(f'buffer_load_dwordx4 v[{r}:{r+3}], v14, s[28:31], s41 offen offset:{st*64}')
        a('s_add_u32 s41, s41, 131072')
    layernorm_finish(a, t, 63)
    a('v_and_b32 v15, 1, v4')
    a('v_lshl_add_u32 v15, v15, 2, v6')
    a('v_lshlrev_b32 v15, 1, v15')
    a('v_lshl_add_u32 v16, v4, 3, v6')
    a('v_lshlrev_b32 v16, 8, v16')
    a('v_lshrrev_b32 v17, 1, v7')
    a('v_lshl_add_u32 v16, v17, 4, v16')
    a('v_and_b32 v17, 1, v7')
    a('v_lshl_add_u32 v16, v17, 3, v16')
    a('s_lshl_b32 s41, s3, 2')
    a('v_xor_b32 v17, s41, v15')
    a('v_lshl_add_u32 v18, v17, 4, v16')
    a('s_add_u32 s41, s41, 2')
    a('v_xor_b32 v17, s41, v15')
    a('v_lshl_add_u32 v19, v17, 4, v16')
    a('v_add_u32 v20, 0x10000, v18')
    a('v_add_u32 v21, 0x10000, v19')
    for r in range(24, 32):
        a(f'v_mov_b32 v{r}, 0')
    a('s_waitcnt vmcnt(32) lgkmcnt(0)')
    a('s_barrier')
    for k in range(16):
        b0, b1 = (18, 19) if k < 8 else (20, 21)
        off = (k & 7) * 8192
        a(f'ds_read_b128 v[32:35], v8 offset:{k*64}')
        a(f'ds_read_b64_tr_b16 v[36:37], v{b0} offset:{off}')
        a(f'ds_read_b64_tr_b16 v[38:39], v{b0} offset:{off+1024}')
        a(f'ds_read_b64_tr_b16 v[40:41], v{b1} offset:{off}')
        a(f'ds_read_b64_tr_b16 v[42:43], v{b1} offset:{off+1024}')
        a('s_waitcnt lgkmcnt(0)')
        a('v_mfma_f32_16x16x32_bf16 v[24:27], v[36:39], v[32:35], v[24:27]')
        a('v_mfma_f32_16x16x32_bf16 v[28:31], v[40:43], v[32:35], v[28:31]')
    a.nop(10)
    a('v_cvt_pk_bf16_f32 v32, v24, v25')
    a('v_cvt_pk_bf16_f32 v33, v26, v27')
    a('v_cvt_pk_bf16_f32 v34, v28, v29')
    a('v_cvt_pk_bf16_f32 v35, v30, v31')
    a('s_lshl_b32 s41, s3, 6')
    a('v_add_u32 v17, s41, v11')
    a('ds_write_b64 v17, v[32:33]')
    a('ds_write_b64 v17, v[34:35] offset:32')
    a('s_waitcnt lgkmcnt(0)')
    a('s_barrier')
    for st in range(4):
        a(f'ds_read_b128 v[{32+4*st}:{35+4*st}], v10 offset:{st*64}')
    for r in range(48, 80):
        a(f'v_mov_b32 v{r}, 0')
    a('s_waitcnt vmcnt(0) lgkmcnt(0)')
    for tt in range(8):
        for st in range(4):
            r = 128 + (tt * 4 + st) * 4
            a(f'v_mfma_f32_16x16x32_bf16 v[{48+4*tt}:{51+4*tt}], v[{r}:{r+3}], v[{32+4*st}:{35+4*st}], v[{48+4*tt}:{51+4*tt}]')
    a.nop(10)
    a('v_lshlrev_b32 v17, 15, v5')
    a('v_lshl_add_u32 v17, v4, 3, v17')
    a('s_lshl_b32 s41, s2, 10')
    a('s_lshl_b32 s42, s3, 8')
    a('s_add_u32 s41, s41, s42')
    for tt in range(8):
        a(f'v_cvt_pk_bf16_f32 v{80+2*tt}, v{48+4*tt}, v{49+4*tt}')
        a(f'v_cvt_pk_bf16_f32 v{81+2*tt}, v{50+4*tt}, v{51+4*tt}')
        a(f'buffer_store_dwordx2 v[{80+2*tt}:{81+2*tt}], v17, s[32:35], s41 offen offset:{tt*32}')
    a('s_branch K1_EXIT')

    a.label('K1_FFN')
    F_G, F_U, F_D = 0, 32768, 65536
    srd(a, 24, 12, 1409024)
    srd(a, 28, 14, 1409024)
    srd(a, 32, 16, 1409024)
    srd(a, 36, 18, 43*16384, WS_FFNP)
    a('s_sub_u32 s44, s2, 32')
    a('v_lshrrev_b32 v12, 2, v2')
    a('v_lshrrev_b32 v13, 5, v2')
    a('v_lshlrev_b32 v13, 1, v13')
    a('v_xor_b32 v13, v13, v7')
    a('s_mov_b32 s40, 2752')
    a('v_mul_lo_u32 v12, v12, s40')
    a('v_lshl_add_u32 v12, v13, 4, v12')
    a('s_lshl_b32 s41, s44, 6')
    a('s_mul_i32 s42, s3, 352256')
    a('s_add_u32 s41, s41, s42')
    a('s_lshl_b32 s43, s3, 13')
    for i in range(8):
        a(f's_add_u32 s45, s43, {F_G}')
        a('s_mov_b32 m0, s45')
        a(f's_add_u32 s45, s43, {F_U}')
        a('buffer_load_dwordx4 v12, s[24:27], s41 offen lds')
        a('s_mov_b32 m0, s45')
        a('s_add_u32 s43, s43, 1024')
        a('buffer_load_dwordx4 v12, s[28:31], s41 offen lds')
        a('s_add_u32 s41, s41, 44032')
    a('s_lshl_b32 s41, s44, 15')
    a('s_lshl_b32 s42, s3, 13')
    a('s_add_u32 s41, s41, s42')
    a(f's_add_u32 s43, s42, {F_D}')
    a('s_and_b32 s45, s3, 1')
    a('s_lshl_b32 s45, s45, 3')
    for i in range(8):
        a(f's_add_u32 s46, s45, {(i&3)<<1}')
        a('v_xor_b32 v13, s46, v2')
        a('v_lshlrev_b32 v13, 4, v13')
        a('s_mov_b32 m0, s43')
        a('s_add_u32 s43, s43, 1024')
        a('buffer_load_dwordx4 v13, s[32:35], s41 offen lds')
        a('s_add_u32 s41, s41, 1024')
    layernorm_finish(a, t, 24)
    a('v_lshl_add_u32 v16, v4, 3, v6')
    a('v_lshlrev_b32 v16, 6, v16')
    a('v_lshrrev_b32 v17, 1, v7')
    a('s_lshl_b32 s41, s3, 1')
    a('v_add_u32 v17, s41, v17')
    a('v_and_b32 v15, 1, v4')
    a('v_lshlrev_b32 v15, 1, v15')
    a('v_xor_b32 v17, v17, v15')
    a('v_lshl_add_u32 v16, v17, 4, v16')
    a('v_and_b32 v17, 1, v7')
    a('v_lshl_add_u32 v16, v17, 3, v16')
    a(f'v_add_u32 v18, {F_U}, v16')
    for r in range(24, 32):
        a(f'v_mov_b32 v{r}, 0')
    a('s_waitcnt vmcnt(0) lgkmcnt(0)')
    a('s_barrier')
    a('s_cmp_ge_u32 s3, 2')
    a('s_cbranch_scc1 K1_FFN_SKIP')
    for k in range(16):
        off = k * 2048
        a(f'ds_read_b128 v[32:35], v8 offset:{k*64}')
        a(f'ds_read_b64_tr_b16 v[36:37], v16 offset:{off}')
        a(f'ds_read_b64_tr_b16 v[38:39], v16 offset:{off+256}')
        a(f'ds_read_b64_tr_b16 v[40:41], v18 offset:{off}')
        a(f'ds_read_b64_tr_b16 v[42:43], v18 offset:{off+256}')
        a('s_waitcnt lgkmcnt(0)')
        a('v_mfma_f32_16x16x32_bf16 v[24:27], v[36:39], v[32:35], v[24:27]')
        a('v_mfma_f32_16x16x32_bf16 v[28:31], v[40:43], v[32:35], v[28:31]')
    a.nop(10)
    bf16_round_pair(a, 24, 25, 24, 25, 32)
    bf16_round_pair(a, 26, 27, 26, 27, 32)
    bf16_round_pair(a, 28, 29, 28, 29, 32)
    bf16_round_pair(a, 30, 31, 30, 31, 32)
    import math
    c1 = -2.0 * math.log2(math.e) * math.sqrt(2.0 / math.pi)
    import struct
    def f2u(f): return struct.unpack('<I', struct.pack('<f', f))[0]
    a(f's_mov_b32 s41, {f2u(0.044715):#x}')
    a(f's_mov_b32 s42, {f2u(c1):#x}')
    for r in range(24, 28):
        a(f'v_mul_f32 v32, v{r}, v{r}')
        a(f'v_mul_f32 v32, s41, v32')
        a(f'v_fma_f32 v32, v32, v{r}, v{r}')
        a(f'v_mul_f32 v32, s42, v32')
        a(f'v_exp_f32 v32, v32')
        a('s_nop 0')
        a(f'v_add_f32 v32, 1.0, v32')
        a(f'v_rcp_f32 v32, v32')
        a('s_nop 0')
        a(f'v_mul_f32 v{r}, v{r}, v32')
    bf16_round_pair(a, 24, 25, 24, 25, 32)
    bf16_round_pair(a, 26, 27, 26, 27, 32)
    for r in range(4):
        a(f'v_mul_f32 v{24+r}, v{24+r}, v{28+r}')
    a('v_cvt_pk_bf16_f32 v32, v24, v25')
    a('v_cvt_pk_bf16_f32 v33, v26, v27')
    a('s_lshl_b32 s41, s3, 5')
    a('v_add_u32 v17, s41, v11')
    a('ds_write_b64 v17, v[32:33]')
    a.label('K1_FFN_SKIP')
    a('s_waitcnt lgkmcnt(0)')
    a('s_barrier')
    a('ds_read_b128 v[32:35], v10')
    a('v_lshl_add_u32 v16, v4, 3, v6')
    a('v_lshlrev_b32 v16, 10, v16')
    a('v_lshrrev_b32 v17, 1, v7')
    a('v_lshl_add_u32 v16, v17, 4, v16')
    a('v_and_b32 v17, 1, v7')
    a('v_lshl_add_u32 v16, v17, 3, v16')
    a('s_lshl_b32 s41, s3, 8')
    a(f's_add_u32 s41, s41, {F_D}')
    a('v_add_u32 v16, s41, v16')
    a('v_and_b32 v15, 1, v4')
    a('v_lshl_add_u32 v15, v15, 2, v6')
    a('v_lshlrev_b32 v15, 5, v15')
    for j in range(8):
        a(f'v_xor_b32 v17, {j<<5}, v15')
        a(f'v_add_u32 v17, v17, v16')
        a(f'ds_read_b64_tr_b16 v[{80+4*j}:{81+4*j}], v17')
        a(f'ds_read_b64_tr_b16 v[{82+4*j}:{83+4*j}], v17 offset:4096')
    for r in range(48, 80):
        a(f'v_mov_b32 v{r}, 0')
    a('s_waitcnt lgkmcnt(0)')
    for j in range(8):
        a(f'v_mfma_f32_16x16x32_bf16 v[{48+4*j}:{51+4*j}], v[{80+4*j}:{83+4*j}], v[32:35], v[{48+4*j}:{51+4*j}]')
    a.nop(10)
    a('v_lshlrev_b32 v17, 11, v5')
    a('v_lshl_add_u32 v17, v4, 4, v17')
    a('s_lshl_b32 s41, s44, 14')
    a('s_lshl_b32 s42, s3, 9')
    a('s_add_u32 s41, s41, s42')
    for j in range(8):
        a(f'buffer_store_dwordx4 v[{48+4*j}:{51+4*j}], v17, s[36:39], s41 offen offset:{j*64}')
    a.label('K1_EXIT')
    a('s_endpgm')

K2_P = 131072
K2_ST = K2_P + 8192
K2_LDS = K2_ST + 1024
def fsw(r):
    return ((r & 3) << 2) | ((r >> 2) & 3)

def gen_k2(a):
    a.label('k2_kernel')
    prologue(a, 256, 'K2_EXIT')
    a('s_load_dwordx2 s[4:5], s[0:1], 8')
    a('s_load_dwordx2 s[6:7], s[0:1], 96')
    wave_lane(a, 3, 2)
    a('s_waitcnt lgkmcnt(0)')
    srd(a, 8, 4, 33554432)
    srd(a, 12, 6, 262144, WS_QABS)
    srd(a, 16, 6, 65536, WS_STATS)
    srd(a, 20, 6, 8388608, WS_OPART)
    a('v_lshlrev_b32 v3, 4, v2')
    a('s_lshl_b32 s41, s2, 17')
    a('s_lshl_b32 s43, s3, 15')
    a('s_add_u32 s41, s41, s43')
    for i in range(32):
        a(f'v_xor_b32 v4, {fsw(i & 15) << 4}, v3')
        a('s_mov_b32 m0, s43')
        a('s_add_u32 s43, s43, 1024')
        a('buffer_load_dwordx4 v4, s[8:11], s41 offen lds')
        a('s_add_u32 s41, s41, 1024')
    a('v_and_b32 v5, 31, v2')
    a('v_lshrrev_b32 v6, 5, v2')
    a('v_lshlrev_b32 v7, 10, v5')
    a('v_lshl_add_u32 v7, v6, 4, v7')
    a('s_lshr_b32 s44, s2, 5')
    a('s_lshl_b32 s41, s44, 15')
    for st in range(32):
        a(f'buffer_load_dwordx4 v[{128+4*st}:{131+4*st}], v7, s[12:15], s41 offen offset:{st*32}')
    a('v_and_b32 v8, 3, v5')
    a('v_lshlrev_b32 v8, 2, v8')
    a('v_lshrrev_b32 v9, 2, v5')
    a('v_and_b32 v9, 3, v9')
    a('v_or_b32 v8, v8, v9')
    a('v_xor_b32 v8, v8, v6')
    a('v_lshlrev_b32 v9, 10, v5')
    a('s_lshl_b32 s41, s3, 15')
    a('v_add_u32 v9, s41, v9')
    for e in range(8):
        a(f'v_xor_b32 v10, {2*e}, v8')
        a(f'v_lshl_add_u32 v{16+e}, v10, 4, v9')
    for r in range(32, 48):
        a(f'v_mov_b32 v{r}, 0')
    a('s_waitcnt vmcnt(0)')
    def rd(st):
        return f'ds_read_b128 v[{48+4*(st&3)}:{51+4*(st&3)}], v{16+(st&7)} offset:{(st>>3)*256}'
    for st in range(3):
        a(rd(st))
    for st in range(32):
        if st + 3 < 32:
            a(rd(st + 3))
            a('s_waitcnt lgkmcnt(3)')
        else:
            a(f's_waitcnt lgkmcnt({31-st})')
        a(f'v_mfma_f32_32x32x16_bf16 v[32:47], v[{48+4*(st&3)}:{51+4*(st&3)}], v[{128+4*st}:{131+4*st}], v[32:47]')
    a.nop(14)
    a('s_mov_b32 s41, 0x3db504f3')
    for i in range(8):
        bf16_round_pair(a, 32+2*i, 33+2*i, 32+2*i, 33+2*i, 48)
        a(f'v_mul_f32 v{32+2*i}, s41, v{32+2*i}')
        a(f'v_mul_f32 v{33+2*i}, s41, v{33+2*i}')
        bf16_round_pair(a, 32+2*i, 33+2*i, 32+2*i, 33+2*i, 48)
    a('v_max3_f32 v48, v32, v33, v34')
    for i in range(35, 47, 2):
        a(f'v_max3_f32 v48, v48, v{i}, v{i+1}')
    a('v_max_f32 v48, v48, v47')
    a('v_mov_b32 v49, v48')
    a('s_nop 1')
    a('v_permlane32_swap_b32 v48, v49')
    a('v_max_f32 v48, v48, v49')
    a('v_lshlrev_b32 v11, 2, v5')
    a(f'v_add_u32 v11, {K2_ST}, v11')
    a('s_lshl_b32 s41, s3, 7')
    a('v_add_u32 v12, s41, v11')
    a('ds_write_b32 v12, v48')
    a('s_waitcnt lgkmcnt(0)')
    a('s_barrier')
    a('ds_read_b32 v48, v11')
    a('ds_read_b32 v49, v11 offset:128')
    a('ds_read_b32 v50, v11 offset:256')
    a('ds_read_b32 v51, v11 offset:384')
    a('s_waitcnt lgkmcnt(0)')
    a('v_max3_f32 v48, v48, v49, v50')
    a('v_max_f32 v48, v48, v51')
    a('s_mov_b32 s41, 0x3fb8aa3b')
    a('v_mul_f32 v49, s41, v48')
    for i in range(16):
        a(f'v_fma_f32 v{32+i}, v{32+i}, s41, -v49')
        a(f'v_exp_f32 v{32+i}, v{32+i}')
    a('s_nop 0')
    a('v_add_f32 v50, v32, v33')
    for i in range(2, 16):
        a(f'v_add_f32 v50, v50, v{32+i}')
    a('v_mov_b32 v51, v50')
    a('s_nop 1')
    a('v_permlane32_swap_b32 v50, v51')
    a('v_add_f32 v50, v50, v51')
    a('ds_write_b32 v12, v50 offset:512')
    for i in range(8):
        a(f'v_cvt_pk_bf16_f32 v{52+i}, v{32+2*i}, v{33+2*i}')
    a('s_lshl_b32 s41, s3, 11')
    a(f's_add_u32 s41, s41, {K2_P}')
    a('v_add_u32 v13, s41, v3')
    a('ds_write_b128 v13, v[52:55]')
    a('ds_write_b128 v13, v[56:59] offset:1024')
    a('s_waitcnt lgkmcnt(0)')
    a('s_barrier')
    a('ds_read_b32 v50, v11 offset:512')
    a('ds_read_b32 v51, v11 offset:640')
    a('ds_read_b32 v52, v11 offset:768')
    a('ds_read_b32 v53, v11 offset:896')
    a(f'v_add_u32 v13, {K2_P}, v3')
    for u in range(8):
        a(f'ds_read_b128 v[{128+4*u}:{131+4*u}], v13 offset:{u*1024}')
    a('v_lshrrev_b32 v14, 2, v2')
    a('v_and_b32 v14, 3, v14')
    a('v_and_b32 v15, 3, v2')
    a('v_lshrrev_b32 v16, 4, v2')
    a('v_and_b32 v16, 1, v16')
    a('v_lshrrev_b32 v17, 1, v15')
    a('v_lshl_add_u32 v17, v16, 1, v17')
    a('v_lshl_add_u32 v18, v6, 2, v14')
    a('v_lshlrev_b32 v18, 10, v18')
    a('s_lshl_b32 s41, s3, 8')
    a('v_add_u32 v18, s41, v18')
    a('v_and_b32 v19, 1, v15')
    a('v_lshl_add_u32 v18, v19, 3, v18')
    for sec in range(2):
        a(f'v_add_u32 v19, {2*sec}, v6')
        a('v_xor_b32 v19, v19, v17')
        for t in range(4):
            a(f'v_xor_b32 v20, {t}, v14')
            a('v_lshl_add_u32 v20, v20, 2, v19')
            a(f'v_lshl_add_u32 v{160+2*t+sec}, v20, 4, v18')
            if sec:
                a(f'v_add_u32 v{160+2*t+sec}, 8192, v{160+2*t+sec}')
    for r in range(64, 128):
        a(f'v_mov_b32 v{r}, 0')
    a('s_waitcnt lgkmcnt(0)')
    a('v_add_f32 v50, v50, v51')
    a('v_add_f32 v52, v52, v53')
    a('v_add_f32 v49, v50, v52')
    a('v_lshlrev_b32 v19, 11, v5')
    a('s_lshl_b32 s41, s2, 3')
    a('buffer_store_dwordx2 v[48:49], v19, s[16:19], s41 offen')
    def trrd(u, t, buf):
        off = (u & 3) * 16384
        return [f'ds_read_b64_tr_b16 v[{buf}:{buf+1}], v{160+2*t} offset:{off}',
                f'ds_read_b64_tr_b16 v[{buf+2}:{buf+3}], v{161+2*t} offset:{off}']
    seq = [(u, t) for u in range(8) for t in range(4)]
    bufs = [168, 172, 176, 180]
    def issue(idx):
        u, t = seq[idx]
        if u == 4 and t == 0:
            for r in range(160, 168):
                a(f'v_add_u32 v{r}, 0x10000, v{r}')
        for s in trrd(u, t, bufs[idx & 3]):
            a(s)
    for idx in range(3):
        issue(idx)
    for idx in range(32):
        u, t = seq[idx]
        if idx + 3 < 32:
            issue(idx + 3)
            a('s_waitcnt lgkmcnt(6)')
        else:
            a(f's_waitcnt lgkmcnt({2*(31-idx)})')
        b = bufs[idx & 3]
        a(f'v_mfma_f32_32x32x16_bf16 v[{64+16*t}:{79+16*t}], v[{b}:{b+3}], v[{128+4*u}:{131+4*u}], v[{64+16*t}:{79+16*t}]')
    a.nop(14)
    a('v_lshlrev_b32 v19, 10, v5')
    a('v_lshl_add_u32 v19, v6, 7, v19')
    a('s_lshl_b32 s41, s2, 15')
    a('s_lshl_b32 s42, s3, 8')
    a('s_add_u32 s41, s41, s42')
    for t in range(4):
        for i in range(8):
            a(f'v_cvt_pk_bf16_f32 v{128+8*t+i}, v{64+16*t+2*i}, v{65+16*t+2*i}')
        a(f'buffer_store_dwordx4 v[{128+8*t}:{131+8*t}], v19, s[20:23], s41 offen offset:{t*32}')
        a(f'buffer_store_dwordx4 v[{132+8*t}:{135+8*t}], v19, s[20:23], s41 offen offset:{t*32+16}')
    a.label('K2_EXIT')
    a('s_endpgm')

K3_AL = 0
K3_CB = K3_AL + 1024
K3_OC = K3_CB + 4096
K3_CX = K3_OC + 2304
K3_WUV = 10240
K3_WO = K3_WUV + 32768
K3_LDS = K3_WO + 65536
def gen_k3(a):
    a.label('k3_kernel')
    prologue(a, 256, 'K3_EXIT')
    a('s_load_dwordx4 s[4:7], s[0:1], 32')
    a('s_load_dwordx2 s[8:9], s[0:1], 96')
    wave_lane(a, 3, 2)
    a('s_waitcnt lgkmcnt(0)')
    srd(a, 12, 4, 4194304)
    srd(a, 16, 6, 4194304)
    srd(a, 20, 8, 65536, WS_STATS)
    srd(a, 24, 8, 8388608, WS_OPART)
    srd(a, 28, 8, 2097152, WS_ATTP)
    a('s_lshr_b32 s44, s2, 3')
    a('s_lshr_b32 s45, s2, 1')
    a('s_and_b32 s45, s45, 3')
    a('s_and_b32 s46, s2, 1')
    a('v_lshlrev_b32 v3, 3, v0')
    a('s_lshl_b32 s41, s44, 11')
    a('buffer_load_dwordx2 v[10:11], v3, s[20:23], s41 offen')
    a('v_and_b32 v3, 127, v0')
    a('v_lshrrev_b32 v4, 4, v3')
    a('v_and_b32 v5, 15, v3')
    a('v_lshlrev_b32 v6, 20, v4')
    a('v_lshl_add_u32 v6, v5, 4, v6')
    a('s_lshr_b32 s47, s3, 1')
    a('s_lshl_b32 s41, s47, 19')
    a('s_lshl_b32 s42, s44, 10')
    a('s_add_u32 s41, s41, s42')
    a('s_lshl_b32 s42, s45, 8')
    a('s_add_u32 s41, s41, s42')
    for i in range(16):
        a(f'buffer_load_dwordx4 v[{64+4*i}:{67+4*i}], v6, s[24:27], s41 offen')
        a('s_add_u32 s41, s41, 32768')
    a('v_and_b32 v12, 15, v2')
    a('v_lshrrev_b32 v13, 4, v2')
    a('v_and_b32 v14, 7, v2')
    a('v_lshrrev_b32 v15, 2, v2')
    a('v_and_b32 v15, 3, v15')
    a('v_and_b32 v16, 3, v2')
    a('v_lshlrev_b32 v17, 1, v13')
    a('v_xor_b32 v17, v17, v12')
    a('v_lshlrev_b32 v17, 4, v17')
    a('v_lshl_add_u32 v17, v13, 13, v17')
    a('v_xor_b32 v18, 128, v17')
    a('s_lshl_b32 s41, s45, 20')
    a('s_lshl_b32 s42, s3, 18')
    a('s_add_u32 s41, s41, s42')
    a('s_lshl_b32 s42, s44, 8')
    a('s_add_u32 s41, s41, s42')
    a('s_lshl_b32 s43, s3, 13')
    a(f's_add_u32 s43, s43, {K3_WUV}')
    for i in range(8):
        a('s_mov_b32 m0, s43')
        a('s_add_u32 s43, s43, 1024')
        v = 18 if (i >> 2) & 1 else 17
        a(f'buffer_load_dwordx4 v{v}, s[12:15], s41 offen lds')
        a('s_add_u32 s41, s41, 32768')
    a('v_lshrrev_b32 v19, 5, v2')
    a('v_and_b32 v20, 31, v2')
    a('v_lshlrev_b32 v21, 1, v19')
    a('v_xor_b32 v21, v21, v20')
    a('v_lshlrev_b32 v21, 4, v21')
    a('v_lshl_add_u32 v21, v19, 10, v21')
    a('s_lshl_b32 s41, s44, 17')
    a('s_lshl_b32 s42, s3, 15')
    a('s_add_u32 s41, s41, s42')
    a('s_lshl_b32 s42, s46, 9')
    a('s_add_u32 s41, s41, s42')
    a('s_lshl_b32 s43, s3, 14')
    a(f's_add_u32 s43, s43, {K3_WO}')
    for i in range(16):
        x = ((2 * (i & 1)) | (((i >> 2) & 1) << 2)) << 1
        a(f'v_xor_b32 v22, {x << 4}, v21')
        a('s_mov_b32 m0, s43')
        a('s_add_u32 s43, s43, 1024')
        a('buffer_load_dwordx4 v22, s[16:19], s41 offen lds')
        a('s_add_u32 s41, s41, 2048')
    a('s_waitcnt vmcnt(40)')
    a('v_mov_b32 v23, v10')
    swz_reduce32(a, 23, 24, 'v_max_f32')
    a('v_sub_f32 v23, v10, v23')
    a('v_mul_f32 v23, 0x3fb8aa3b, v23')
    a('v_exp_f32 v23, v23')
    a('s_nop 0')
    a('v_mul_f32 v25, v23, v11')
    swz_reduce32(a, 25, 24, 'v_add_f32')
    a('v_rcp_f32 v25, v25')
    a('s_nop 0')
    a('v_mul_f32 v23, v23, v25')
    a('v_lshlrev_b32 v24, 2, v0')
    a(f'ds_write_b32 v24, v23 offset:{K3_AL}')
    a('s_waitcnt lgkmcnt(0)')
    a('s_barrier')
    a('v_lshlrev_b32 v24, 7, v4')
    a('s_lshl_b32 s41, s47, 6')
    a('v_add_u32 v24, s41, v24')
    for i in range(4):
        a(f'ds_read_b128 v[{32+4*i}:{35+4*i}], v24 offset:{K3_AL+16*i}')
    for r in range(48, 56):
        a(f'v_mov_b32 v{r}, 0')
    a('s_waitcnt vmcnt(24) lgkmcnt(0)')
    for i in range(16):
        for e in range(4):
            a(f'v_lshlrev_b32 v26, 16, v{64+4*i+e}')
            a(f'v_and_b32 v27, 0xffff0000, v{64+4*i+e}')
            a(f'v_fmac_f32 v{48+2*e}, v26, v{32+i}')
            a(f'v_fmac_f32 v{49+2*e}, v27, v{32+i}')
    a('v_lshlrev_b32 v24, 5, v3')
    a('s_cmp_eq_u32 s47, 0')
    a('s_cbranch_scc1 K3_NOWR')
    a(f'ds_write_b128 v24, v[48:51] offset:{K3_CB}')
    a(f'ds_write_b128 v24, v[52:55] offset:{K3_CB+16}')
    a.label('K3_NOWR')
    a('s_waitcnt lgkmcnt(0)')
    a('s_barrier')
    a('s_cmp_eq_u32 s47, 0')
    a('s_cbranch_scc0 K3_NORD')
    a(f'ds_read_b128 v[56:59], v24 offset:{K3_CB}')
    a(f'ds_read_b128 v[60:63], v24 offset:{K3_CB+16}')
    a('s_waitcnt lgkmcnt(0)')
    for e in range(8):
        a(f'v_add_f32 v{48+e}, v{48+e}, v{56+e}')
    for e in range(4):
        a(f'v_cvt_pk_bf16_f32 v{56+e}, v{48+2*e}, v{49+2*e}')
    a('s_mov_b32 s40, 288')
    a('v_mul_lo_u32 v24, v4, s40')
    a('v_lshl_add_u32 v24, v5, 4, v24')
    a(f'ds_write_b128 v24, v[56:59] offset:{K3_OC}')
    a.label('K3_NORD')
    a('s_waitcnt vmcnt(0) lgkmcnt(0)')
    a('s_barrier')
    a('s_mov_b32 s40, 288')
    a('v_mul_lo_u32 v24, v14, s40')
    a('v_lshl_add_u32 v25, v13, 4, v24')
    a('v_lshl_add_u32 v26, v13, 3, v24')
    for st in range(4):
        a(f'ds_read_b128 v[{32+4*st}:{35+4*st}], v25 offset:{K3_OC+st*64}')
    a('v_and_b32 v27, 1, v13')
    a('v_lshl_add_u32 v28, v27, 2, v15')
    a('v_lshlrev_b32 v28, 1, v28')
    a('v_lshrrev_b32 v29, 1, v13')
    a('v_lshlrev_b32 v29, 5, v29')
    a('v_lshl_add_u32 v29, v27, 4, v29')
    a('v_add_u32 v29, v29, v15')
    a('v_lshlrev_b32 v29, 8, v29')
    a('v_lshrrev_b32 v30, 1, v16')
    a('v_lshl_add_u32 v29, v30, 4, v29')
    a('v_and_b32 v30, 1, v16')
    a('v_lshl_add_u32 v29, v30, 3, v29')
    a('s_lshl_b32 s41, s3, 2')
    a('v_xor_b32 v30, s41, v28')
    a('v_lshl_add_u32 v48, v30, 4, v29')
    a('s_add_u32 s41, s41, 2')
    a('v_xor_b32 v30, s41, v28')
    a('v_lshl_add_u32 v49, v30, 4, v29')
    for st in range(4):
        off = (64 * (st & 1) + 4 * (st >> 1)) * 256
        for tl in range(2):
            r = 64 + 8 * st + 4 * tl
            a(f'ds_read_b64_tr_b16 v[{r}:{r+1}], v{48+tl} offset:{K3_WUV+off}')
            a(f'ds_read_b64_tr_b16 v[{r+2}:{r+3}], v{48+tl} offset:{K3_WUV+off+2048}')
    for r in range(56, 64):
        a(f'v_mov_b32 v{r}, 0')
    a('s_waitcnt lgkmcnt(0)')
    for st in range(4):
        for tl in range(2):
            r = 64 + 8 * st + 4 * tl
            a(f'v_mfma_f32_16x16x32_bf16 v[{56+4*tl}:{59+4*tl}], v[{r}:{r+3}], v[{32+4*st}:{35+4*st}], v[{56+4*tl}:{59+4*tl}]')
    a.nop(10)
    a('v_cvt_pk_bf16_f32 v32, v56, v57')
    a('v_cvt_pk_bf16_f32 v33, v58, v59')
    a('v_cvt_pk_bf16_f32 v34, v60, v61')
    a('v_cvt_pk_bf16_f32 v35, v62, v63')
    a('s_lshl_b32 s41, s3, 6')
    a('v_add_u32 v30, s41, v26')
    a(f'ds_write_b64 v30, v[32:33] offset:{K3_CX}')
    a(f'ds_write_b64 v30, v[34:35] offset:{K3_CX+32}')
    a('s_waitcnt lgkmcnt(0)')
    a('s_barrier')
    for st in range(4):
        a(f'ds_read_b128 v[{32+4*st}:{35+4*st}], v25 offset:{K3_CX+st*64}')
    a('v_lshl_add_u32 v29, v13, 3, v15')
    a('v_lshlrev_b32 v29, 9, v29')
    a('v_lshrrev_b32 v30, 1, v16')
    a('v_lshl_add_u32 v29, v30, 4, v29')
    a('v_and_b32 v30, 1, v16')
    a('v_lshl_add_u32 v29, v30, 3, v29')
    a(f'v_add_u32 v29, {K3_WO}, v29')
    a('v_lshrrev_b32 v28, 1, v28')
    a('s_lshl_b32 s41, s3, 2')
    for jj in range(4):
        a(f's_add_u32 s42, s41, {jj}')
        a('v_xor_b32 v30, s42, v28')
        a(f'v_lshl_add_u32 v{48+jj}, v30, 5, v29')
    for jj in range(4):
        for st in range(4):
            r = 64 + 16 * jj + 4 * st
            a(f'ds_read_b64_tr_b16 v[{r}:{r+1}], v{48+jj} offset:{st*16384}')
            a(f'ds_read_b64_tr_b16 v[{r+2}:{r+3}], v{48+jj} offset:{st*16384+2048}')
    for r in range(128, 144):
        a(f'v_mov_b32 v{r}, 0')
    a('s_waitcnt lgkmcnt(0)')
    for jj in range(4):
        for st in range(4):
            r = 64 + 16 * jj + 4 * st
            a(f'v_mfma_f32_16x16x32_bf16 v[{128+4*jj}:{131+4*jj}], v[{r}:{r+3}], v[{32+4*st}:{35+4*st}], v[{128+4*jj}:{131+4*jj}]')
    a.nop(10)
    a('v_lshlrev_b32 v30, 11, v14')
    a('v_lshl_add_u32 v30, v13, 4, v30')
    a('s_lshr_b32 s41, s2, 1')
    a('s_lshl_b32 s41, s41, 14')
    a('s_lshl_b32 s42, s46, 10')
    a('s_add_u32 s41, s41, s42')
    a('s_lshl_b32 s42, s3, 8')
    a('s_add_u32 s41, s41, s42')
    for jj in range(4):
        a(f'buffer_store_dwordx4 v[{128+4*jj}:{131+4*jj}], v30, s[28:31], s41 offen offset:{jj*64}')
    a.label('K3_EXIT')
    a('s_endpgm')

K4_LDS = 8192
def gen_k4(a):
    a.label('k4_kernel')
    prologue(a, 128, 'K4_EXIT')
    a('s_load_dwordx2 s[4:5], s[0:1], 0')
    a('s_load_dwordx2 s[6:7], s[0:1], 80')
    a('s_load_dwordx2 s[8:9], s[0:1], 96')
    a('s_waitcnt lgkmcnt(0)')
    srd(a, 12, 4, 8192)
    srd(a, 16, 6, 8192)
    srd(a, 20, 8, 2097152, WS_ATTP)
    srd(a, 24, 8, 43*16384, WS_FFNP)
    a('v_and_b32 v1, 7, v0')
    a('v_lshrrev_b32 v2, 3, v0')
    a('v_lshlrev_b32 v3, 14, v2')
    a('v_lshl_add_u32 v3, v1, 4, v3')
    a('s_lshl_b32 s41, s2, 7')
    for i in range(4):
        a(f'buffer_load_dwordx4 v[{8+4*i}:{11+4*i}], v3, s[20:23], s41 offen')
        a('s_add_u32 s41, s41, 524288')
    a('s_lshl_b32 s41, s2, 7')
    a('buffer_load_dwordx4 v[24:27], v3, s[24:27], s41 offen')
    a('s_add_u32 s41, s41, 524288')
    a('buffer_load_dwordx4 v[28:31], v3, s[24:27], s41 offen')
    a('v_lshlrev_b32 v4, 1, v0')
    a('s_lshl_b32 s42, s2, 6')
    a('buffer_load_ushort v5, v4, s[12:15], s42 offen')
    a('s_waitcnt vmcnt(1)')
    for e in range(4):
        a(f'v_add_f32 v{8+e}, v{8+e}, v{12+e}')
        a(f'v_add_f32 v{16+e}, v{16+e}, v{20+e}')
        a(f'v_add_f32 v{8+e}, v{8+e}, v{16+e}')
        a(f'v_add_f32 v{24+e}, v{24+e}, v{28+e}')
    a('v_lshlrev_b32 v6, 4, v0')
    a('ds_write_b128 v6, v[8:11]')
    a('ds_write_b128 v6, v[24:27] offset:4096')
    a('s_waitcnt lgkmcnt(0)')
    a('s_barrier')
    a('v_cmp_gt_u32 vcc, 32, v0')
    a('s_and_saveexec_b64 s[28:29], vcc')
    a('s_cbranch_execz K4_EXIT')
    a('v_lshlrev_b32 v6, 2, v0')
    for g in range(32):
        a(f'ds_read_b32 v{32+g}, v6 offset:{g*128}')
        a(f'ds_read_b32 v{64+g}, v6 offset:{4096+g*128}')
    a('s_waitcnt lgkmcnt(0)')
    for base in (32, 64):
        for step in (16, 8, 4, 2, 1):
            for i in range(step):
                a(f'v_add_f32 v{base+i}, v{base+i}, v{base+i+step}')
    a('s_waitcnt vmcnt(0)')
    a('v_lshlrev_b32 v5, 16, v5')
    bf16_round_pair(a, 32, 64, 32, 64, 7)
    a('v_add_f32 v32, v32, v5')
    bf16_round_pair(a, 32, 33, 32, 32, 7)
    a('v_add_f32 v32, v32, v64')
    a('v_cvt_pk_bf16_f32 v32, v32, v32')
    a('buffer_store_short v32, v4, s[16:19], s42 offen')
    a.label('K4_EXIT')
    a('s_endpgm')

def kd(name, vgpr=256, sgpr=102):
    return f'''.amdhsa_kernel {name}
  .amdhsa_next_free_vgpr {vgpr}
  .amdhsa_next_free_sgpr {sgpr}
  .amdhsa_accum_offset {(vgpr+3)//4*4}
  .amdhsa_group_segment_fixed_size 0
  .amdhsa_kernarg_size 104
  .amdhsa_user_sgpr_count 2
  .amdhsa_user_sgpr_kernarg_segment_ptr 1
  .amdhsa_system_sgpr_workgroup_id_x 1
.end_amdhsa_kernel
'''

def main(out):
    a = Asm()
    a.raw(HDR.rstrip('\n'))
    a.raw(f'; @launch kernel=k1_kernel grid=(75,1,1) block=(256,1,1) lds={K1_LDS}')
    a.raw(f'; @launch kernel=k2_kernel grid=(256,1,1) block=(256,1,1) lds={K2_LDS}')
    a.raw(f'; @launch kernel=k3_kernel grid=(256,1,1) block=(256,1,1) lds={K3_LDS}')
    a.raw(f'; @launch kernel=k4_kernel grid=(128,1,1) block=(256,1,1) lds={K4_LDS}')
    a.raw('.amdgcn_target "amdgcn-amd-amdhsa--gfx950"')
    a.raw('.text')
    for name, g in (('k1_kernel', gen_k1), ('k2_kernel', gen_k2), ('k3_kernel', gen_k3), ('k4_kernel', gen_k4)):
        a.raw(f'.globl {name}')
        a.raw('.p2align 8')
        a.raw(f'.type {name},@function')
        g(a)
    a.raw('.section .rodata,"a"')
    for name in ('k1_kernel', 'k2_kernel', 'k3_kernel', 'k4_kernel'):
        a.raw('.p2align 6')
        a.raw(kd(name))
    open(out, 'w').write('\n'.join(a.L) + '\n')

if __name__ == '__main__':
    main(sys.argv[1] if len(sys.argv) > 1 else 'parallel_sum__compressed_kv_cla__geglu_ffn__decode.s')
```

```python
import sys

HDR = open('parallel_sum__compressed_kv_cla__geglu_ffn__decode.s.ref').read().split('; Override launch')[0]

class Asm:
    def __init__(self):
        self.L = []
    def __call__(self, s, *a):
        for line in s.split('\n'):
            line = line.strip()
            if line:
                self.L.append('    ' + line)
    def label(self, l):
        self.L.append(l + ':')
    def raw(self, s):
        self.L.append(s)
    def nop(self, n):
        while n > 0:
            k = min(n, 16)
            self(f's_nop {k-1}')
            n -= k

WS_QABS = 0x0
WS_FFNP = 0x40000
WS_STATS = 0x100000
WS_OPART = 0x200000
WS_ATTP = 0xA00000

KA = dict(x=0, ckv=8, wq=16, wuk=24, wuv=32, wo=40, bx=48, wg=56, wu=64, wd=72, out=80, dbg=88, ws=96)

def srd(a, r, ptr, nbytes, off=0):
    if off:
        a(f's_add_u32 s{r}, s{ptr}, {off}')
        a(f's_addc_u32 s{r+1}, s{ptr+1}, 0')
        a(f's_and_b32 s{r+1}, s{r+1}, 0xffff')
    else:
        a(f's_mov_b32 s{r}, s{ptr}')
        a(f's_and_b32 s{r+1}, s{ptr+1}, 0xffff')
    a(f's_mov_b32 s{r+2}, {nbytes}')
    a(f's_mov_b32 s{r+3}, 0x00020000')

def bf16_round_pair(a, d0, d1, s0, s1, tmp):
    a(f'v_cvt_pk_bf16_f32 v{tmp}, v{s0}, v{s1}')
    a(f'v_lshlrev_b32 v{d0}, 16, v{tmp}')
    a(f'v_and_b32 v{d1}, 0xffff0000, v{tmp}')

def swz_reduce32(a, v, tmp, op):
    for m in (1, 2, 4, 8, 16):
        a(f'ds_swizzle_b32 v{tmp}, v{v} offset:{(m << 10) | 0x1f}')
        a('s_waitcnt lgkmcnt(0)')
        a(f'{op} v{v}, v{v}, v{tmp}')

XN_STRIDE = 1056
def layernorm(a, srd_x, s_wave, v_lane, xn_off, vb):
    t = vb
    a(f'v_lshrrev_b32 v{t}, 5, v{v_lane}')
    a(f's_lshl_b32 s40, s{s_wave}, 1')
    a(f'v_add_u32 v{t}, s40, v{t}')
    a(f'v_and_b32 v{t+1}, 31, v{v_lane}')
    a(f'v_lshlrev_b32 v{t+1}, 5, v{t+1}')
    a(f'v_lshl_add_u32 v{t+2}, v{t}, 10, v{t+1}')
    a(f'buffer_load_dwordx4 v[{t+4}:{t+7}], v{t+2}, s[{srd_x}:{srd_x+3}], 0 offen')
    a(f'buffer_load_dwordx4 v[{t+8}:{t+11}], v{t+2}, s[{srd_x}:{srd_x+3}], 0 offen offset:16')
    a(f's_mov_b32 s40, {XN_STRIDE}')
    a(f'v_mul_lo_u32 v{t+3}, v{t}, s40')
    a(f'v_add_u32 v{t+3}, v{t+3}, v{t+1}')
    a(f'v_add_u32 v{t+3}, {xn_off}, v{t+3}')
    return t

def layernorm_finish(a, t, vmcnt_after):
    a(f's_waitcnt vmcnt({vmcnt_after})')
    for i in range(8):
        a(f'v_lshlrev_b32 v{t+12+2*i}, 16, v{t+4+i}')
        a(f'v_and_b32 v{t+12+2*i+1}, 0xffff0000, v{t+4+i}')
    X = t + 12
    S = t + 28; TMP = t + 29; M = t + 30; V = t + 31
    a(f'v_add_f32 v{S}, v{X}, v{X+1}')
    for i in range(2, 16):
        a(f'v_add_f32 v{S}, v{S}, v{X+i}')
    swz_reduce32(a, S, TMP, 'v_add_f32')
    a(f'v_mul_f32 v{M}, 0x3b000000, v{S}')
    a(f'v_sub_f32 v{TMP}, v{X}, v{M}')
    a(f'v_mul_f32 v{V}, v{TMP}, v{TMP}')
    for i in range(1, 16):
        a(f'v_sub_f32 v{TMP}, v{X+i}, v{M}')
        a(f'v_fmac_f32 v{V}, v{TMP}, v{TMP}')
    swz_reduce32(a, V, TMP, 'v_add_f32')
    a(f'v_mul_f32 v{V}, 0x3b000000, v{V}')
    bf16_round_pair(a, M, V, M, V, TMP)
    a(f'v_add_f32 v{V}, 0x3727c5ac, v{V}')
    bf16_round_pair(a, V, TMP, V, V, S)
    a(f'v_sqrt_f32 v{V}, v{V}')
    a('s_nop 0')
    bf16_round_pair(a, V, TMP, V, V, S)
    R = t + 32
    a(f'v_rcp_f32 v{R}, v{V}')
    a('s_nop 0')
    for i in range(8):
        a(f'v_sub_f32 v{X+2*i}, v{X+2*i}, v{M}')
        a(f'v_sub_f32 v{X+2*i+1}, v{X+2*i+1}, v{M}')
        bf16_round_pair(a, X+2*i, X+2*i+1, X+2*i, X+2*i+1, TMP)
    for i in range(16):
        a(f'v_mul_f32 v{TMP}, v{X+i}, v{R}')
        a(f'v_fma_f32 v{S}, -v{TMP}, v{V}, v{X+i}')
        a(f'v_fma_f32 v{X+i}, v{S}, v{R}, v{TMP}')
    for i in range(8):
        a(f'v_cvt_pk_bf16_f32 v{t+4+i}, v{X+2*i}, v{X+2*i+1}')
    a(f'ds_write_b128 v{t+3}, v[{t+4}:{t+7}]')
    a(f'ds_write_b128 v{t+3}, v[{t+8}:{t+11}] offset:16')

STAMP = False
WS_STAMP = 0xF000000
def stamp(a, i):
    if STAMP:
        a(f's_memtime s[{60+2*i}:{61+2*i}]')
        a('s_waitcnt lgkmcnt(0)')
def stamp_flush(a, n, ws, kidx):
    if not STAMP: return
    a('s_memrealtime s[84:85]')
    a('s_waitcnt lgkmcnt(0)')
    srd(a, 88, ws, 1<<20, WS_STAMP + kidx * 65536)
    a('s_lshl_b32 s92, s2, 7')
    a('s_lshl_b32 s93, s3, 5')
    a('v_mov_b32 v250, 0')
    for i in range(n):
        a(f'v_mov_b32 v251, s{60+2*i}')
        a(f'buffer_store_dword v251, v250, s[88:91], s92 offen offset:{4*i}')
    a('v_mov_b32 v251, s84')
    a(f'buffer_store_dword v251, v250, s[88:91], s92 offen offset:{4*n}')

def prologue(a, nwg, exit_label):
    a(f's_cmp_ge_u32 s2, {nwg}')
    a(f's_cbranch_scc1 {exit_label}')

def wave_lane(a, s_wave, v_lane):
    a(f'v_lshrrev_b32 v1, 6, v0')
    a(f'v_and_b32 v{v_lane}, 63, v0')
    a(f'v_readfirstlane_b32 s{s_wave}, v1')
    a('s_nop 3')

K1_LDS_XN = 131072
K1_LDS_QB = K1_LDS_XN + 8 * XN_STRIDE
K1_LDS = K1_LDS_QB + 8 * 288
def gen_k1(a):
    a.label('k1_kernel')
    prologue(a, 75, 'K1_EXIT')
    a('s_load_dwordx2 s[4:5], s[0:1], 0')
    a('s_load_dwordx4 s[8:11], s[0:1], 16')
    a('s_load_dwordx4 s[12:15], s[0:1], 56')
    a('s_load_dwordx2 s[16:17], s[0:1], 72')
    a('s_load_dwordx2 s[18:19], s[0:1], 96')
    wave_lane(a, 3, 2)
    a('s_waitcnt lgkmcnt(0)')
    srd(a, 20, 4, 8192)
    t = layernorm(a, 20, 3, 2, K1_LDS_XN, 60)
    a('v_and_b32 v3, 15, v2')
    a('v_lshrrev_b32 v4, 4, v2')
    a('v_and_b32 v5, 7, v2')
    a('v_lshrrev_b32 v6, 2, v2')
    a('v_and_b32 v6, 3, v6')
    a('v_and_b32 v7, 3, v2')
    a(f's_mov_b32 s40, {XN_STRIDE}')
    a('v_mul_lo_u32 v8, v5, s40')
    a('v_lshl_add_u32 v8, v4, 4, v8')
    a(f'v_add_u32 v8, {K1_LDS_XN}, v8')
    a('s_mov_b32 s40, 288')
    a('v_mul_lo_u32 v9, v5, s40')
    a(f'v_add_u32 v9, {K1_LDS_QB}, v9')
    a('v_lshl_add_u32 v10, v4, 4, v9')
    a('v_lshl_add_u32 v11, v4, 3, v9')
    a('s_cmp_ge_u32 s2, 32')
    a('s_cbranch_scc1 K1_FFN')

    srd(a, 24, 8, 4194304)
    srd(a, 28, 10, 4194304)
    srd(a, 32, 18, 262144, WS_QABS)
    a('v_lshlrev_b32 v12, 1, v4')
    a('v_xor_b32 v12, v12, v3')
    a('v_lshlrev_b32 v12, 4, v12')
    a('v_lshl_add_u32 v12, v4, 13, v12')
    a('v_xor_b32 v13, 128, v12')
    a('s_lshl_b32 s41, s2, 8')
    a('s_lshl_b32 s42, s3, 20')
    a('s_add_u32 s41, s41, s42')
    a('s_lshl_b32 s43, s3, 15')
    for i in range(32):
        a(f's_mov_b32 m0, s43')
        a(f's_add_u32 s43, s43, 1024')
        v = 13 if (i >> 1) & 1 else 12
        a(f'buffer_load_dwordx4 v{v}, s[24:27], s41 offen nt lds')
        a(f's_add_u32 s41, s41, 32768')
    a('v_lshlrev_b32 v14, 13, v3')
    a('v_lshl_add_u32 v14, v4, 4, v14')
    a('s_lshl_b32 s41, s2, 8')
    a('s_lshl_b32 s42, s3, 20')
    a('s_add_u32 s41, s41, s42')
    for tt in range(8):
        for st in range(4):
            r = 128 + (tt * 4 + st) * 4
            a(f'buffer_load_dwordx4 v[{r}:{r+3}], v14, s[28:31], s41 offen offset:{st*64} nt')
        a('s_add_u32 s41, s41, 131072')
    layernorm_finish(a, t, 63)
    a('v_and_b32 v15, 1, v4')
    a('v_lshl_add_u32 v15, v15, 2, v6')
    a('v_lshlrev_b32 v15, 1, v15')
    a('v_lshl_add_u32 v16, v4, 3, v6')
    a('v_lshlrev_b32 v16, 8, v16')
    a('v_lshrrev_b32 v17, 1, v7')
    a('v_lshl_add_u32 v16, v17, 4, v16')
    a('v_and_b32 v17, 1, v7')
    a('v_lshl_add_u32 v16, v17, 3, v16')
    a('s_lshl_b32 s41, s3, 2')
    a('v_xor_b32 v17, s41, v15')
    a('v_lshl_add_u32 v18, v17, 4, v16')
    a('s_add_u32 s41, s41, 2')
    a('v_xor_b32 v17, s41, v15')
    a('v_lshl_add_u32 v19, v17, 4, v16')
    a('v_add_u32 v20, 0x10000, v18')
    a('v_add_u32 v21, 0x10000, v19')
    for r in range(24, 32):
        a(f'v_mov_b32 v{r}, 0')
    a('s_waitcnt vmcnt(32) lgkmcnt(0)')
    a('s_barrier')
    for k in range(16):
        b0, b1 = (18, 19) if k < 8 else (20, 21)
        off = (k & 7) * 8192
        a(f'ds_read_b128 v[32:35], v8 offset:{k*64}')
        a(f'ds_read_b64_tr_b16 v[36:37], v{b0} offset:{off}')
        a(f'ds_read_b64_tr_b16 v[38:39], v{b0} offset:{off+1024}')
        a(f'ds_read_b64_tr_b16 v[40:41], v{b1} offset:{off}')
        a(f'ds_read_b64_tr_b16 v[42:43], v{b1} offset:{off+1024}')
        a('s_waitcnt lgkmcnt(0)')
        a('v_mfma_f32_16x16x32_bf16 v[24:27], v[36:39], v[32:35], v[24:27]')
        a('v_mfma_f32_16x16x32_bf16 v[28:31], v[40:43], v[32:35], v[28:31]')
    a.nop(10)
    a('v_cvt_pk_bf16_f32 v32, v24, v25')
    a('v_cvt_pk_bf16_f32 v33, v26, v27')
    a('v_cvt_pk_bf16_f32 v34, v28, v29')
    a('v_cvt_pk_bf16_f32 v35, v30, v31')
    a('s_lshl_b32 s41, s3, 6')
    a('v_add_u32 v17, s41, v11')
    a('ds_write_b64 v17, v[32:33]')
    a('ds_write_b64 v17, v[34:35] offset:32')
    a('s_waitcnt lgkmcnt(0)')
    a('s_barrier')
    for st in range(4):
        a(f'ds_read_b128 v[{32+4*st}:{35+4*st}], v10 offset:{st*64}')
    for r in range(48, 80):
        a(f'v_mov_b32 v{r}, 0')
    a('s_waitcnt vmcnt(0) lgkmcnt(0)')
    for tt in range(8):
        for st in range(4):
            r = 128 + (tt * 4 + st) * 4
            a(f'v_mfma_f32_16x16x32_bf16 v[{48+4*tt}:{51+4*tt}], v[{r}:{r+3}], v[{32+4*st}:{35+4*st}], v[{48+4*tt}:{51+4*tt}]')
    a.nop(10)
    a('v_lshlrev_b32 v17, 15, v5')
    a('v_lshl_add_u32 v17, v4, 3, v17')
    a('s_lshl_b32 s41, s2, 10')
    a('s_lshl_b32 s42, s3, 8')
    a('s_add_u32 s41, s41, s42')
    for tt in range(8):
        a(f'v_cvt_pk_bf16_f32 v{80+2*tt}, v{48+4*tt}, v{49+4*tt}')
        a(f'v_cvt_pk_bf16_f32 v{81+2*tt}, v{50+4*tt}, v{51+4*tt}')
        a(f'buffer_store_dwordx2 v[{80+2*tt}:{81+2*tt}], v17, s[32:35], s41 offen offset:{tt*32}')
    a('s_branch K1_EXIT')

    a.label('K1_FFN')
    F_G, F_U, F_D = 0, 32768, 65536
    srd(a, 24, 12, 1409024)
    srd(a, 28, 14, 1409024)
    srd(a, 32, 16, 1409024)
    srd(a, 36, 18, 43*16384, WS_FFNP)
    a('s_sub_u32 s44, s2, 32')
    a('v_lshrrev_b32 v12, 2, v2')
    a('v_lshrrev_b32 v13, 5, v2')
    a('v_lshlrev_b32 v13, 1, v13')
    a('v_xor_b32 v13, v13, v7')
    a('s_mov_b32 s40, 2752')
    a('v_mul_lo_u32 v12, v12, s40')
    a('v_lshl_add_u32 v12, v13, 4, v12')
    a('s_lshl_b32 s41, s44, 6')
    a('s_mul_i32 s42, s3, 352256')
    a('s_add_u32 s41, s41, s42')
    a('s_lshl_b32 s43, s3, 13')
    for i in range(8):
        a(f's_add_u32 s45, s43, {F_G}')
        a('s_mov_b32 m0, s45')
        a(f's_add_u32 s45, s43, {F_U}')
        a('buffer_load_dwordx4 v12, s[24:27], s41 offen nt lds')
        a('s_mov_b32 m0, s45')
        a('s_add_u32 s43, s43, 1024')
        a('buffer_load_dwordx4 v12, s[28:31], s41 offen nt lds')
        a('s_add_u32 s41, s41, 44032')
    a('s_lshl_b32 s41, s44, 15')
    a('s_lshl_b32 s42, s3, 13')
    a('s_add_u32 s41, s41, s42')
    a(f's_add_u32 s43, s42, {F_D}')
    a('s_and_b32 s45, s3, 1')
    a('s_lshl_b32 s45, s45, 3')
    for i in range(8):
        a(f's_add_u32 s46, s45, {(i&3)<<1}')
        a('v_xor_b32 v13, s46, v2')
        a('v_lshlrev_b32 v13, 4, v13')
        a('s_mov_b32 m0, s43')
        a('s_add_u32 s43, s43, 1024')
        a('buffer_load_dwordx4 v13, s[32:35], s41 offen nt lds')
        a('s_add_u32 s41, s41, 1024')
    layernorm_finish(a, t, 24)
    a('v_lshl_add_u32 v16, v4, 3, v6')
    a('v_lshlrev_b32 v16, 6, v16')
    a('v_lshrrev_b32 v17, 1, v7')
    a('s_lshl_b32 s41, s3, 1')
    a('v_add_u32 v17, s41, v17')
    a('v_and_b32 v15, 1, v4')
    a('v_lshlrev_b32 v15, 1, v15')
    a('v_xor_b32 v17, v17, v15')
    a('v_lshl_add_u32 v16, v17, 4, v16')
    a('v_and_b32 v17, 1, v7')
    a('v_lshl_add_u32 v16, v17, 3, v16')
    a(f'v_add_u32 v18, {F_U}, v16')
    for r in range(24, 32):
        a(f'v_mov_b32 v{r}, 0')
    a('s_waitcnt vmcnt(0) lgkmcnt(0)')
    a('s_barrier')
    a('s_cmp_ge_u32 s3, 2')
    a('s_cbranch_scc1 K1_FFN_SKIP')
    for k in range(16):
        off = k * 2048
        a(f'ds_read_b128 v[32:35], v8 offset:{k*64}')
        a(f'ds_read_b64_tr_b16 v[36:37], v16 offset:{off}')
        a(f'ds_read_b64_tr_b16 v[38:39], v16 offset:{off+256}')
        a(f'ds_read_b64_tr_b16 v[40:41], v18 offset:{off}')
        a(f'ds_read_b64_tr_b16 v[42:43], v18 offset:{off+256}')
        a('s_waitcnt lgkmcnt(0)')
        a('v_mfma_f32_16x16x32_bf16 v[24:27], v[36:39], v[32:35], v[24:27]')
        a('v_mfma_f32_16x16x32_bf16 v[28:31], v[40:43], v[32:35], v[28:31]')
    a.nop(10)
    bf16_round_pair(a, 24, 25, 24, 25, 32)
    bf16_round_pair(a, 26, 27, 26, 27, 32)
    bf16_round_pair(a, 28, 29, 28, 29, 32)
    bf16_round_pair(a, 30, 31, 30, 31, 32)
    import math
    c1 = -2.0 * math.log2(math.e) * math.sqrt(2.0 / math.pi)
    import struct
    def f2u(f): return struct.unpack('<I', struct.pack('<f', f))[0]
    a(f's_mov_b32 s41, {f2u(0.044715):#x}')
    a(f's_mov_b32 s42, {f2u(c1):#x}')
    for r in range(24, 28):
        a(f'v_mul_f32 v32, v{r}, v{r}')
        a(f'v_mul_f32 v32, s41, v32')
        a(f'v_fma_f32 v32, v32, v{r}, v{r}')
        a(f'v_mul_f32 v32, s42, v32')
        a(f'v_exp_f32 v32, v32')
        a('s_nop 0')
        a(f'v_add_f32 v32, 1.0, v32')
        a(f'v_rcp_f32 v32, v32')
        a('s_nop 0')
        a(f'v_mul_f32 v{r}, v{r}, v32')
    bf16_round_pair(a, 24, 25, 24, 25, 32)
    bf16_round_pair(a, 26, 27, 26, 27, 32)
    for r in range(4):
        a(f'v_mul_f32 v{24+r}, v{24+r}, v{28+r}')
    a('v_cvt_pk_bf16_f32 v32, v24, v25')
    a('v_cvt_pk_bf16_f32 v33, v26, v27')
    a('s_lshl_b32 s41, s3, 5')
    a('v_add_u32 v17, s41, v11')
    a('ds_write_b64 v17, v[32:33]')
    a.label('K1_FFN_SKIP')
    a('s_waitcnt lgkmcnt(0)')
    a('s_barrier')
    a('ds_read_b128 v[32:35], v10')
    a('v_lshl_add_u32 v16, v4, 3, v6')
    a('v_lshlrev_b32 v16, 10, v16')
    a('v_lshrrev_b32 v17, 1, v7')
    a('v_lshl_add_u32 v16, v17, 4, v16')
    a('v_and_b32 v17, 1, v7')
    a('v_lshl_add_u32 v16, v17, 3, v16')
    a('s_lshl_b32 s41, s3, 8')
    a(f's_add_u32 s41, s41, {F_D}')
    a('v_add_u32 v16, s41, v16')
    a('v_and_b32 v15, 1, v4')
    a('v_lshl_add_u32 v15, v15, 2, v6')
    a('v_lshlrev_b32 v15, 5, v15')
    for j in range(8):
        a(f'v_xor_b32 v17, {j<<5}, v15')
        a(f'v_add_u32 v17, v17, v16')
        a(f'ds_read_b64_tr_b16 v[{80+4*j}:{81+4*j}], v17')
        a(f'ds_read_b64_tr_b16 v[{82+4*j}:{83+4*j}], v17 offset:4096')
    for r in range(48, 80):
        a(f'v_mov_b32 v{r}, 0')
    a('s_waitcnt lgkmcnt(0)')
    for j in range(8):
        a(f'v_mfma_f32_16x16x32_bf16 v[{48+4*j}:{51+4*j}], v[{80+4*j}:{83+4*j}], v[32:35], v[{48+4*j}:{51+4*j}]')
    a.nop(10)
    a('v_lshlrev_b32 v17, 11, v5')
    a('v_lshl_add_u32 v17, v4, 4, v17')
    a('s_lshl_b32 s41, s44, 14')
    a('s_lshl_b32 s42, s3, 9')
    a('s_add_u32 s41, s41, s42')
    for j in range(8):
        a(f'buffer_store_dwordx4 v[{48+4*j}:{51+4*j}], v17, s[36:39], s41 offen offset:{j*64}')
    a.label('K1_EXIT')
    a('s_endpgm')

K2_P = 131072
K2_ST = K2_P + 8192
K2_LDS = K2_ST + 1024
def fsw(r):
    return ((r & 3) << 2) | ((r >> 2) & 3)

def gen_k2(a):
    a.label('k2_kernel')
    prologue(a, 256, 'K2_EXIT')
    stamp(a, 0)
    a('s_load_dwordx2 s[4:5], s[0:1], 8')
    a('s_load_dwordx2 s[6:7], s[0:1], 96')
    wave_lane(a, 3, 2)
    a('s_waitcnt lgkmcnt(0)')
    srd(a, 8, 4, 33554432)
    srd(a, 12, 6, 262144, WS_QABS)
    srd(a, 16, 6, 65536, WS_STATS)
    srd(a, 20, 6, 8388608, WS_OPART)
    a('v_lshlrev_b32 v3, 4, v2')
    a('s_lshl_b32 s41, s2, 17')
    a('s_lshl_b32 s43, s3, 15')
    a('s_add_u32 s41, s41, s43')
    for i in range(32):
        a(f'v_xor_b32 v4, {fsw(i & 15) << 4}, v3')
        a('s_mov_b32 m0, s43')
        a('s_add_u32 s43, s43, 1024')
        a('buffer_load_dwordx4 v4, s[8:11], s41 offen nt lds')
        a('s_add_u32 s41, s41, 1024')
    a('v_and_b32 v5, 31, v2')
    a('v_lshrrev_b32 v6, 5, v2')
    a('v_lshlrev_b32 v7, 10, v5')
    a('v_lshl_add_u32 v7, v6, 4, v7')
    a('s_lshr_b32 s44, s2, 5')
    a('s_lshl_b32 s41, s44, 15')
    for st in range(32):
        a(f'buffer_load_dwordx4 v[{128+4*st}:{131+4*st}], v7, s[12:15], s41 offen offset:{st*32}')
    a('v_and_b32 v8, 3, v5')
    a('v_lshlrev_b32 v8, 2, v8')
    a('v_lshrrev_b32 v9, 2, v5')
    a('v_and_b32 v9, 3, v9')
    a('v_or_b32 v8, v8, v9')
    a('v_xor_b32 v8, v8, v6')
    a('v_lshlrev_b32 v9, 10, v5')
    a('s_lshl_b32 s41, s3, 15')
    a('v_add_u32 v9, s41, v9')
    for e in range(8):
        a(f'v_xor_b32 v10, {2*e}, v8')
        a(f'v_lshl_add_u32 v{16+e}, v10, 4, v9')
    for r in range(32, 48):
        a(f'v_mov_b32 v{r}, 0')
    stamp(a, 1)
    a('s_waitcnt vmcnt(0)')
    stamp(a, 2)
    def rd(st):
        return f'ds_read_b128 v[{48+4*(st&3)}:{51+4*(st&3)}], v{16+(st&7)} offset:{(st>>3)*256}'
    for st in range(3):
        a(rd(st))
    for st in range(32):
        if st + 3 < 32:
            a(rd(st + 3))
            a('s_waitcnt lgkmcnt(3)')
        else:
            a(f's_waitcnt lgkmcnt({31-st})')
        a(f'v_mfma_f32_32x32x16_bf16 v[32:47], v[{48+4*(st&3)}:{51+4*(st&3)}], v[{128+4*st}:{131+4*st}], v[32:47]')
    a.nop(14)
    stamp(a, 3)
    a('s_mov_b32 s41, 0x3db504f3')
    for i in range(8):
        bf16_round_pair(a, 32+2*i, 33+2*i, 32+2*i, 33+2*i, 48)
        a(f'v_mul_f32 v{32+2*i}, s41, v{32+2*i}')
        a(f'v_mul_f32 v{33+2*i}, s41, v{33+2*i}')
        bf16_round_pair(a, 32+2*i, 33+2*i, 32+2*i, 33+2*i, 48)
    a('v_max3_f32 v48, v32, v33, v34')
    for i in range(35, 47, 2):
        a(f'v_max3_f32 v48, v48, v{i}, v{i+1}')
    a('v_max_f32 v48, v48, v47')
    a('v_mov_b32 v49, v48')
    a('s_nop 1')
    a('v_permlane32_swap_b32 v48, v49')
    a('v_max_f32 v48, v48, v49')
    a('v_lshlrev_b32 v11, 2, v5')
    a(f'v_add_u32 v11, {K2_ST}, v11')
    a('s_lshl_b32 s41, s3, 7')
    a('v_add_u32 v12, s41, v11')
    a('ds_write_b32 v12, v48')
    a('s_waitcnt lgkmcnt(0)')
    a('s_barrier')
    a('ds_read_b32 v48, v11')
    a('ds_read_b32 v49, v11 offset:128')
    a('ds_read_b32 v50, v11 offset:256')
    a('ds_read_b32 v51, v11 offset:384')
    a('s_waitcnt lgkmcnt(0)')
    a('v_max3_f32 v48, v48, v49, v50')
    a('v_max_f32 v48, v48, v51')
    a('s_mov_b32 s41, 0x3fb8aa3b')
    a('v_mul_f32 v49, s41, v48')
    for i in range(16):
        a(f'v_fma_f32 v{32+i}, v{32+i}, s41, -v49')
        a(f'v_exp_f32 v{32+i}, v{32+i}')
    a('s_nop 0')
    a('v_add_f32 v50, v32, v33')
    for i in range(2, 16):
        a(f'v_add_f32 v50, v50, v{32+i}')
    a('v_mov_b32 v51, v50')
    a('s_nop 1')
    a('v_permlane32_swap_b32 v50, v51')
    a('v_add_f32 v50, v50, v51')
    a('ds_write_b32 v12, v50 offset:512')
    for i in range(8):
        a(f'v_cvt_pk_bf16_f32 v{52+i}, v{32+2*i}, v{33+2*i}')
    a('s_lshl_b32 s41, s3, 11')
    a(f's_add_u32 s41, s41, {K2_P}')
    a('v_add_u32 v13, s41, v3')
    a('ds_write_b128 v13, v[52:55]')
    a('ds_write_b128 v13, v[56:59] offset:1024')
    a('s_waitcnt lgkmcnt(0)')
    a('s_barrier')
    stamp(a, 4)
    a('ds_read_b32 v50, v11 offset:512')
    a('ds_read_b32 v51, v11 offset:640')
    a('ds_read_b32 v52, v11 offset:768')
    a('ds_read_b32 v53, v11 offset:896')
    a(f'v_add_u32 v13, {K2_P}, v3')
    for u in range(8):
        a(f'ds_read_b128 v[{128+4*u}:{131+4*u}], v13 offset:{u*1024}')
    a('v_lshrrev_b32 v14, 2, v2')
    a('v_and_b32 v14, 3, v14')
    a('v_and_b32 v15, 3, v2')
    a('v_lshrrev_b32 v16, 4, v2')
    a('v_and_b32 v16, 1, v16')
    a('v_lshrrev_b32 v17, 1, v15')
    a('v_lshl_add_u32 v17, v16, 1, v17')
    a('v_lshl_add_u32 v18, v6, 2, v14')
    a('v_lshlrev_b32 v18, 10, v18')
    a('s_lshl_b32 s41, s3, 8')
    a('v_add_u32 v18, s41, v18')
    a('v_and_b32 v19, 1, v15')
    a('v_lshl_add_u32 v18, v19, 3, v18')
    for sec in range(2):
        a(f'v_add_u32 v19, {2*sec}, v6')
        a('v_xor_b32 v19, v19, v17')
        for t in range(4):
            a(f'v_xor_b32 v20, {t}, v14')
            a('v_lshl_add_u32 v20, v20, 2, v19')
            a(f'v_lshl_add_u32 v{160+2*t+sec}, v20, 4, v18')
            if sec:
                a(f'v_add_u32 v{160+2*t+sec}, 8192, v{160+2*t+sec}')
    for r in range(64, 128):
        a(f'v_mov_b32 v{r}, 0')
    a('s_waitcnt lgkmcnt(0)')
    a('v_add_f32 v50, v50, v51')
    a('v_add_f32 v52, v52, v53')
    a('v_add_f32 v49, v50, v52')
    a('v_lshlrev_b32 v19, 11, v5')
    a('s_lshl_b32 s41, s2, 3')
    a('buffer_store_dwordx2 v[48:49], v19, s[16:19], s41 offen')
    def trrd(u, t, buf):
        off = (u & 3) * 16384
        return [f'ds_read_b64_tr_b16 v[{buf}:{buf+1}], v{160+2*t} offset:{off}',
                f'ds_read_b64_tr_b16 v[{buf+2}:{buf+3}], v{161+2*t} offset:{off}']
    seq = [(u, t) for u in range(8) for t in range(4)]
    bufs = [168, 172, 176, 180]
    def issue(idx):
        u, t = seq[idx]
        if u == 4 and t == 0:
            for r in range(160, 168):
                a(f'v_add_u32 v{r}, 0x10000, v{r}')
        for s in trrd(u, t, bufs[idx & 3]):
            a(s)
    for idx in range(3):
        issue(idx)
    for idx in range(32):
        u, t = seq[idx]
        if idx + 3 < 32:
            issue(idx + 3)
            a('s_waitcnt lgkmcnt(6)')
        else:
            a(f's_waitcnt lgkmcnt({2*(31-idx)})')
        b = bufs[idx & 3]
        a(f'v_mfma_f32_32x32x16_bf16 v[{64+16*t}:{79+16*t}], v[{b}:{b+3}], v[{128+4*u}:{131+4*u}], v[{64+16*t}:{79+16*t}]')
    a.nop(14)
    stamp(a, 5)
    a('v_lshlrev_b32 v19, 10, v5')
    a('v_lshl_add_u32 v19, v6, 7, v19')
    a('s_lshl_b32 s41, s2, 15')
    a('s_lshl_b32 s42, s3, 8')
    a('s_add_u32 s41, s41, s42')
    for t in range(4):
        for i in range(8):
            a(f'v_cvt_pk_bf16_f32 v{128+8*t+i}, v{64+16*t+2*i}, v{65+16*t+2*i}')
        a(f'buffer_store_dwordx4 v[{128+8*t}:{131+8*t}], v19, s[20:23], s41 offen offset:{t*32}')
        a(f'buffer_store_dwordx4 v[{132+8*t}:{135+8*t}], v19, s[20:23], s41 offen offset:{t*32+16}')
    if STAMP:
        a('s_waitcnt vmcnt(0)')
        stamp(a, 6)
        a('s_cmp_lg_u32 s3, 0')
        a('s_cbranch_scc1 K2_EXIT')
        stamp_flush(a, 7, 6, 1)
    a.label('K2_EXIT')
    a('s_endpgm')

K3_AL = 0
K3_CB = K3_AL + 1024
K3_OC = K3_CB + 4096
K3_CX = K3_OC + 2304
K3_WUV = 10240
K3_WO = K3_WUV + 32768
K3_LDS = K3_WO + 65536
def gen_k3(a):
    a.label('k3_kernel')
    prologue(a, 256, 'K3_EXIT')
    a('s_load_dwordx4 s[4:7], s[0:1], 32')
    a('s_load_dwordx2 s[8:9], s[0:1], 96')
    wave_lane(a, 3, 2)
    a('s_waitcnt lgkmcnt(0)')
    srd(a, 12, 4, 4194304)
    srd(a, 16, 6, 4194304)
    srd(a, 20, 8, 65536, WS_STATS)
    srd(a, 24, 8, 8388608, WS_OPART)
    srd(a, 28, 8, 2097152, WS_ATTP)
    a('s_lshr_b32 s44, s2, 3')
    a('s_lshr_b32 s45, s2, 1')
    a('s_and_b32 s45, s45, 3')
    a('s_and_b32 s46, s2, 1')
    a('v_lshlrev_b32 v3, 3, v0')
    a('s_lshl_b32 s41, s44, 11')
    a('buffer_load_dwordx2 v[10:11], v3, s[20:23], s41 offen')
    a('v_and_b32 v3, 127, v0')
    a('v_lshrrev_b32 v4, 4, v3')
    a('v_and_b32 v5, 15, v3')
    a('v_lshlrev_b32 v6, 20, v4')
    a('v_lshl_add_u32 v6, v5, 4, v6')
    a('s_lshr_b32 s47, s3, 1')
    a('s_lshl_b32 s41, s47, 19')
    a('s_lshl_b32 s42, s44, 10')
    a('s_add_u32 s41, s41, s42')
    a('s_lshl_b32 s42, s45, 8')
    a('s_add_u32 s41, s41, s42')
    for i in range(16):
        a(f'buffer_load_dwordx4 v[{64+4*i}:{67+4*i}], v6, s[24:27], s41 offen')
        a('s_add_u32 s41, s41, 32768')
    a('v_and_b32 v12, 15, v2')
    a('v_lshrrev_b32 v13, 4, v2')
    a('v_and_b32 v14, 7, v2')
    a('v_lshrrev_b32 v15, 2, v2')
    a('v_and_b32 v15, 3, v15')
    a('v_and_b32 v16, 3, v2')
    a('v_lshlrev_b32 v17, 1, v13')
    a('v_xor_b32 v17, v17, v12')
    a('v_lshlrev_b32 v17, 4, v17')
    a('v_lshl_add_u32 v17, v13, 13, v17')
    a('v_xor_b32 v18, 128, v17')
    a('s_lshl_b32 s41, s45, 20')
    a('s_lshl_b32 s42, s3, 18')
    a('s_add_u32 s41, s41, s42')
    a('s_lshl_b32 s42, s44, 8')
    a('s_add_u32 s41, s41, s42')
    a('s_lshl_b32 s43, s3, 13')
    a(f's_add_u32 s43, s43, {K3_WUV}')
    for i in range(8):
        a('s_mov_b32 m0, s43')
        a('s_add_u32 s43, s43, 1024')
        v = 18 if (i >> 2) & 1 else 17
        a(f'buffer_load_dwordx4 v{v}, s[12:15], s41 offen nt lds')
        a('s_add_u32 s41, s41, 32768')
    a('v_lshrrev_b32 v19, 5, v2')
    a('v_and_b32 v20, 31, v2')
    a('v_lshlrev_b32 v21, 1, v19')
    a('v_xor_b32 v21, v21, v20')
    a('v_lshlrev_b32 v21, 4, v21')
    a('v_lshl_add_u32 v21, v19, 10, v21')
    a('s_lshl_b32 s41, s44, 17')
    a('s_lshl_b32 s42, s3, 15')
    a('s_add_u32 s41, s41, s42')
    a('s_lshl_b32 s42, s46, 9')
    a('s_add_u32 s41, s41, s42')
    a('s_lshl_b32 s43, s3, 14')
    a(f's_add_u32 s43, s43, {K3_WO}')
    for i in range(16):
        x = ((2 * (i & 1)) | (((i >> 2) & 1) << 2)) << 1
        a(f'v_xor_b32 v22, {x << 4}, v21')
        a('s_mov_b32 m0, s43')
        a('s_add_u32 s43, s43, 1024')
        a('buffer_load_dwordx4 v22, s[16:19], s41 offen nt lds')
        a('s_add_u32 s41, s41, 2048')
    a('s_waitcnt vmcnt(40)')
    a('v_mov_b32 v23, v10')
    swz_reduce32(a, 23, 24, 'v_max_f32')
    a('v_sub_f32 v23, v10, v23')
    a('v_mul_f32 v23, 0x3fb8aa3b, v23')
    a('v_exp_f32 v23, v23')
    a('s_nop 0')
    a('v_mul_f32 v25, v23, v11')
    swz_reduce32(a, 25, 24, 'v_add_f32')
    a('v_rcp_f32 v25, v25')
    a('s_nop 0')
    a('v_mul_f32 v23, v23, v25')
    a('v_lshlrev_b32 v24, 2, v0')
    a(f'ds_write_b32 v24, v23 offset:{K3_AL}')
    a('s_waitcnt lgkmcnt(0)')
    a('s_barrier')
    a('v_lshlrev_b32 v24, 7, v4')
    a('s_lshl_b32 s41, s47, 6')
    a('v_add_u32 v24, s41, v24')
    for i in range(4):
        a(f'ds_read_b128 v[{32+4*i}:{35+4*i}], v24 offset:{K3_AL+16*i}')
    for r in range(48, 56):
        a(f'v_mov_b32 v{r}, 0')
    a('s_waitcnt vmcnt(24) lgkmcnt(0)')
    for i in range(16):
        for e in range(4):
            a(f'v_lshlrev_b32 v26, 16, v{64+4*i+e}')
            a(f'v_and_b32 v27, 0xffff0000, v{64+4*i+e}')
            a(f'v_fmac_f32 v{48+2*e}, v26, v{32+i}')
            a(f'v_fmac_f32 v{49+2*e}, v27, v{32+i}')
    a('v_lshlrev_b32 v24, 5, v3')
    a('s_cmp_eq_u32 s47, 0')
    a('s_cbranch_scc1 K3_NOWR')
    a(f'ds_write_b128 v24, v[48:51] offset:{K3_CB}')
    a(f'ds_write_b128 v24, v[52:55] offset:{K3_CB+16}')
    a.label('K3_NOWR')
    a('s_waitcnt lgkmcnt(0)')
    a('s_barrier')
    a('s_cmp_eq_u32 s47, 0')
    a('s_cbranch_scc0 K3_NORD')
    a(f'ds_read_b128 v[56:59], v24 offset:{K3_CB}')
    a(f'ds_read_b128 v[60:63], v24 offset:{K3_CB+16}')
    a('s_waitcnt lgkmcnt(0)')
    for e in range(8):
        a(f'v_add_f32 v{48+e}, v{48+e}, v{56+e}')
    for e in range(4):
        a(f'v_cvt_pk_bf16_f32 v{56+e}, v{48+2*e}, v{49+2*e}')
    a('s_mov_b32 s40, 288')
    a('v_mul_lo_u32 v24, v4, s40')
    a('v_lshl_add_u32 v24, v5, 4, v24')
    a(f'ds_write_b128 v24, v[56:59] offset:{K3_OC}')
    a.label('K3_NORD')
    a('s_waitcnt vmcnt(0) lgkmcnt(0)')
    a('s_barrier')
    a('s_mov_b32 s40, 288')
    a('v_mul_lo_u32 v24, v14, s40')
    a('v_lshl_add_u32 v25, v13, 4, v24')
    a('v_lshl_add_u32 v26, v13, 3, v24')
    for st in range(4):
        a(f'ds_read_b128 v[{32+4*st}:{35+4*st}], v25 offset:{K3_OC+st*64}')
    a('v_and_b32 v27, 1, v13')
    a('v_lshl_add_u32 v28, v27, 2, v15')
    a('v_lshlrev_b32 v28, 1, v28')
    a('v_lshrrev_b32 v29, 1, v13')
    a('v_lshlrev_b32 v29, 5, v29')
    a('v_lshl_add_u32 v29, v27, 4, v29')
    a('v_add_u32 v29, v29, v15')
    a('v_lshlrev_b32 v29, 8, v29')
    a('v_lshrrev_b32 v30, 1, v16')
    a('v_lshl_add_u32 v29, v30, 4, v29')
    a('v_and_b32 v30, 1, v16')
    a('v_lshl_add_u32 v29, v30, 3, v29')
    a('s_lshl_b32 s41, s3, 2')
    a('v_xor_b32 v30, s41, v28')
    a('v_lshl_add_u32 v48, v30, 4, v29')
    a('s_add_u32 s41, s41, 2')
    a('v_xor_b32 v30, s41, v28')
    a('v_lshl_add_u32 v49, v30, 4, v29')
    for st in range(4):
        off = (64 * (st & 1) + 4 * (st >> 1)) * 256
        for tl in range(2):
            r = 64 + 8 * st + 4 * tl
            a(f'ds_read_b64_tr_b16 v[{r}:{r+1}], v{48+tl} offset:{K3_WUV+off}')
            a(f'ds_read_b64_tr_b16 v[{r+2}:{r+3}], v{48+tl} offset:{K3_WUV+off+2048}')
    for r in range(56, 64):
        a(f'v_mov_b32 v{r}, 0')
    a('s_waitcnt lgkmcnt(0)')
    for st in range(4):
        for tl in range(2):
            r = 64 + 8 * st + 4 * tl
            a(f'v_mfma_f32_16x16x32_bf16 v[{56+4*tl}:{59+4*tl}], v[{r}:{r+3}], v[{32+4*st}:{35+4*st}], v[{56+4*tl}:{59+4*tl}]')
    a.nop(10)
    a('v_cvt_pk_bf16_f32 v32, v56, v57')
    a('v_cvt_pk_bf16_f32 v33, v58, v59')
    a('v_cvt_pk_bf16_f32 v34, v60, v61')
    a('v_cvt_pk_bf16_f32 v35, v62, v63')
    a('s_lshl_b32 s41, s3, 6')
    a('v_add_u32 v30, s41, v26')
    a(f'ds_write_b64 v30, v[32:33] offset:{K3_CX}')
    a(f'ds_write_b64 v30, v[34:35] offset:{K3_CX+32}')
    a('s_waitcnt lgkmcnt(0)')
    a('s_barrier')
    for st in range(4):
        a(f'ds_read_b128 v[{32+4*st}:{35+4*st}], v25 offset:{K3_CX+st*64}')
    a('v_lshl_add_u32 v29, v13, 3, v15')
    a('v_lshlrev_b32 v29, 9, v29')
    a('v_lshrrev_b32 v30, 1, v16')
    a('v_lshl_add_u32 v29, v30, 4, v29')
    a('v_and_b32 v30, 1, v16')
    a('v_lshl_add_u32 v29, v30, 3, v29')
    a(f'v_add_u32 v29, {K3_WO}, v29')
    a('v_lshrrev_b32 v28, 1, v28')
    a('s_lshl_b32 s41, s3, 2')
    for jj in range(4):
        a(f's_add_u32 s42, s41, {jj}')
        a('v_xor_b32 v30, s42, v28')
        a(f'v_lshl_add_u32 v{48+jj}, v30, 5, v29')
    for jj in range(4):
        for st in range(4):
            r = 64 + 16 * jj + 4 * st
            a(f'ds_read_b64_tr_b16 v[{r}:{r+1}], v{48+jj} offset:{st*16384}')
            a(f'ds_read_b64_tr_b16 v[{r+2}:{r+3}], v{48+jj} offset:{st*16384+2048}')
    for r in range(128, 144):
        a(f'v_mov_b32 v{r}, 0')
    a('s_waitcnt lgkmcnt(0)')
    for jj in range(4):
        for st in range(4):
            r = 64 + 16 * jj + 4 * st
            a(f'v_mfma_f32_16x16x32_bf16 v[{128+4*jj}:{131+4*jj}], v[{r}:{r+3}], v[{32+4*st}:{35+4*st}], v[{128+4*jj}:{131+4*jj}]')
    a.nop(10)
    a('v_lshlrev_b32 v30, 11, v14')
    a('v_lshl_add_u32 v30, v13, 4, v30')
    a('s_lshr_b32 s41, s2, 1')
    a('s_lshl_b32 s41, s41, 14')
    a('s_lshl_b32 s42, s46, 10')
    a('s_add_u32 s41, s41, s42')
    a('s_lshl_b32 s42, s3, 8')
    a('s_add_u32 s41, s41, s42')
    for jj in range(4):
        a(f'buffer_store_dwordx4 v[{128+4*jj}:{131+4*jj}], v30, s[28:31], s41 offen offset:{jj*64}')
    a.label('K3_EXIT')
    a('s_endpgm')

K4_LDS = 8192
def gen_k4(a):
    a.label('k4_kernel')
    prologue(a, 128, 'K4_EXIT')
    a('s_load_dwordx2 s[4:5], s[0:1], 0')
    a('s_load_dwordx2 s[6:7], s[0:1], 80')
    a('s_load_dwordx2 s[8:9], s[0:1], 96')
    a('s_waitcnt lgkmcnt(0)')
    srd(a, 12, 4, 8192)
    srd(a, 16, 6, 8192)
    srd(a, 20, 8, 2097152, WS_ATTP)
    srd(a, 24, 8, 43*16384, WS_FFNP)
    a('v_and_b32 v1, 7, v0')
    a('v_lshrrev_b32 v2, 3, v0')
    a('v_lshlrev_b32 v3, 14, v2')
    a('v_lshl_add_u32 v3, v1, 4, v3')
    a('s_lshl_b32 s41, s2, 7')
    for i in range(4):
        a(f'buffer_load_dwordx4 v[{8+4*i}:{11+4*i}], v3, s[20:23], s41 offen')
        a('s_add_u32 s41, s41, 524288')
    a('s_lshl_b32 s41, s2, 7')
    a('buffer_load_dwordx4 v[24:27], v3, s[24:27], s41 offen')
    a('s_add_u32 s41, s41, 524288')
    a('buffer_load_dwordx4 v[28:31], v3, s[24:27], s41 offen')
    a('v_lshlrev_b32 v4, 1, v0')
    a('s_lshl_b32 s42, s2, 6')
    a('buffer_load_ushort v5, v4, s[12:15], s42 offen')
    a('s_waitcnt vmcnt(1)')
    for e in range(4):
        a(f'v_add_f32 v{8+e}, v{8+e}, v{12+e}')
        a(f'v_add_f32 v{16+e}, v{16+e}, v{20+e}')
        a(f'v_add_f32 v{8+e}, v{8+e}, v{16+e}')
        a(f'v_add_f32 v{24+e}, v{24+e}, v{28+e}')
    a('v_lshlrev_b32 v6, 4, v0')
    a('ds_write_b128 v6, v[8:11]')
    a('ds_write_b128 v6, v[24:27] offset:4096')
    a('s_waitcnt lgkmcnt(0)')
    a('s_barrier')
    a('v_cmp_gt_u32 vcc, 32, v0')
    a('s_and_saveexec_b64 s[28:29], vcc')
    a('s_cbranch_execz K4_EXIT')
    a('v_lshlrev_b32 v6, 2, v0')
    for g in range(32):
        a(f'ds_read_b32 v{32+g}, v6 offset:{g*128}')
        a(f'ds_read_b32 v{64+g}, v6 offset:{4096+g*128}')
    a('s_waitcnt lgkmcnt(0)')
    for base in (32, 64):
        for step in (16, 8, 4, 2, 1):
            for i in range(step):
                a(f'v_add_f32 v{base+i}, v{base+i}, v{base+i+step}')
    a('s_waitcnt vmcnt(0)')
    a('v_lshlrev_b32 v5, 16, v5')
    bf16_round_pair(a, 32, 64, 32, 64, 7)
    a('v_add_f32 v32, v32, v5')
    bf16_round_pair(a, 32, 33, 32, 32, 7)
    a('v_add_f32 v32, v32, v64')
    a('v_cvt_pk_bf16_f32 v32, v32, v32')
    a('buffer_store_short v32, v4, s[16:19], s42 offen')
    a.label('K4_EXIT')
    a('s_endpgm')

def kd(name, vgpr=256, sgpr=102):
    return f'''.amdhsa_kernel {name}
  .amdhsa_next_free_vgpr {vgpr}
  .amdhsa_next_free_sgpr {sgpr}
  .amdhsa_accum_offset {(vgpr+3)//4*4}
  .amdhsa_group_segment_fixed_size 0
  .amdhsa_kernarg_size 104
  .amdhsa_user_sgpr_count 2
  .amdhsa_user_sgpr_kernarg_segment_ptr 1
  .amdhsa_system_sgpr_workgroup_id_x 1
.end_amdhsa_kernel
'''

def main(out):
    a = Asm()
    a.raw(HDR.rstrip('\n'))
    a.raw(f'; @launch kernel=k1_kernel grid=(75,1,1) block=(256,1,1) lds={K1_LDS}')
    a.raw(f'; @launch kernel=k2_kernel grid=(256,1,1) block=(256,1,1) lds={K2_LDS}')
    a.raw(f'; @launch kernel=k3_kernel grid=(256,1,1) block=(256,1,1) lds={K3_LDS}')
    a.raw(f'; @launch kernel=k4_kernel grid=(128,1,1) block=(256,1,1) lds={K4_LDS}')
    a.raw('.amdgcn_target "amdgcn-amd-amdhsa--gfx950"')
    a.raw('.text')
    for name, g in (('k1_kernel', gen_k1), ('k2_kernel', gen_k2), ('k3_kernel', gen_k3), ('k4_kernel', gen_k4)):
        a.raw(f'.globl {name}')
        a.raw('.p2align 8')
        a.raw(f'.type {name},@function')
        g(a)
    a.raw('.section .rodata,"a"')
    for name in ('k1_kernel', 'k2_kernel', 'k3_kernel', 'k4_kernel'):
        a.raw('.p2align 6')
        a.raw(kd(name))
    open(out, 'w').write('\n'.join(a.L) + '\n')

if __name__ == '__main__':
    if len(sys.argv) > 2 and sys.argv[2] == 'stamp': STAMP = True
    main(sys.argv[1] if len(sys.argv) > 1 else 'parallel_sum__compressed_kv_cla__geglu_ffn__decode.s')
```

```python
import sys, math, struct
sys.path.insert(0, 'work')
from gen1 import Asm, srd, HDR, kd, bf16_round_pair, swz_reduce32, fsw

def f2u(f): return struct.unpack('<I', struct.pack('<f', f))[0]

WS_QPART = 0x0
WS_QABS = 0x80000
WS_FFNP = 0xC0000
WS_STATS = 0x180000
WS_CTXP = 0x190000
WS_ATTP = 0x290000
WS_FFNO = 0x310000
WS_OPART = 0x400000
WS_STAMP = 0xF000000
POLL_LIMIT = 200000

STAMP = False
def stamp(a, i):
    if STAMP:
        a(f's_memtime s[{84+2*i}:{85+2*i}]')
        a('s_waitcnt lgkmcnt(0)')
def stamp_flush(a, n, ws, kidx):
    if not STAMP: return
    srd(a, 76, ws, 1 << 20, WS_STAMP + kidx * 65536)
    a('s_lshl_b32 s80, s2, 7')
    a('v_mov_b32 v250, 0')
    for i in range(n):
        a(f'v_mov_b32 v251, s{84+2*i}')
        a(f'buffer_store_dword v251, v250, s[76:79], s80 offen offset:{4*i}')

def wave_lane(a, s_wave, v_lane):
    a('v_lshrrev_b32 v1, 6, v0')
    a(f'v_and_b32 v{v_lane}, 63, v0')
    a(f'v_readfirstlane_b32 s{s_wave}, v1')
    a('s_nop 3')

def lane_decomp(a):
    a('v_and_b32 v3, 15, v2')
    a('v_lshrrev_b32 v4, 4, v2')
    a('v_and_b32 v5, 7, v2')
    a('v_lshrrev_b32 v6, 2, v2')
    a('v_and_b32 v6, 3, v6')
    a('v_and_b32 v7, 3, v2')

def tr_base_p128(a, dst, tmp, base, s_tile2):
    a(f'v_lshrrev_b32 v{tmp}, 1, v6')
    a(f'v_and_b32 v{dst}, 1, v4')
    a(f'v_lshl_add_u32 v{tmp}, v{dst}, 1, v{tmp}')
    a(f'v_lshlrev_b32 v{tmp}, 1, v{tmp}')
    a(f'v_lshrrev_b32 v{dst}, 1, v7')
    a(f'v_add_u32 v{dst}, s{s_tile2}, v{dst}')
    a(f'v_xor_b32 v{tmp}, v{tmp}, v{dst}')
    a(f'v_lshl_add_u32 v{dst}, v4, 3, v6')
    a(f'v_lshlrev_b32 v{dst}, 7, v{dst}')
    a(f'v_lshl_add_u32 v{dst}, v{tmp}, 4, v{dst}')
    a(f'v_and_b32 v{tmp}, 1, v7')
    a(f'v_lshl_add_u32 v{dst}, v{tmp}, 3, v{dst}')
    a(f'v_add_u32 v{dst}, {base}, v{dst}')

def tr_base_p256(a, dst, tmp, base, s_tile2):
    a(f'v_and_b32 v{tmp}, 1, v4')
    a(f'v_lshl_add_u32 v{tmp}, v{tmp}, 2, v6')
    a(f'v_lshlrev_b32 v{tmp}, 1, v{tmp}')
    a(f'v_xor_b32 v{tmp}, s{s_tile2}, v{tmp}')
    a(f'v_lshrrev_b32 v{dst}, 1, v7')
    a(f'v_add_u32 v{tmp}, v{tmp}, v{dst}')
    a(f'v_lshl_add_u32 v{dst}, v4, 3, v6')
    a(f'v_lshlrev_b32 v{dst}, 8, v{dst}')
    a(f'v_lshl_add_u32 v{dst}, v{tmp}, 4, v{dst}')
    a(f'v_and_b32 v{tmp}, 1, v7')
    a(f'v_lshl_add_u32 v{dst}, v{tmp}, 3, v{dst}')
    a(f'v_add_u32 v{dst}, {base}, v{dst}')

def ln_issue(a, srd_x, s_wave, t):
    a(f'v_lshrrev_b32 v{t}, 5, v2')
    a(f's_lshl_b32 s70, s{s_wave}, 1')
    a(f'v_add_u32 v{t}, s70, v{t}')
    a(f'v_and_b32 v{t+1}, 31, v2')
    a(f'v_lshlrev_b32 v{t+2}, 5, v{t+1}')
    a(f'v_lshl_add_u32 v{t+2}, v{t}, 10, v{t+2}')
    a(f'buffer_load_dwordx4 v[{t+4}:{t+7}], v{t+2}, s[{srd_x}:{srd_x+3}], 0 offen')
    a(f'buffer_load_dwordx4 v[{t+8}:{t+11}], v{t+2}, s[{srd_x}:{srd_x+3}], 0 offen offset:16')

def ln_compute(a, t, vm):
    a(f's_waitcnt vmcnt({vm})')
    for i in range(8):
        a(f'v_lshlrev_b32 v{t+12+2*i}, 16, v{t+4+i}')
        a(f'v_and_b32 v{t+12+2*i+1}, 0xffff0000, v{t+4+i}')
    X = t + 12; S = t + 28; TMP = t + 29; M = t + 30; V = t + 31; R = t + 32
    a(f'v_add_f32 v{S}, v{X}, v{X+1}')
    for i in range(2, 16):
        a(f'v_add_f32 v{S}, v{S}, v{X+i}')
    swz_reduce32(a, S, TMP, 'v_add_f32')
    a(f'v_mul_f32 v{M}, 0x3b000000, v{S}')
    a(f'v_sub_f32 v{TMP}, v{X}, v{M}')
    a(f'v_mul_f32 v{V}, v{TMP}, v{TMP}')
    for i in range(1, 16):
        a(f'v_sub_f32 v{TMP}, v{X+i}, v{M}')
        a(f'v_fmac_f32 v{V}, v{TMP}, v{TMP}')
    swz_reduce32(a, V, TMP, 'v_add_f32')
    a(f'v_mul_f32 v{V}, 0x3b000000, v{V}')
    bf16_round_pair(a, M, V, M, V, TMP)
    a(f'v_add_f32 v{V}, 0x3727c5ac, v{V}')
    bf16_round_pair(a, V, TMP, V, V, S)
    a(f'v_sqrt_f32 v{V}, v{V}')
    a('s_nop 0')
    bf16_round_pair(a, V, TMP, V, V, S)
    a(f'v_rcp_f32 v{R}, v{V}')
    a('s_nop 0')
    for i in range(8):
        a(f'v_sub_f32 v{X+2*i}, v{X+2*i}, v{M}')
        a(f'v_sub_f32 v{X+2*i+1}, v{X+2*i+1}, v{M}')
        bf16_round_pair(a, X+2*i, X+2*i+1, X+2*i, X+2*i+1, TMP)
    for i in range(16):
        a(f'v_mul_f32 v{TMP}, v{X+i}, v{R}')
        a(f'v_fma_f32 v{S}, -v{TMP}, v{V}, v{X+i}')
        a(f'v_fma_f32 v{X+i}, v{S}, v{R}, v{TMP}')
    for i in range(8):
        a(f'v_cvt_pk_bf16_f32 v{t+4+i}, v{X+2*i}, v{X+2*i+1}')

def atomic_arrive(a, srd_dbg, v_off, v_one):
    a('s_mov_b64 exec, 1')
    a(f'buffer_atomic_add v{v_one}, v{v_off}, s[{srd_dbg}:{srd_dbg+3}], 0 offen sc1')
    a('s_mov_b64 exec, -1')

def poll(a, name, srd_dbg, v_off, v_tmp, target):
    a('s_mov_b32 s72, 0')
    a.label(f'{name}_LOOP')
    a(f'buffer_load_dword v{v_tmp}, v{v_off}, s[{srd_dbg}:{srd_dbg+3}], 0 offen sc1')
    a('s_waitcnt vmcnt(0)')
    a(f'v_cmp_le_u32 vcc, {target}, v{v_tmp}')
    a('s_nop 3')
    a('s_cmp_eq_u64 vcc, exec')
    a(f's_cbranch_scc1 {name}_DONE')
    a('s_add_u32 s72, s72, 1')
    a(f's_cmp_lt_u32 s72, {POLL_LIMIT}')
    a(f's_cbranch_scc0 {name}_DONE')
    a('s_sleep 1')
    a(f's_branch {name}_LOOP')
    a.label(f'{name}_DONE')

def gelu4(a, regs, tmp):
    c1 = -2.0 * math.log2(math.e) * math.sqrt(2.0 / math.pi)
    a(f's_mov_b32 s70, {f2u(0.044715):#x}')
    a(f's_mov_b32 s71, {f2u(c1):#x}')
    for r in regs:
        a(f'v_mul_f32 v{tmp}, v{r}, v{r}')
        a(f'v_mul_f32 v{tmp}, s70, v{tmp}')
        a(f'v_fma_f32 v{tmp}, v{tmp}, v{r}, v{r}')
        a(f'v_mul_f32 v{tmp}, s71, v{tmp}')
        a(f'v_exp_f32 v{tmp}, v{tmp}')
        a('s_nop 0')
        a(f'v_add_f32 v{tmp}, 1.0, v{tmp}')
        a(f'v_rcp_f32 v{tmp}, v{tmp}')
        a('s_nop 0')
        a(f'v_mul_f32 v{r}, v{r}, v{tmp}')

K1_WQT = 0
K1_FT = 16384
K1_XNA = 32768
K1_XNF = K1_XNA + 2304
K1_LDS = K1_XNF + 1280

def gen_k1(a):
    a.label('k1_kernel')
    a('s_cmp_ge_u32 s2, 256')
    a('s_cbranch_scc1 K1_EXIT')
    a('s_load_dwordx2 s[4:5], s[0:1], 0')
    a('s_load_dwordx2 s[8:9], s[0:1], 16')
    a('s_load_dwordx4 s[12:15], s[0:1], 56')
    a('s_load_dwordx2 s[18:19], s[0:1], 96')
    wave_lane(a, 3, 2)
    lane_decomp(a)
    a('s_lshr_b32 s73, s2, 3')
    a('s_lshr_b32 s74, s2, 1')
    a('s_and_b32 s74, s74, 3')
    a('s_and_b32 s75, s2, 1')
    a('s_and_b32 s68, s2, 7')
    a('v_lshrrev_b32 v8, 3, v2')
    a('v_lshrrev_b32 v9, 1, v8')
    a('v_and_b32 v9, 1, v9')
    a('v_lshlrev_b32 v9, 1, v9')
    a('v_xor_b32 v9, v9, v5')
    a('v_lshlrev_b32 v9, 4, v9')
    a('v_lshl_add_u32 v10, v8, 13, v9')
    a('v_xor_b32 v11, 64, v10')
    a('s_mov_b32 s70, 2752')
    a('v_mul_lo_u32 v12, v8, s70')
    a('v_add_u32 v13, v12, v9')
    a('v_xor_b32 v9, 64, v9')
    a('v_add_u32 v12, v12, v9')
    a('s_waitcnt lgkmcnt(0)')
    srd(a, 20, 4, 8192)
    srd(a, 28, 8, 4194304)
    T = 60
    ln_issue(a, 20, 3, T)
    a('s_lshl_b32 s70, s74, 20')
    a('s_lshl_b32 s71, s3, 18')
    a('s_add_u32 s70, s70, s71')
    a('s_lshl_b32 s71, s73, 8')
    a('s_add_u32 s70, s70, s71')
    a('s_lshl_b32 s71, s75, 7')
    a('s_add_u32 s70, s70, s71')
    a('s_lshl_b32 s71, s3, 12')
    for i in range(4):
        a('s_mov_b32 m0, s71')
        a('s_add_u32 s71, s71, 1024')
        a(f'buffer_load_dwordx4 v{10 + (i & 1)}, s[28:31], s70 offen nt lds')
        a('s_add_u32 s70, s70, 65536')
    a('s_cmp_ge_u32 s3, 2')
    a('s_cselect_b32 s76, s14, s12')
    a('s_cselect_b32 s77, s15, s13')
    a('s_and_b32 s77, s77, 0xffff')
    a('s_mov_b32 s78, 1409024')
    a('s_mov_b32 s79, 0x00020000')
    a('s_and_b32 s70, s3, 1')
    a('s_lshl_b32 s70, s70, 5')
    a('s_lshl_b32 s71, s68, 6')
    a('s_add_u32 s70, s70, s71')
    a('s_mul_i32 s70, s70, 2752')
    a('s_lshl_b32 s71, s73, 7')
    a('s_add_u32 s70, s70, s71')
    a('s_cmp_ge_u32 s2, 176')
    a('s_cselect_b32 s70, 0x40000000, s70')
    a('s_lshl_b32 s71, s3, 12')
    a(f's_add_u32 s71, s71, {K1_FT}')
    for i in range(4):
        a('s_mov_b32 m0, s71')
        a('s_add_u32 s71, s71, 1024')
        a(f'buffer_load_dwordx4 v{13 - (i & 1)}, s[76:79], s70 offen nt lds')
        a('s_add_u32 s70, s70, 22016')
    srd(a, 48, 18, 524288, WS_QPART)
    srd(a, 56, 18, 0xB0000, WS_FFNP)
    ln_compute(a, T, 8)
    a('s_mov_b32 s70, 288')
    a(f'v_mul_lo_u32 v14, v{T}, s70')
    a(f'v_and_b32 v15, 7, v{T+1}')
    a('v_lshl_add_u32 v14, v15, 5, v14')
    a(f'v_lshrrev_b32 v15, 3, v{T+1}')
    a('v_cmp_eq_u32 vcc, s74, v15')
    a('s_and_saveexec_b64 s[80:81], vcc')
    a(f'ds_write_b128 v14, v[{T+4}:{T+7}] offset:{K1_XNA}')
    a(f'ds_write_b128 v14, v[{T+8}:{T+11}] offset:{K1_XNA+16}')
    a('s_mov_b64 exec, s[80:81]')
    a('s_mov_b32 s70, 160')
    a(f'v_mul_lo_u32 v14, v{T}, s70')
    a(f'v_and_b32 v15, 3, v{T+1}')
    a('v_lshl_add_u32 v14, v15, 5, v14')
    a(f'v_lshrrev_b32 v15, 2, v{T+1}')
    a('v_cmp_eq_u32 vcc, s68, v15')
    a('s_and_saveexec_b64 s[80:81], vcc')
    a(f'ds_write_b128 v14, v[{T+4}:{T+7}] offset:{K1_XNF}')
    a(f'ds_write_b128 v14, v[{T+8}:{T+11}] offset:{K1_XNF+16}')
    a('s_mov_b64 exec, s[80:81]')
    a('s_mov_b32 s70, 288')
    a('v_mul_lo_u32 v15, v5, s70')
    a('v_lshl_add_u32 v15, v4, 4, v15')
    a('s_mov_b32 s70, 160')
    a('v_mul_lo_u32 v17, v5, s70')
    a('v_lshl_add_u32 v17, v4, 4, v17')
    a('s_lshl_b32 s69, s3, 1')
    tr_base_p128(a, 18, 19, 0, 69)
    for r in range(24, 36):
        a(f'v_mov_b32 v{r}, 0')
    a('v_lshlrev_b32 v19, 9, v5')
    a('v_lshl_add_u32 v19, v4, 4, v19')
    a('s_lshl_b32 s82, s73, 14')
    a('s_lshl_b32 s71, s74, 12')
    a('s_add_u32 s82, s82, s71')
    a('s_lshl_b32 s71, s75, 8')
    a('s_add_u32 s82, s82, s71')
    a('s_lshl_b32 s71, s3, 6')
    a('s_add_u32 s82, s82, s71')
    a('s_mov_b32 s70, 5632')
    a('v_mul_lo_u32 v20, v5, s70')
    a('v_lshl_add_u32 v20, v4, 4, v20')
    a('s_mul_i32 s83, s68, 45056')
    a('s_lshl_b32 s71, s73, 8')
    a('s_add_u32 s83, s83, s71')
    a('s_lshl_b32 s71, s3, 6')
    a('s_add_u32 s83, s83, s71')
    a('s_cmp_ge_u32 s2, 176')
    a('s_cselect_b32 s83, 0x40000000, s83')
    a('s_waitcnt vmcnt(4) lgkmcnt(0)')
    a('s_barrier')
    for ks in range(4):
        a(f'ds_read_b128 v[{36+8*ks}:{39+8*ks}], v15 offset:{K1_XNA+ks*64}')
        a(f'ds_read_b64_tr_b16 v[{40+8*ks}:{41+8*ks}], v18 offset:{K1_WQT+ks*4096}')
        a(f'ds_read_b64_tr_b16 v[{42+8*ks}:{43+8*ks}], v18 offset:{K1_WQT+ks*4096+512}')
    for ks in range(4):
        a(f's_waitcnt lgkmcnt({12-3*(ks+1)})')
        a(f'v_mfma_f32_16x16x32_bf16 v[24:27], v[{40+8*ks}:{43+8*ks}], v[{36+8*ks}:{39+8*ks}], v[24:27]')
    a('s_waitcnt vmcnt(0)')
    a.nop(8)
    a('buffer_store_dwordx4 v[24:27], v19, s[48:51], s82 offen')
    a('s_barrier')
    for ks in range(2):
        a(f'ds_read_b128 v[{36+4*ks}:{39+4*ks}], v17 offset:{K1_XNF+ks*64}')
    for mat in range(2):
        for ks in range(2):
            r = 44 + 8 * mat + 4 * ks
            a(f'ds_read_b64_tr_b16 v[{r}:{r+1}], v18 offset:{K1_FT+mat*8192+ks*4096}')
            a(f'ds_read_b64_tr_b16 v[{r+2}:{r+3}], v18 offset:{K1_FT+mat*8192+ks*4096+512}')
    a('s_waitcnt lgkmcnt(0)')
    for mat in range(2):
        for ks in range(2):
            r = 44 + 8 * mat + 4 * ks
            a(f'v_mfma_f32_16x16x32_bf16 v[{28+4*mat}:{31+4*mat}], v[{r}:{r+3}], v[{36+4*ks}:{39+4*ks}], v[{28+4*mat}:{31+4*mat}]')
    a.nop(10)
    a('buffer_store_dwordx4 v[28:31], v20, s[56:59], s83 offen')
    a('s_add_u32 s83, s83, 360448')
    a('buffer_store_dwordx4 v[32:35], v20, s[56:59], s83 offen')
    a.label('K1_EXIT')
    a('s_endpgm')

K2_QB = 0
K2_FS = 2304
K2_HB = K2_FS + 4096
K2_WD = 9216
K2_LDS = K2_WD + 8192
def gen_k2(a):
    a.label('k2_kernel')
    a('s_cmp_ge_u32 s2, 256')
    a('s_cbranch_scc1 K2_EXIT')
    a('s_load_dwordx2 s[10:11], s[0:1], 24')
    a('s_load_dwordx2 s[8:9], s[0:1], 72')
    a('s_load_dwordx2 s[18:19], s[0:1], 96')
    wave_lane(a, 3, 2)
    lane_decomp(a)
    a('s_lshr_b32 s73, s2, 3')
    a('s_and_b32 s68, s2, 7')
    a('s_lshr_b32 s74, s2, 2')
    a('s_and_b32 s75, s2, 3')
    a('v_lshrrev_b32 v22, 5, v0')
    a('v_and_b32 v23, 31, v0')
    a('v_lshlrev_b32 v19, 9, v22')
    a('v_lshl_add_u32 v19, v23, 4, v19')
    a('v_lshlrev_b32 v12, 13, v3')
    a('v_lshl_add_u32 v12, v4, 4, v12')
    a('v_lshrrev_b32 v8, 3, v2')
    a('s_waitcnt lgkmcnt(0)')
    srd(a, 48, 18, 524288, WS_QPART)
    srd(a, 32, 10, 4194304)
    a('s_lshl_b32 s70, s73, 14')
    for m in range(4):
        a(f'buffer_load_dwordx4 v[{36+4*m}:{39+4*m}], v19, s[48:51], s70 offen')
        a('s_add_u32 s70, s70, 4096')
    a('s_lshl_b32 s70, s68, 19')
    a('s_lshl_b32 s71, s3, 17')
    a('s_add_u32 s70, s70, s71')
    a('s_lshl_b32 s71, s73, 8')
    a('s_add_u32 s70, s70, s71')
    for st in range(4):
        a(f'buffer_load_dwordx4 v[{104+4*st}:{107+4*st}], v12, s[32:35], s70 offen offset:{st*64} nt')
    srd(a, 40, 18, 0xB0000, WS_FFNP)
    srd(a, 28, 8, 1409024)
    a('s_mov_b32 s70, 5632')
    a('v_mul_lo_u32 v18, v8, s70')
    a('v_lshl_add_u32 v18, v5, 4, v18')
    a('s_and_b32 s70, s3, 1')
    a('s_mul_i32 s70, s70, 360448')
    a('s_lshr_b32 s71, s3, 1')
    a('s_mul_i32 s71, s71, 180224')
    a('s_add_u32 s70, s70, s71')
    a('s_lshl_b32 s71, s74, 7')
    a('s_add_u32 s70, s70, s71')
    a('s_cmp_ge_u32 s2, 172')
    a('s_cselect_b32 s70, 0x40000000, s70')
    for i in range(4):
        a(f'buffer_load_dwordx4 v[{120+4*i}:{123+4*i}], v18, s[40:43], s70 offen')
        a('s_add_u32 s70, s70, 45056')
    a('v_lshlrev_b32 v13, 1, v4')
    a('v_xor_b32 v13, v13, v3')
    a('v_lshlrev_b32 v13, 4, v13')
    a('v_lshl_add_u32 v17, v4, 10, v13')
    a('s_and_b32 s70, s3, 1')
    a('s_lshl_b32 s70, s70, 7')
    a('v_xor_b32 v17, s70, v17')
    a('s_lshl_b32 s70, s74, 15')
    a('s_lshl_b32 s71, s3, 13')
    a('s_add_u32 s70, s70, s71')
    a('s_lshl_b32 s71, s75, 8')
    a('s_add_u32 s70, s70, s71')
    a('s_cmp_ge_u32 s2, 172')
    a('s_cselect_b32 s70, 0x40000000, s70')
    a('s_lshl_b32 s71, s3, 11')
    a(f's_add_u32 s71, s71, {K2_WD}')
    for i in range(2):
        a('s_mov_b32 m0, s71')
        a('s_add_u32 s71, s71, 1024')
        a('buffer_load_dwordx4 v17, s[28:31], s70 offen nt lds')
        a('s_add_u32 s70, s70, 4096')
    srd(a, 52, 18, 262144, WS_QABS)
    srd(a, 56, 18, 43 * 16384, WS_FFNO)
    a('s_mov_b32 s70, 288')
    a('v_mul_lo_u32 v22, v22, s70')
    a('v_lshl_add_u32 v22, v23, 3, v22')
    a('v_mul_lo_u32 v16, v5, s70')
    a('v_lshl_add_u32 v16, v4, 4, v16')
    a('s_lshl_b32 s69, s3, 2')
    tr_base_p256(a, 26, 28, 0, 69)
    a('s_add_u32 s69, s69, 2')
    tr_base_p256(a, 27, 28, 0, 69)
    for r in range(24, 28):
        pass
    a('s_waitcnt vmcnt(10)')
    for e in range(4):
        a(f'v_add_f32 v{36+e}, v{36+e}, v{40+e}')
        a(f'v_add_f32 v{44+e}, v{44+e}, v{48+e}')
        a(f'v_add_f32 v{36+e}, v{36+e}, v{44+e}')
    a('v_cvt_pk_bf16_f32 v40, v36, v37')
    a('v_cvt_pk_bf16_f32 v41, v38, v39')
    a(f'ds_write_b64 v22, v[40:41] offset:{K2_QB}')
    a('s_waitcnt lgkmcnt(0)')
    a('s_barrier')
    for st in range(4):
        a(f'ds_read_b128 v[{36+4*st}:{39+4*st}], v16 offset:{K2_QB+st*64}')
    for r in range(56, 60):
        a(f'v_mov_b32 v{r}, 0')
    a('v_lshlrev_b32 v19, 15, v5')
    a('v_lshl_add_u32 v19, v4, 3, v19')
    a('s_lshl_b32 s70, s73, 10')
    a('s_lshl_b32 s71, s68, 7')
    a('s_add_u32 s70, s70, s71')
    a('s_lshl_b32 s71, s3, 5')
    a('s_add_u32 s70, s70, s71')
    a('s_waitcnt vmcnt(6) lgkmcnt(0)')
    for st in range(4):
        a(f'v_mfma_f32_16x16x32_bf16 v[56:59], v[{104+4*st}:{107+4*st}], v[{36+4*st}:{39+4*st}], v[56:59]')
    a.nop(10)
    a('v_cvt_pk_bf16_f32 v60, v56, v57')
    a('v_cvt_pk_bf16_f32 v61, v58, v59')
    a('buffer_store_dwordx2 v[60:61], v19, s[52:55], s70 offen')
    a('s_waitcnt vmcnt(3)')
    for e in range(4):
        a(f'v_add_f32 v{120+e}, v{120+e}, v{124+e}')
        a(f'v_add_f32 v{128+e}, v{128+e}, v{132+e}')
        a(f'v_add_f32 v{120+e}, v{120+e}, v{128+e}')
    a('v_lshlrev_b32 v22, 4, v0')
    a(f'ds_write_b128 v22, v[120:123] offset:{K2_FS}')
    a('s_waitcnt lgkmcnt(0)')
    a('s_barrier')
    a('s_cmp_lg_u32 s3, 0')
    a('s_cbranch_scc1 K2_NOACT')
    a(f'ds_read_b128 v[96:99], v22 offset:{K2_FS}')
    a(f'ds_read_b128 v[100:103], v22 offset:{K2_FS+1024}')
    a(f'ds_read_b128 v[104:107], v22 offset:{K2_FS+2048}')
    a(f'ds_read_b128 v[108:111], v22 offset:{K2_FS+3072}')
    a('s_waitcnt lgkmcnt(0)')
    for e in range(4):
        a(f'v_add_f32 v{96+e}, v{96+e}, v{104+e}')
        a(f'v_add_f32 v{100+e}, v{100+e}, v{108+e}')
    bf16_round_pair(a, 96, 97, 96, 97, 23)
    bf16_round_pair(a, 98, 99, 98, 99, 23)
    bf16_round_pair(a, 100, 101, 100, 101, 23)
    bf16_round_pair(a, 102, 103, 102, 103, 23)
    gelu4(a, [96, 97, 98, 99], 23)
    bf16_round_pair(a, 96, 97, 96, 97, 23)
    bf16_round_pair(a, 98, 99, 98, 99, 23)
    for e in range(4):
        a(f'v_mul_f32 v{96+e}, v{96+e}, v{100+e}')
    a('v_cvt_pk_bf16_f32 v104, v96, v97')
    a('v_cvt_pk_bf16_f32 v105, v98, v99')
    a('s_mov_b32 s70, 288')
    a('v_mul_lo_u32 v22, v8, s70')
    a('v_lshl_add_u32 v22, v5, 3, v22')
    a(f'ds_write_b64 v22, v[104:105] offset:{K2_HB}')
    a.label('K2_NOACT')
    a('s_waitcnt vmcnt(1) lgkmcnt(0)')
    a('s_barrier')
    a(f'ds_read_b128 v[32:35], v16 offset:{K2_HB}')
    for tl in range(2):
        r = 64 + 4 * tl
        a(f'ds_read_b64_tr_b16 v[{r}:{r+1}], v{26+tl} offset:{K2_WD}')
        a(f'ds_read_b64_tr_b16 v[{r+2}:{r+3}], v{26+tl} offset:{K2_WD+1024}')
    for r in range(72, 80):
        a(f'v_mov_b32 v{r}, 0')
    a('v_lshlrev_b32 v29, 11, v5')
    a('v_lshl_add_u32 v29, v4, 4, v29')
    a('s_lshl_b32 s70, s74, 14')
    a('s_lshl_b32 s71, s75, 9')
    a('s_add_u32 s70, s70, s71')
    a('s_lshl_b32 s71, s3, 7')
    a('s_add_u32 s70, s70, s71')
    a('s_cmp_ge_u32 s2, 172')
    a('s_cselect_b32 s70, 0x40000000, s70')
    a('s_waitcnt lgkmcnt(0)')
    for tl in range(2):
        r = 64 + 4 * tl
        a(f'v_mfma_f32_16x16x32_bf16 v[{72+4*tl}:{75+4*tl}], v[{r}:{r+3}], v[32:35], v[{72+4*tl}:{75+4*tl}]')
    a.nop(10)
    a('buffer_store_dwordx4 v[72:75], v29, s[56:59], s70 offen')
    a('buffer_store_dwordx4 v[76:79], v29, s[56:59], s70 offen offset:64')
    a.label('K2_EXIT')
    a('s_endpgm')

R0 = 131072
K3_P = R0
K3_ST = R0 + 8192
K3_LDS = 163840
def gen_k3(a):
    a.label('k3_kernel')
    a('s_cmp_ge_u32 s2, 256')
    a('s_cbranch_scc1 K3_EXIT')
    stamp(a, 0)
    a('s_load_dwordx2 s[6:7], s[0:1], 8')
    a('s_load_dwordx2 s[18:19], s[0:1], 96')
    wave_lane(a, 3, 2)
    a('v_lshlrev_b32 v8, 4, v2')
    a('s_waitcnt lgkmcnt(0)')
    srd(a, 52, 18, 262144, WS_QABS)
    srd(a, 24, 6, 33554432)
    a('s_lshr_b32 s69, s2, 5')
    a('s_lshl_b32 s70, s69, 15')
    a('s_lshl_b32 s71, s3, 13')
    a('s_add_u32 s70, s70, s71')
    a(f's_add_u32 s71, s71, {R0}')
    a('s_and_b32 s72, s3, 1')
    a('s_lshl_b32 s72, s72, 5')
    a('v_xor_b32 v9, s72, v8')
    for i in range(8):
        a(f'v_xor_b32 v4, {(((i & 3) << 2) | (i >> 2)) << 4}, v9')
        a('s_mov_b32 m0, s71')
        a('s_add_u32 s71, s71, 1024')
        a('buffer_load_dwordx4 v4, s[52:55], s70 offen lds')
        a('s_add_u32 s70, s70, 1024')
    a('s_lshl_b32 s70, s2, 17')
    a('s_lshl_b32 s71, s3, 15')
    a('s_add_u32 s70, s70, s71')
    for i in range(32):
        a(f'v_xor_b32 v4, {fsw(i & 15) << 4}, v8')
        a('s_mov_b32 m0, s71')
        a('s_add_u32 s71, s71, 1024')
        a(f'buffer_load_dwordx4 v4, s[24:27], s70 offen {CKV_POLICY} lds')
        a('s_add_u32 s70, s70, 1024')
    srd(a, 60, 18, 65536, WS_STATS)
    srd(a, 64, 18, 8388608, WS_OPART)
    a('v_and_b32 v5, 31, v2')
    a('v_lshrrev_b32 v6, 5, v2')
    a('v_and_b32 v9, 3, v5')
    a('v_lshlrev_b32 v9, 2, v9')
    a('v_lshrrev_b32 v10, 2, v5')
    a('v_and_b32 v10, 3, v10')
    a('v_or_b32 v9, v9, v10')
    a('v_xor_b32 v9, v9, v6')
    a('v_lshlrev_b32 v10, 10, v5')
    a('s_lshl_b32 s70, s3, 15')
    a('v_add_u32 v11, s70, v10')
    a(f'v_add_u32 v12, {R0}, v10')
    for e in range(8):
        a(f'v_xor_b32 v13, {2*e}, v9')
        a(f'v_lshl_add_u32 v{16+e}, v13, 4, v11')
        a(f'v_lshl_add_u32 v{24+e}, v13, 4, v12')
    for r in range(32, 48):
        a(f'v_mov_b32 v{r}, 0')
    for r in range(64+16, 128):
        a(f'v_mov_b32 v{r}, 0')
    a('v_lshrrev_b32 v14, 2, v2')
    a('v_and_b32 v14, 3, v14')
    a('v_and_b32 v15, 3, v2')
    a('v_lshrrev_b32 v3, 4, v2')
    a('v_and_b32 v3, 1, v3')
    a('v_lshrrev_b32 v7, 1, v15')
    a('v_lshl_add_u32 v7, v3, 1, v7')
    a('v_lshl_add_u32 v13, v6, 2, v14')
    a('v_lshlrev_b32 v13, 10, v13')
    a('s_lshl_b32 s70, s3, 8')
    a('v_add_u32 v13, s70, v13')
    a('v_and_b32 v3, 1, v15')
    a('v_lshl_add_u32 v13, v3, 3, v13')
    for sec in range(2):
        a(f'v_add_u32 v3, {2*sec}, v6')
        a('v_xor_b32 v3, v3, v7')
        for t in range(4):
            a(f'v_xor_b32 v4, {t}, v14')
            a('v_lshl_add_u32 v4, v4, 2, v3')
            a(f'v_lshl_add_u32 v{160+2*t+sec}, v4, 4, v13')
            if sec:
                a(f'v_add_u32 v{160+2*t+sec}, 8192, v{160+2*t+sec}')
    stamp(a, 1)
    a('s_waitcnt vmcnt(0)')
    a('s_barrier')
    stamp(a, 2)
    def rd(st):
        return [f'ds_read_b128 v[{48+4*(st&3)}:{51+4*(st&3)}], v{16+(st&7)} offset:{(st>>3)*256}',
                f'ds_read_b128 v[{64+4*(st&3)}:{67+4*(st&3)}], v{24+(st&7)} offset:{(st>>3)*256}']
    for st in range(3):
        for s in rd(st): a(s)
    for st in range(32):
        if st + 3 < 32:
            for s in rd(st + 3): a(s)
            a('s_waitcnt lgkmcnt(6)')
        else:
            a(f's_waitcnt lgkmcnt({2*(31-st)})')
        a(f'v_mfma_f32_32x32x16_bf16 v[32:47], v[{48+4*(st&3)}:{51+4*(st&3)}], v[{64+4*(st&3)}:{67+4*(st&3)}], v[32:47]')
    a('s_barrier')
    for r in range(64, 80):
        a(f'v_mov_b32 v{r}, 0')
    stamp(a, 3)
    a('s_mov_b32 s70, 0x3db504f3')
    for i in range(8):
        bf16_round_pair(a, 32+2*i, 33+2*i, 32+2*i, 33+2*i, 48)
        a(f'v_mul_f32 v{32+2*i}, s70, v{32+2*i}')
        a(f'v_mul_f32 v{33+2*i}, s70, v{33+2*i}')
        bf16_round_pair(a, 32+2*i, 33+2*i, 32+2*i, 33+2*i, 48)
    a('v_max3_f32 v48, v32, v33, v34')
    for i in range(35, 47, 2):
        a(f'v_max3_f32 v48, v48, v{i}, v{i+1}')
    a('v_max_f32 v48, v48, v47')
    a('v_mov_b32 v49, v48')
    a('s_nop 1')
    a('v_permlane32_swap_b32 v48, v49')
    a('v_max_f32 v48, v48, v49')
    a('v_lshlrev_b32 v11, 2, v5')
    a(f'v_add_u32 v11, {K3_ST}, v11')
    a('s_lshl_b32 s70, s3, 7')
    a('v_add_u32 v12, s70, v11')
    a('ds_write_b32 v12, v48')
    a('s_waitcnt lgkmcnt(0)')
    a('s_barrier')
    a('ds_read_b32 v48, v11')
    a('ds_read_b32 v49, v11 offset:128')
    a('ds_read_b32 v50, v11 offset:256')
    a('ds_read_b32 v51, v11 offset:384')
    a('s_waitcnt lgkmcnt(0)')
    a('v_max3_f32 v48, v48, v49, v50')
    a('v_max_f32 v48, v48, v51')
    a('s_mov_b32 s70, 0x3fb8aa3b')
    a('v_mul_f32 v49, s70, v48')
    for i in range(16):
        a(f'v_fma_f32 v{32+i}, v{32+i}, s70, -v49')
        a(f'v_exp_f32 v{32+i}, v{32+i}')
    a('s_nop 0')
    a('v_add_f32 v50, v32, v33')
    for i in range(2, 16):
        a(f'v_add_f32 v50, v50, v{32+i}')
    a('v_mov_b32 v51, v50')
    a('s_nop 1')
    a('v_permlane32_swap_b32 v50, v51')
    a('v_add_f32 v50, v50, v51')
    a('ds_write_b32 v12, v50 offset:512')
    for i in range(8):
        a(f'v_cvt_pk_bf16_f32 v{52+i}, v{32+2*i}, v{33+2*i}')
    a('s_lshl_b32 s70, s3, 11')
    a(f's_add_u32 s70, s70, {K3_P}')
    a('v_add_u32 v13, s70, v8')
    a('ds_write_b128 v13, v[52:55]')
    a('ds_write_b128 v13, v[56:59] offset:1024')
    a('s_waitcnt lgkmcnt(0)')
    a('s_barrier')
    stamp(a, 4)
    a('ds_read_b32 v50, v11 offset:512')
    a('ds_read_b32 v51, v11 offset:640')
    a('ds_read_b32 v52, v11 offset:768')
    a('ds_read_b32 v53, v11 offset:896')
    a(f'v_add_u32 v13, {K3_P}, v8')
    for u in range(8):
        a(f'ds_read_b128 v[{128+4*u}:{131+4*u}], v13 offset:{u*1024}')
    def trrd(u, t, buf):
        off = (u & 3) * 16384
        return [f'ds_read_b64_tr_b16 v[{buf}:{buf+1}], v{160+2*t} offset:{off}',
                f'ds_read_b64_tr_b16 v[{buf+2}:{buf+3}], v{161+2*t} offset:{off}']
    seq = [(u, t) for u in range(8) for t in range(4)]
    bufs = [168, 172, 176, 180]
    def issue(idx):
        u, t = seq[idx]
        if u == 4 and t == 0:
            for r in range(160, 168):
                a(f'v_add_u32 v{r}, 0x10000, v{r}')
        for s in trrd(u, t, bufs[idx & 3]):
            a(s)
    for idx in range(3):
        issue(idx)
    a('s_waitcnt lgkmcnt(6)')
    a('v_add_f32 v50, v50, v51')
    a('v_add_f32 v52, v52, v53')
    a('v_add_f32 v49, v50, v52')
    a('v_lshlrev_b32 v19, 11, v5')
    a('s_lshl_b32 s70, s2, 3')
    a('buffer_store_dwordx2 v[48:49], v19, s[60:63], s70 offen')
    for idx in range(32):
        u, t = seq[idx]
        if idx + 3 < 32:
            issue(idx + 3)
            a('s_waitcnt lgkmcnt(6)')
        else:
            a(f's_waitcnt lgkmcnt({2*(31-idx)})')
        b = bufs[idx & 3]
        a(f'v_mfma_f32_32x32x16_bf16 v[{64+16*t}:{79+16*t}], v[{b}:{b+3}], v[{128+4*u}:{131+4*u}], v[{64+16*t}:{79+16*t}]')
    a('s_barrier')
    stamp(a, 5)
    a('v_and_b32 v3, 7, v5')
    a('v_lshlrev_b32 v4, 3, v6')
    a('s_lshl_b32 s70, s3, 4')
    a('v_add_u32 v4, s70, v4')
    a('v_lshlrev_b32 v10, 10, v5')
    a.nop(6)
    for t in range(4):
        for i in range(8):
            a(f'v_cvt_pk_bf16_f32 v{128+8*t+i}, v{64+16*t+2*i}, v{65+16*t+2*i}')
        for i in range(2):
            a(f'v_xor_b32 v7, {2*t+i}, v3')
            a('v_add_u32 v7, v7, v4')
            a('v_lshl_add_u32 v7, v7, 4, v10')
            a(f'ds_write_b128 v7, v[{128+8*t+4*i}:{131+8*t+4*i}]')
    a('s_waitcnt lgkmcnt(0)')
    a('s_barrier')
    a('s_lshl_b32 s70, s3, 13')
    a('s_lshl_b32 s71, s2, 15')
    a('s_add_u32 s71, s71, s70')
    for i in range(8):
        a(f'v_xor_b32 v7, {i << 4}, v8')
        a('v_add_u32 v7, s70, v7')
        a(f'ds_read_b128 v[{128+4*i}:{131+4*i}], v7 offset:{i*1024}')
    for i in range(8):
        a(f's_waitcnt lgkmcnt({7-i})')
        a(f'buffer_store_dwordx4 v[{128+4*i}:{131+4*i}], v8, s[64:67], s71 offen')
        a('s_add_u32 s71, s71, 1024')
    if STAMP:
        stamp(a, 6)
        a('s_waitcnt vmcnt(0)')
        stamp(a, 7)
        a('s_cmp_lg_u32 s3, 0')
        a('s_cbranch_scc1 K3_EXIT')
        stamp_flush(a, 8, 18, 0)
    a.label('K3_EXIT')
    a('s_endpgm')

K4_AL = 0
K4_CB = 1024
K4_OC = 9216
K4_WUV = 11264
K4_LDS = K4_WUV + 16384
def gen_k4(a):
    a.label('k4_kernel')
    a('s_cmp_ge_u32 s2, 256')
    a('s_cbranch_scc1 K4_EXIT')
    a('s_load_dwordx2 s[4:5], s[0:1], 32')
    a('s_load_dwordx2 s[18:19], s[0:1], 96')
    wave_lane(a, 3, 2)
    lane_decomp(a)
    a('s_lshr_b32 s73, s2, 3')
    a('s_and_b32 s68, s2, 7')
    a('v_lshlrev_b32 v9, 3, v0')
    a('v_lshrrev_b32 v8, 3, v2')
    a('v_lshlrev_b32 v19, 20, v8')
    a('v_lshl_add_u32 v19, v5, 4, v19')
    a('v_lshlrev_b32 v12, 1, v4')
    a('v_xor_b32 v12, v12, v3')
    a('v_lshlrev_b32 v12, 4, v12')
    a('v_lshl_add_u32 v13, v4, 13, v12')
    a('v_xor_b32 v14, 128, v13')
    a('s_waitcnt lgkmcnt(0)')
    srd(a, 32, 18, 65536, WS_STATS)
    srd(a, 36, 18, 8388608, WS_OPART)
    srd(a, 20, 4, 4194304)
    a('s_lshl_b32 s70, s73, 11')
    a('buffer_load_dwordx2 v[10:11], v9, s[32:35], s70 offen')
    a('s_lshl_b32 s70, s3, 18')
    a('s_lshl_b32 s71, s73, 10')
    a('s_add_u32 s70, s70, s71')
    a('s_lshl_b32 s71, s68, 7')
    a('s_add_u32 s70, s70, s71')
    for i in range(8):
        a(f'buffer_load_dwordx4 v[{64+4*i}:{67+4*i}], v19, s[36:39], s70 offen')
        a('s_add_u32 s70, s70, 32768')
    a('s_lshr_b32 s70, s68, 1')
    a('s_lshl_b32 s70, s70, 7')
    a('s_and_b32 s71, s68, 1')
    a('s_lshl_b32 s71, s71, 2')
    a('s_add_u32 s70, s70, s71')
    a('s_lshl_b32 s71, s3, 5')
    a('s_add_u32 s70, s70, s71')
    a('s_lshl_b32 s70, s70, 13')
    a('s_lshl_b32 s71, s73, 8')
    a('s_add_u32 s70, s70, s71')
    a('s_lshl_b32 s71, s3, 12')
    a(f's_add_u32 s71, s71, {K4_WUV}')
    for i in range(4):
        a('s_mov_b32 m0, s71')
        a('s_add_u32 s71, s71, 1024')
        a(f'buffer_load_dwordx4 v{13 + ((i >> 1) & 1)}, s[20:23], s70 offen nt lds')
        a('s_add_u32 s70, s70, 65536')
    srd(a, 48, 18, 1048576, WS_CTXP)
    a('s_waitcnt vmcnt(12)')
    a('v_mov_b32 v20, v10')
    swz_reduce32(a, 20, 21, 'v_max_f32')
    a('v_sub_f32 v20, v10, v20')
    a('v_mul_f32 v20, 0x3fb8aa3b, v20')
    a('v_exp_f32 v20, v20')
    a('s_nop 0')
    a('v_mul_f32 v22, v20, v11')
    swz_reduce32(a, 22, 21, 'v_add_f32')
    a('v_rcp_f32 v22, v22')
    a('s_nop 0')
    a('v_mul_f32 v20, v20, v22')
    a('v_lshlrev_b32 v21, 2, v0')
    a(f'ds_write_b32 v21, v20 offset:{K4_AL}')
    a('s_waitcnt lgkmcnt(0)')
    a('s_barrier')
    a('v_lshlrev_b32 v21, 7, v8')
    a('s_lshl_b32 s70, s3, 5')
    a('v_add_u32 v21, s70, v21')
    a(f'ds_read_b128 v[32:35], v21 offset:{K4_AL}')
    a(f'ds_read_b128 v[36:39], v21 offset:{K4_AL+16}')
    for r in range(48, 56):
        a(f'v_mov_b32 v{r}, 0')
    a('s_waitcnt lgkmcnt(0)')
    for i in range(8):
        a(f's_waitcnt vmcnt({11-i})')
        for e in range(4):
            a(f'v_lshlrev_b32 v22, 16, v{64+4*i+e}')
            a(f'v_and_b32 v23, 0xffff0000, v{64+4*i+e}')
            a(f'v_fmac_f32 v{48+2*e}, v22, v{32+i}')
            a(f'v_fmac_f32 v{49+2*e}, v23, v{32+i}')
    a('v_lshlrev_b32 v21, 5, v0')
    a(f'ds_write_b128 v21, v[48:51] offset:{K4_CB}')
    a(f'ds_write_b128 v21, v[52:55] offset:{K4_CB+16}')
    a('s_waitcnt lgkmcnt(0)')
    a('s_barrier')
    a('s_cmp_lg_u32 s3, 0')
    a('s_cbranch_scc1 K4_NOSUM')
    for w in range(1, 4):
        a(f'ds_read_b128 v[{56+8*(w-1)}:{59+8*(w-1)}], v21 offset:{K4_CB+w*2048}')
        a(f'ds_read_b128 v[{60+8*(w-1)}:{63+8*(w-1)}], v21 offset:{K4_CB+w*2048+16}')
    a('s_waitcnt lgkmcnt(0)')
    for e in range(8):
        a(f'v_add_f32 v{48+e}, v{48+e}, v{56+e}')
        a(f'v_add_f32 v{64+e}, v{64+e}, v{72+e}')
        a(f'v_add_f32 v{48+e}, v{48+e}, v{64+e}')
    for e in range(4):
        a(f'v_cvt_pk_bf16_f32 v{56+e}, v{48+2*e}, v{49+2*e}')
    a('s_mov_b32 s70, 160')
    a('v_mul_lo_u32 v21, v8, s70')
    a('v_lshl_add_u32 v21, v5, 4, v21')
    a(f'ds_write_b128 v21, v[56:59] offset:{K4_OC}')
    a.label('K4_NOSUM')
    a('s_mov_b32 s70, 160')
    a('v_mul_lo_u32 v24, v5, s70')
    a('v_lshl_add_u32 v24, v4, 4, v24')
    a('s_lshl_b32 s69, s3, 2')
    tr_base_p256(a, 26, 28, 0, 69)
    a('s_add_u32 s69, s69, 2')
    tr_base_p256(a, 27, 28, 0, 69)
    for r in range(96, 104):
        a(f'v_mov_b32 v{r}, 0')
    a('v_lshlrev_b32 v28, 9, v5')
    a('v_lshl_add_u32 v28, v4, 4, v28')
    a('s_lshl_b32 s70, s2, 12')
    a('s_lshl_b32 s71, s3, 7')
    a('s_add_u32 s70, s70, s71')
    a('s_waitcnt vmcnt(0) lgkmcnt(0)')
    a('s_barrier')
    for ks in range(2):
        a(f'ds_read_b128 v[{32+4*ks}:{35+4*ks}], v24 offset:{K4_OC+ks*64}')
        for tl in range(2):
            r = 64 + 8 * ks + 4 * tl
            a(f'ds_read_b64_tr_b16 v[{r}:{r+1}], v{26+tl} offset:{K4_WUV+ks*8192}')
            a(f'ds_read_b64_tr_b16 v[{r+2}:{r+3}], v{26+tl} offset:{K4_WUV+ks*8192+1024}')
    a('s_waitcnt lgkmcnt(0)')
    for ks in range(2):
        for tl in range(2):
            r = 64 + 8 * ks + 4 * tl
            a(f'v_mfma_f32_16x16x32_bf16 v[{96+4*tl}:{99+4*tl}], v[{r}:{r+3}], v[{32+4*ks}:{35+4*ks}], v[{96+4*tl}:{99+4*tl}]')
    a.nop(10)
    a('buffer_store_dwordx4 v[96:99], v28, s[48:51], s70 offen')
    a('buffer_store_dwordx4 v[100:103], v28, s[48:51], s70 offen offset:64')
    a.label('K4_EXIT')
    a('s_endpgm')

K5_CX = 0
K5_WO = 3072
K5_LDS = K5_WO + 16384
def gen_k5(a):
    a.label('k5_kernel')
    a('s_cmp_ge_u32 s2, 256')
    a('s_cbranch_scc1 K5_EXIT')
    a('s_load_dwordx2 s[6:7], s[0:1], 40')
    a('s_load_dwordx2 s[18:19], s[0:1], 96')
    wave_lane(a, 3, 2)
    lane_decomp(a)
    a('s_lshr_b32 s73, s2, 3')
    a('s_and_b32 s68, s2, 7')
    a('v_lshrrev_b32 v8, 3, v2')
    a('v_lshrrev_b32 v22, 5, v0')
    a('v_and_b32 v23, 31, v0')
    a('v_lshlrev_b32 v28, 9, v22')
    a('v_lshl_add_u32 v28, v23, 4, v28')
    a('v_lshrrev_b32 v15, 1, v8')
    a('v_and_b32 v15, 1, v15')
    a('v_lshlrev_b32 v15, 1, v15')
    a('v_xor_b32 v15, v15, v5')
    a('v_lshlrev_b32 v15, 4, v15')
    a('v_lshl_add_u32 v15, v8, 10, v15')
    a('v_xor_b32 v16, 64, v15')
    a('s_waitcnt lgkmcnt(0)')
    srd(a, 48, 18, 1048576, WS_CTXP)
    srd(a, 24, 6, 4194304)
    a('s_lshl_b32 s70, s73, 15')
    for m in range(8):
        a(f'buffer_load_dwordx4 v[{64+4*m}:{67+4*m}], v28, s[48:51], s70 offen')
        a('s_add_u32 s70, s70, 4096')
    a('s_lshl_b32 s70, s73, 17')
    a('s_lshl_b32 s71, s3, 15')
    a('s_add_u32 s70, s70, s71')
    a('s_lshl_b32 s71, s68, 7')
    a('s_add_u32 s70, s70, s71')
    a('s_lshl_b32 s71, s3, 12')
    a(f's_add_u32 s71, s71, {K5_WO}')
    for i in range(4):
        a('s_mov_b32 m0, s71')
        a('s_add_u32 s71, s71, 1024')
        a(f'buffer_load_dwordx4 v{15 + (i & 1)}, s[24:27], s70 offen nt lds')
        a('s_add_u32 s70, s70, 8192')
    srd(a, 52, 18, 524288, WS_ATTP)
    a('s_mov_b32 s70, 288')
    a('v_mul_lo_u32 v22, v22, s70')
    a('v_lshl_add_u32 v22, v23, 3, v22')
    a('v_mul_lo_u32 v25, v5, s70')
    a('v_lshl_add_u32 v25, v4, 4, v25')
    a('s_lshl_b32 s69, s3, 1')
    tr_base_p128(a, 26, 27, K5_WO, 69)
    a('v_lshlrev_b32 v29, 11, v5')
    a('v_lshl_add_u32 v29, v4, 4, v29')
    a('s_lshl_b32 s70, s73, 14')
    a('s_lshl_b32 s71, s68, 8')
    a('s_add_u32 s70, s70, s71')
    a('s_lshl_b32 s71, s3, 6')
    a('s_add_u32 s70, s70, s71')
    for r in range(56, 60):
        a(f'v_mov_b32 v{r}, 0')
    a('s_waitcnt vmcnt(4)')
    for e in range(4):
        a(f'v_add_f32 v{64+e}, v{64+e}, v{68+e}')
        a(f'v_add_f32 v{72+e}, v{72+e}, v{76+e}')
        a(f'v_add_f32 v{80+e}, v{80+e}, v{84+e}')
        a(f'v_add_f32 v{88+e}, v{88+e}, v{92+e}')
        a(f'v_add_f32 v{64+e}, v{64+e}, v{72+e}')
        a(f'v_add_f32 v{80+e}, v{80+e}, v{88+e}')
        a(f'v_add_f32 v{64+e}, v{64+e}, v{80+e}')
    a('v_cvt_pk_bf16_f32 v68, v64, v65')
    a('v_cvt_pk_bf16_f32 v69, v66, v67')
    a(f'ds_write_b64 v22, v[68:69] offset:{K5_CX}')
    a('s_waitcnt vmcnt(0) lgkmcnt(0)')
    a('s_barrier')
    for ks in range(4):
        a(f'ds_read_b128 v[{32+4*ks}:{35+4*ks}], v25 offset:{K5_CX+ks*64}')
        a(f'ds_read_b64_tr_b16 v[{64+4*ks}:{65+4*ks}], v26 offset:{ks*4096}')
        a(f'ds_read_b64_tr_b16 v[{66+4*ks}:{67+4*ks}], v26 offset:{ks*4096+512}')
    for ks in range(4):
        a(f's_waitcnt lgkmcnt({12-3*(ks+1)})')
        a(f'v_mfma_f32_16x16x32_bf16 v[56:59], v[{64+4*ks}:{67+4*ks}], v[{32+4*ks}:{35+4*ks}], v[56:59]')
    a.nop(10)
    a('buffer_store_dwordx4 v[56:59], v29, s[52:55], s70 offen')
    a.label('K5_EXIT')
    a('s_endpgm')

KC_LDS = 8192
def gen_kc(a):
    a.label('kc_kernel')
    a('s_cmp_ge_u32 s2, 128')
    a('s_cbranch_scc1 KC_EXIT')
    a('s_load_dwordx2 s[4:5], s[0:1], 0')
    a('s_load_dwordx2 s[6:7], s[0:1], 80')
    a('s_load_dwordx2 s[8:9], s[0:1], 96')
    a('s_waitcnt lgkmcnt(0)')
    srd(a, 12, 4, 8192)
    srd(a, 16, 6, 8192)
    srd(a, 20, 8, 524288, WS_ATTP)
    srd(a, 24, 8, 43 * 16384, WS_FFNO)
    a('v_and_b32 v1, 7, v0')
    a('v_lshrrev_b32 v2, 3, v0')
    a('v_lshlrev_b32 v3, 14, v2')
    a('v_lshl_add_u32 v3, v1, 4, v3')
    a('s_lshl_b32 s41, s2, 7')
    a('buffer_load_dwordx4 v[8:11], v3, s[20:23], s41 offen')
    a('buffer_load_dwordx4 v[24:27], v3, s[24:27], s41 offen')
    a('s_add_u32 s41, s41, 524288')
    a('buffer_load_dwordx4 v[28:31], v3, s[24:27], s41 offen')
    a('v_lshlrev_b32 v4, 1, v0')
    a('s_lshl_b32 s42, s2, 6')
    a('buffer_load_ushort v5, v4, s[12:15], s42 offen')
    a('s_waitcnt vmcnt(1)')
    for e in range(4):
        a(f'v_add_f32 v{24+e}, v{24+e}, v{28+e}')
    a('v_lshlrev_b32 v6, 4, v0')
    a('ds_write_b128 v6, v[8:11]')
    a('ds_write_b128 v6, v[24:27] offset:4096')
    a('s_waitcnt lgkmcnt(0)')
    a('s_barrier')
    a('v_cmp_gt_u32 vcc, 32, v0')
    a('s_and_saveexec_b64 s[28:29], vcc')
    a('s_cbranch_execz KC_EXIT')
    a('v_lshlrev_b32 v6, 2, v0')
    for g in range(32):
        a(f'ds_read_b32 v{32+g}, v6 offset:{g*128}')
        a(f'ds_read_b32 v{64+g}, v6 offset:{4096+g*128}')
    a('s_waitcnt lgkmcnt(0)')
    for base in (32, 64):
        for step in (16, 8, 4, 2, 1):
            for i in range(step):
                a(f'v_add_f32 v{base+i}, v{base+i}, v{base+i+step}')
    a('s_waitcnt vmcnt(0)')
    a('v_lshlrev_b32 v5, 16, v5')
    bf16_round_pair(a, 32, 64, 32, 64, 7)
    a('v_add_f32 v32, v32, v5')
    bf16_round_pair(a, 32, 33, 32, 32, 7)
    a('v_add_f32 v32, v32, v64')
    a('v_cvt_pk_bf16_f32 v32, v32, v32')
    a('buffer_store_short v32, v4, s[16:19], s42 offen')
    a.label('KC_EXIT')
    a('s_endpgm')


CKV_POLICY = 'nt'
def main(out):
    a = Asm()
    a.raw(HDR.rstrip('\n'))
    ks = (('k1_kernel', gen_k1, 256, 256, K1_LDS), ('k2_kernel', gen_k2, 256, 256, K2_LDS), ('k3_kernel', gen_k3, 256, 256, K3_LDS),
          ('k4_kernel', gen_k4, 256, 256, K4_LDS), ('k5_kernel', gen_k5, 256, 256, K5_LDS), ('kc_kernel', gen_kc, 128, 256, KC_LDS))
    for name, g, grid, blk, lds in ks:
        a.raw(f'; @launch kernel={name} grid=({grid},1,1) block=({blk},1,1) lds={lds}')
    a.raw('.amdgcn_target "amdgcn-amd-amdhsa--gfx950"')
    a.raw('.text')
    for name, g, grid, blk, lds in ks:
        a.raw(f'.globl {name}')
        a.raw('.p2align 8')
        a.raw(f'.type {name},@function')
        g(a)
    a.raw('.section .rodata,"a"')
    for name, g, grid, blk, lds in ks:
        a.raw('.p2align 6')
        a.raw(kd(name))
    open(out, 'w').write('\n'.join(a.L) + '\n')

if __name__ == '__main__':
    if 'stamp' in sys.argv[2:]: STAMP = True
    if 'ckvplain' in sys.argv[2:]: CKV_POLICY = ''
    main(sys.argv[1] if len(sys.argv) > 1 else 'parallel_sum__compressed_kv_cla__geglu_ffn__decode.s')
```

```python
import sys, math, struct
sys.path.insert(0, 'work')
from gen1 import Asm, srd, HDR, kd, bf16_round_pair, swz_reduce32, fsw

def f2u(f): return struct.unpack('<I', struct.pack('<f', f))[0]

WS_QPART = 0x0
WS_QABS = 0x80000
WS_FFNP = 0xC0000
WS_STATS = 0x180000
WS_CTXP = 0x190000
WS_ATTP = 0x290000
WS_FFNO = 0x310000
WS_OPART = 0x400000
WS_STAMP = 0xF000000
POLL_LIMIT = 200000

STAMP = False
def stamp(a, i):
    if STAMP:
        a(f's_memtime s[{84+2*i}:{85+2*i}]')
        a('s_waitcnt lgkmcnt(0)')
def stamp_flush(a, n, ws, kidx):
    if not STAMP: return
    srd(a, 76, ws, 1 << 20, WS_STAMP + kidx * 65536)
    a('s_lshl_b32 s80, s2, 7')
    a('v_mov_b32 v250, 0')
    for i in range(n):
        a(f'v_mov_b32 v251, s{84+2*i}')
        a(f'buffer_store_dword v251, v250, s[76:79], s80 offen offset:{4*i}')

def wave_lane(a, s_wave, v_lane):
    a('v_lshrrev_b32 v1, 6, v0')
    a(f'v_and_b32 v{v_lane}, 63, v0')
    a(f'v_readfirstlane_b32 s{s_wave}, v1')
    a('s_nop 3')

def lane_decomp(a):
    a('v_and_b32 v3, 15, v2')
    a('v_lshrrev_b32 v4, 4, v2')
    a('v_and_b32 v5, 7, v2')
    a('v_lshrrev_b32 v6, 2, v2')
    a('v_and_b32 v6, 3, v6')
    a('v_and_b32 v7, 3, v2')

def tr_base_p128(a, dst, tmp, base, s_tile2):
    a(f'v_lshrrev_b32 v{tmp}, 1, v6')
    a(f'v_and_b32 v{dst}, 1, v4')
    a(f'v_lshl_add_u32 v{tmp}, v{dst}, 1, v{tmp}')
    a(f'v_lshlrev_b32 v{tmp}, 1, v{tmp}')
    a(f'v_lshrrev_b32 v{dst}, 1, v7')
    a(f'v_add_u32 v{dst}, s{s_tile2}, v{dst}')
    a(f'v_xor_b32 v{tmp}, v{tmp}, v{dst}')
    a(f'v_lshl_add_u32 v{dst}, v4, 3, v6')
    a(f'v_lshlrev_b32 v{dst}, 7, v{dst}')
    a(f'v_lshl_add_u32 v{dst}, v{tmp}, 4, v{dst}')
    a(f'v_and_b32 v{tmp}, 1, v7')
    a(f'v_lshl_add_u32 v{dst}, v{tmp}, 3, v{dst}')
    a(f'v_add_u32 v{dst}, {base}, v{dst}')

def tr_base_p256(a, dst, tmp, base, s_tile2):
    a(f'v_and_b32 v{tmp}, 1, v4')
    a(f'v_lshl_add_u32 v{tmp}, v{tmp}, 2, v6')
    a(f'v_lshlrev_b32 v{tmp}, 1, v{tmp}')
    a(f'v_xor_b32 v{tmp}, s{s_tile2}, v{tmp}')
    a(f'v_lshrrev_b32 v{dst}, 1, v7')
    a(f'v_add_u32 v{tmp}, v{tmp}, v{dst}')
    a(f'v_lshl_add_u32 v{dst}, v4, 3, v6')
    a(f'v_lshlrev_b32 v{dst}, 8, v{dst}')
    a(f'v_lshl_add_u32 v{dst}, v{tmp}, 4, v{dst}')
    a(f'v_and_b32 v{tmp}, 1, v7')
    a(f'v_lshl_add_u32 v{dst}, v{tmp}, 3, v{dst}')
    a(f'v_add_u32 v{dst}, {base}, v{dst}')

def ln_issue(a, srd_x, s_wave, t):
    a(f'v_lshrrev_b32 v{t}, 5, v2')
    a(f's_lshl_b32 s70, s{s_wave}, 1')
    a(f'v_add_u32 v{t}, s70, v{t}')
    a(f'v_and_b32 v{t+1}, 31, v2')
    a(f'v_lshlrev_b32 v{t+2}, 5, v{t+1}')
    a(f'v_lshl_add_u32 v{t+2}, v{t}, 10, v{t+2}')
    a(f'buffer_load_dwordx4 v[{t+4}:{t+7}], v{t+2}, s[{srd_x}:{srd_x+3}], 0 offen')
    a(f'buffer_load_dwordx4 v[{t+8}:{t+11}], v{t+2}, s[{srd_x}:{srd_x+3}], 0 offen offset:16')

def ln_compute(a, t, vm):
    a(f's_waitcnt vmcnt({vm})')
    for i in range(8):
        a(f'v_lshlrev_b32 v{t+12+2*i}, 16, v{t+4+i}')
        a(f'v_and_b32 v{t+12+2*i+1}, 0xffff0000, v{t+4+i}')
    X = t + 12; S = t + 28; TMP = t + 29; M = t + 30; V = t + 31; R = t + 32
    a(f'v_add_f32 v{S}, v{X}, v{X+1}')
    for i in range(2, 16):
        a(f'v_add_f32 v{S}, v{S}, v{X+i}')
    swz_reduce32(a, S, TMP, 'v_add_f32')
    a(f'v_mul_f32 v{M}, 0x3b000000, v{S}')
    a(f'v_sub_f32 v{TMP}, v{X}, v{M}')
    a(f'v_mul_f32 v{V}, v{TMP}, v{TMP}')
    for i in range(1, 16):
        a(f'v_sub_f32 v{TMP}, v{X+i}, v{M}')
        a(f'v_fmac_f32 v{V}, v{TMP}, v{TMP}')
    swz_reduce32(a, V, TMP, 'v_add_f32')
    a(f'v_mul_f32 v{V}, 0x3b000000, v{V}')
    bf16_round_pair(a, M, V, M, V, TMP)
    a(f'v_add_f32 v{V}, 0x3727c5ac, v{V}')
    bf16_round_pair(a, V, TMP, V, V, S)
    a(f'v_sqrt_f32 v{V}, v{V}')
    a('s_nop 0')
    bf16_round_pair(a, V, TMP, V, V, S)
    a(f'v_rcp_f32 v{R}, v{V}')
    a('s_nop 0')
    for i in range(8):
        a(f'v_sub_f32 v{X+2*i}, v{X+2*i}, v{M}')
        a(f'v_sub_f32 v{X+2*i+1}, v{X+2*i+1}, v{M}')
        bf16_round_pair(a, X+2*i, X+2*i+1, X+2*i, X+2*i+1, TMP)
    for i in range(16):
        a(f'v_mul_f32 v{TMP}, v{X+i}, v{R}')
        a(f'v_fma_f32 v{S}, -v{TMP}, v{V}, v{X+i}')
        a(f'v_fma_f32 v{X+i}, v{S}, v{R}, v{TMP}')
    for i in range(8):
        a(f'v_cvt_pk_bf16_f32 v{t+4+i}, v{X+2*i}, v{X+2*i+1}')

def atomic_arrive(a, srd_dbg, v_off, v_one):
    a('s_mov_b64 exec, 1')
    a(f'buffer_atomic_add v{v_one}, v{v_off}, s[{srd_dbg}:{srd_dbg+3}], 0 offen sc1')
    a('s_mov_b64 exec, -1')

def poll(a, name, srd_dbg, v_off, v_tmp, target):
    a('s_mov_b32 s72, 0')
    a.label(f'{name}_LOOP')
    a(f'buffer_load_dword v{v_tmp}, v{v_off}, s[{srd_dbg}:{srd_dbg+3}], 0 offen sc1')
    a('s_waitcnt vmcnt(0)')
    a(f'v_cmp_le_u32 vcc, {target}, v{v_tmp}')
    a('s_nop 3')
    a('s_cmp_eq_u64 vcc, exec')
    a(f's_cbranch_scc1 {name}_DONE')
    a('s_add_u32 s72, s72, 1')
    a(f's_cmp_lt_u32 s72, {POLL_LIMIT}')
    a(f's_cbranch_scc0 {name}_DONE')
    a('s_sleep 1')
    a(f's_branch {name}_LOOP')
    a.label(f'{name}_DONE')

def gelu4(a, regs, tmp):
    c1 = -2.0 * math.log2(math.e) * math.sqrt(2.0 / math.pi)
    a(f's_mov_b32 s70, {f2u(0.044715):#x}')
    a(f's_mov_b32 s71, {f2u(c1):#x}')
    for r in regs:
        a(f'v_mul_f32 v{tmp}, v{r}, v{r}')
        a(f'v_mul_f32 v{tmp}, s70, v{tmp}')
        a(f'v_fma_f32 v{tmp}, v{tmp}, v{r}, v{r}')
        a(f'v_mul_f32 v{tmp}, s71, v{tmp}')
        a(f'v_exp_f32 v{tmp}, v{tmp}')
        a('s_nop 0')
        a(f'v_add_f32 v{tmp}, 1.0, v{tmp}')
        a(f'v_rcp_f32 v{tmp}, v{tmp}')
        a('s_nop 0')
        a(f'v_mul_f32 v{r}, v{r}, v{tmp}')

K1_WQT = 0
K1_FT = 16384
K1_XNA = 32768
K1_XNF = K1_XNA + 2304
K1_LDS = K1_XNF + 1280

def gen_k1(a):
    a.label('k1_kernel')
    a('s_cmp_ge_u32 s2, 256')
    a('s_cbranch_scc1 K1_EXIT')
    a('s_load_dwordx2 s[4:5], s[0:1], 0')
    a('s_load_dwordx2 s[8:9], s[0:1], 16')
    a('s_load_dwordx4 s[12:15], s[0:1], 56')
    a('s_load_dwordx2 s[18:19], s[0:1], 96')
    wave_lane(a, 3, 2)
    lane_decomp(a)
    a('s_lshr_b32 s73, s2, 3')
    a('s_lshr_b32 s74, s2, 1')
    a('s_and_b32 s74, s74, 3')
    a('s_and_b32 s75, s2, 1')
    a('s_and_b32 s68, s2, 7')
    a('v_lshrrev_b32 v8, 3, v2')
    a('v_lshrrev_b32 v9, 1, v8')
    a('v_and_b32 v9, 1, v9')
    a('v_lshlrev_b32 v9, 1, v9')
    a('v_xor_b32 v9, v9, v5')
    a('v_lshlrev_b32 v9, 4, v9')
    a('v_lshl_add_u32 v10, v8, 13, v9')
    a('v_xor_b32 v11, 64, v10')
    a('s_mov_b32 s70, 2752')
    a('v_mul_lo_u32 v12, v8, s70')
    a('v_add_u32 v13, v12, v9')
    a('v_xor_b32 v9, 64, v9')
    a('v_add_u32 v12, v12, v9')
    a('s_waitcnt lgkmcnt(0)')
    srd(a, 20, 4, 8192)
    srd(a, 28, 8, 4194304)
    T = 60
    ln_issue(a, 20, 3, T)
    a('s_lshl_b32 s70, s74, 20')
    a('s_lshl_b32 s71, s3, 18')
    a('s_add_u32 s70, s70, s71')
    a('s_lshl_b32 s71, s73, 8')
    a('s_add_u32 s70, s70, s71')
    a('s_lshl_b32 s71, s75, 7')
    a('s_add_u32 s70, s70, s71')
    a('s_lshl_b32 s71, s3, 12')
    for i in range(4):
        a('s_mov_b32 m0, s71')
        a('s_add_u32 s71, s71, 1024')
        a(f'buffer_load_dwordx4 v{10 + (i & 1)}, s[28:31], s70 offen nt lds')
        a('s_add_u32 s70, s70, 65536')
    a('s_cmp_ge_u32 s3, 2')
    a('s_cselect_b32 s76, s14, s12')
    a('s_cselect_b32 s77, s15, s13')
    a('s_and_b32 s77, s77, 0xffff')
    a('s_mov_b32 s78, 1409024')
    a('s_mov_b32 s79, 0x00020000')
    a('s_and_b32 s70, s3, 1')
    a('s_lshl_b32 s70, s70, 5')
    a('s_lshl_b32 s71, s68, 6')
    a('s_add_u32 s70, s70, s71')
    a('s_mul_i32 s70, s70, 2752')
    a('s_lshl_b32 s71, s73, 7')
    a('s_add_u32 s70, s70, s71')
    a('s_cmp_ge_u32 s2, 176')
    a('s_cselect_b32 s70, 0x40000000, s70')
    a('s_lshl_b32 s71, s3, 12')
    a(f's_add_u32 s71, s71, {K1_FT}')
    for i in range(4):
        a('s_mov_b32 m0, s71')
        a('s_add_u32 s71, s71, 1024')
        a(f'buffer_load_dwordx4 v{13 - (i & 1)}, s[76:79], s70 offen nt lds')
        a('s_add_u32 s70, s70, 22016')
    if CODE_PREFETCH:
        a('s_getpc_b64 s[84:85]')
        a.label('K1_PC')
        a('s_add_u32 s84, s84, k2_kernel-K1_PC')
        a('s_addc_u32 s85, s85, 0')
        a('s_lshl_b32 s70, s3, 10')
        a('v_lshl_add_u32 v21, v2, 4, s70')
        for i in range(NPF):
            a('v_min_u32 v22, CODE_END-k2_kernel-16, v21')
            a(f'global_load_dwordx4 v[{200+4*i}:{203+4*i}], v22, s[84:85]')
            a('v_add_u32 v21, 4096, v21')
    srd(a, 48, 18, 524288, WS_QPART)
    srd(a, 56, 18, 0xB0000, WS_FFNP)
    ln_compute(a, T, 8 + (NPF if CODE_PREFETCH else 0))
    a('s_mov_b32 s70, 288')
    a(f'v_mul_lo_u32 v14, v{T}, s70')
    a(f'v_and_b32 v15, 7, v{T+1}')
    a('v_lshl_add_u32 v14, v15, 5, v14')
    a(f'v_lshrrev_b32 v15, 3, v{T+1}')
    a('v_cmp_eq_u32 vcc, s74, v15')
    a('s_and_saveexec_b64 s[80:81], vcc')
    a(f'ds_write_b128 v14, v[{T+4}:{T+7}] offset:{K1_XNA}')
    a(f'ds_write_b128 v14, v[{T+8}:{T+11}] offset:{K1_XNA+16}')
    a('s_mov_b64 exec, s[80:81]')
    a('s_mov_b32 s70, 160')
    a(f'v_mul_lo_u32 v14, v{T}, s70')
    a(f'v_and_b32 v15, 3, v{T+1}')
    a('v_lshl_add_u32 v14, v15, 5, v14')
    a(f'v_lshrrev_b32 v15, 2, v{T+1}')
    a('v_cmp_eq_u32 vcc, s68, v15')
    a('s_and_saveexec_b64 s[80:81], vcc')
    a(f'ds_write_b128 v14, v[{T+4}:{T+7}] offset:{K1_XNF}')
    a(f'ds_write_b128 v14, v[{T+8}:{T+11}] offset:{K1_XNF+16}')
    a('s_mov_b64 exec, s[80:81]')
    a('s_mov_b32 s70, 288')
    a('v_mul_lo_u32 v15, v5, s70')
    a('v_lshl_add_u32 v15, v4, 4, v15')
    a('s_mov_b32 s70, 160')
    a('v_mul_lo_u32 v17, v5, s70')
    a('v_lshl_add_u32 v17, v4, 4, v17')
    a('s_lshl_b32 s69, s3, 1')
    tr_base_p128(a, 18, 19, 0, 69)
    for r in range(24, 36):
        a(f'v_mov_b32 v{r}, 0')
    a('v_lshlrev_b32 v19, 9, v5')
    a('v_lshl_add_u32 v19, v4, 4, v19')
    a('s_lshl_b32 s82, s73, 14')
    a('s_lshl_b32 s71, s74, 12')
    a('s_add_u32 s82, s82, s71')
    a('s_lshl_b32 s71, s75, 8')
    a('s_add_u32 s82, s82, s71')
    a('s_lshl_b32 s71, s3, 6')
    a('s_add_u32 s82, s82, s71')
    a('s_mov_b32 s70, 5632')
    a('v_mul_lo_u32 v20, v5, s70')
    a('v_lshl_add_u32 v20, v4, 4, v20')
    a('s_mul_i32 s83, s68, 45056')
    a('s_lshl_b32 s71, s73, 8')
    a('s_add_u32 s83, s83, s71')
    a('s_lshl_b32 s71, s3, 6')
    a('s_add_u32 s83, s83, s71')
    a('s_cmp_ge_u32 s2, 176')
    a('s_cselect_b32 s83, 0x40000000, s83')
    a(f's_waitcnt vmcnt({4 + (NPF if CODE_PREFETCH else 0)}) lgkmcnt(0)')
    a('s_barrier')
    for ks in range(4):
        a(f'ds_read_b128 v[{36+8*ks}:{39+8*ks}], v15 offset:{K1_XNA+ks*64}')
        a(f'ds_read_b64_tr_b16 v[{40+8*ks}:{41+8*ks}], v18 offset:{K1_WQT+ks*4096}')
        a(f'ds_read_b64_tr_b16 v[{42+8*ks}:{43+8*ks}], v18 offset:{K1_WQT+ks*4096+512}')
    for ks in range(4):
        a(f's_waitcnt lgkmcnt({12-3*(ks+1)})')
        a(f'v_mfma_f32_16x16x32_bf16 v[24:27], v[{40+8*ks}:{43+8*ks}], v[{36+8*ks}:{39+8*ks}], v[24:27]')
    a(f's_waitcnt vmcnt({(NPF if CODE_PREFETCH else 0)})')
    a.nop(8)
    a('buffer_store_dwordx4 v[24:27], v19, s[48:51], s82 offen')
    a('s_barrier')
    for ks in range(2):
        a(f'ds_read_b128 v[{36+4*ks}:{39+4*ks}], v17 offset:{K1_XNF+ks*64}')
    for mat in range(2):
        for ks in range(2):
            r = 44 + 8 * mat + 4 * ks
            a(f'ds_read_b64_tr_b16 v[{r}:{r+1}], v18 offset:{K1_FT+mat*8192+ks*4096}')
            a(f'ds_read_b64_tr_b16 v[{r+2}:{r+3}], v18 offset:{K1_FT+mat*8192+ks*4096+512}')
    a('s_waitcnt lgkmcnt(0)')
    for mat in range(2):
        for ks in range(2):
            r = 44 + 8 * mat + 4 * ks
            a(f'v_mfma_f32_16x16x32_bf16 v[{28+4*mat}:{31+4*mat}], v[{r}:{r+3}], v[{36+4*ks}:{39+4*ks}], v[{28+4*mat}:{31+4*mat}]')
    a.nop(10)
    a('buffer_store_dwordx4 v[28:31], v20, s[56:59], s83 offen')
    a('s_add_u32 s83, s83, 360448')
    a('buffer_store_dwordx4 v[32:35], v20, s[56:59], s83 offen')
    a.label('K1_EXIT')
    a('s_endpgm')

K2_QB = 0
K2_FS = 2304
K2_HB = K2_FS + 4096
K2_WD = 9216
K2_LDS = K2_WD + 8192
def gen_k2(a):
    a.label('k2_kernel')
    a('s_cmp_ge_u32 s2, 256')
    a('s_cbranch_scc1 K2_EXIT')
    a('s_load_dwordx2 s[10:11], s[0:1], 24')
    a('s_load_dwordx2 s[8:9], s[0:1], 72')
    a('s_load_dwordx2 s[18:19], s[0:1], 96')
    wave_lane(a, 3, 2)
    lane_decomp(a)
    a('s_lshr_b32 s73, s2, 3')
    a('s_and_b32 s68, s2, 7')
    a('s_lshr_b32 s74, s2, 2')
    a('s_and_b32 s75, s2, 3')
    a('v_lshrrev_b32 v22, 5, v0')
    a('v_and_b32 v23, 31, v0')
    a('v_lshlrev_b32 v19, 9, v22')
    a('v_lshl_add_u32 v19, v23, 4, v19')
    a('v_lshlrev_b32 v12, 13, v3')
    a('v_lshl_add_u32 v12, v4, 4, v12')
    a('v_lshrrev_b32 v8, 3, v2')
    a('s_waitcnt lgkmcnt(0)')
    srd(a, 48, 18, 524288, WS_QPART)
    srd(a, 32, 10, 4194304)
    a('s_lshl_b32 s70, s73, 14')
    for m in range(4):
        a(f'buffer_load_dwordx4 v[{36+4*m}:{39+4*m}], v19, s[48:51], s70 offen')
        a('s_add_u32 s70, s70, 4096')
    a('s_lshl_b32 s70, s68, 19')
    a('s_lshl_b32 s71, s3, 17')
    a('s_add_u32 s70, s70, s71')
    a('s_lshl_b32 s71, s73, 8')
    a('s_add_u32 s70, s70, s71')
    for st in range(4):
        a(f'buffer_load_dwordx4 v[{104+4*st}:{107+4*st}], v12, s[32:35], s70 offen offset:{st*64} nt')
    srd(a, 40, 18, 0xB0000, WS_FFNP)
    srd(a, 28, 8, 1409024)
    a('s_mov_b32 s70, 5632')
    a('v_mul_lo_u32 v18, v8, s70')
    a('v_lshl_add_u32 v18, v5, 4, v18')
    a('s_and_b32 s70, s3, 1')
    a('s_mul_i32 s70, s70, 360448')
    a('s_lshr_b32 s71, s3, 1')
    a('s_mul_i32 s71, s71, 180224')
    a('s_add_u32 s70, s70, s71')
    a('s_lshl_b32 s71, s74, 7')
    a('s_add_u32 s70, s70, s71')
    a('s_cmp_ge_u32 s2, 172')
    a('s_cselect_b32 s70, 0x40000000, s70')
    for i in range(4):
        a(f'buffer_load_dwordx4 v[{120+4*i}:{123+4*i}], v18, s[40:43], s70 offen')
        a('s_add_u32 s70, s70, 45056')
    a('v_lshlrev_b32 v13, 1, v4')
    a('v_xor_b32 v13, v13, v3')
    a('v_lshlrev_b32 v13, 4, v13')
    a('v_lshl_add_u32 v17, v4, 10, v13')
    a('s_and_b32 s70, s3, 1')
    a('s_lshl_b32 s70, s70, 7')
    a('v_xor_b32 v17, s70, v17')
    a('s_lshl_b32 s70, s74, 15')
    a('s_lshl_b32 s71, s3, 13')
    a('s_add_u32 s70, s70, s71')
    a('s_lshl_b32 s71, s75, 8')
    a('s_add_u32 s70, s70, s71')
    a('s_cmp_ge_u32 s2, 172')
    a('s_cselect_b32 s70, 0x40000000, s70')
    a('s_lshl_b32 s71, s3, 11')
    a(f's_add_u32 s71, s71, {K2_WD}')
    for i in range(2):
        a('s_mov_b32 m0, s71')
        a('s_add_u32 s71, s71, 1024')
        a('buffer_load_dwordx4 v17, s[28:31], s70 offen nt lds')
        a('s_add_u32 s70, s70, 4096')
    srd(a, 52, 18, 262144, WS_QABS)
    srd(a, 56, 18, 43 * 16384, WS_FFNO)
    a('s_mov_b32 s70, 288')
    a('v_mul_lo_u32 v22, v22, s70')
    a('v_lshl_add_u32 v22, v23, 3, v22')
    a('v_mul_lo_u32 v16, v5, s70')
    a('v_lshl_add_u32 v16, v4, 4, v16')
    a('s_lshl_b32 s69, s3, 2')
    tr_base_p256(a, 26, 28, 0, 69)
    a('s_add_u32 s69, s69, 2')
    tr_base_p256(a, 27, 28, 0, 69)
    for r in range(24, 28):
        pass
    a('s_waitcnt vmcnt(10)')
    for e in range(4):
        a(f'v_add_f32 v{36+e}, v{36+e}, v{40+e}')
        a(f'v_add_f32 v{44+e}, v{44+e}, v{48+e}')
        a(f'v_add_f32 v{36+e}, v{36+e}, v{44+e}')
    a('v_cvt_pk_bf16_f32 v40, v36, v37')
    a('v_cvt_pk_bf16_f32 v41, v38, v39')
    a(f'ds_write_b64 v22, v[40:41] offset:{K2_QB}')
    a('s_waitcnt lgkmcnt(0)')
    a('s_barrier')
    for st in range(4):
        a(f'ds_read_b128 v[{36+4*st}:{39+4*st}], v16 offset:{K2_QB+st*64}')
    for r in range(56, 60):
        a(f'v_mov_b32 v{r}, 0')
    a('v_lshlrev_b32 v19, 15, v5')
    a('v_lshl_add_u32 v19, v4, 3, v19')
    a('s_lshl_b32 s70, s73, 10')
    a('s_lshl_b32 s71, s68, 7')
    a('s_add_u32 s70, s70, s71')
    a('s_lshl_b32 s71, s3, 5')
    a('s_add_u32 s70, s70, s71')
    a('s_waitcnt vmcnt(6) lgkmcnt(0)')
    for st in range(4):
        a(f'v_mfma_f32_16x16x32_bf16 v[56:59], v[{104+4*st}:{107+4*st}], v[{36+4*st}:{39+4*st}], v[56:59]')
    a.nop(10)
    a('v_cvt_pk_bf16_f32 v60, v56, v57')
    a('v_cvt_pk_bf16_f32 v61, v58, v59')
    a('buffer_store_dwordx2 v[60:61], v19, s[52:55], s70 offen')
    a('s_waitcnt vmcnt(3)')
    for e in range(4):
        a(f'v_add_f32 v{120+e}, v{120+e}, v{124+e}')
        a(f'v_add_f32 v{128+e}, v{128+e}, v{132+e}')
        a(f'v_add_f32 v{120+e}, v{120+e}, v{128+e}')
    a('v_lshlrev_b32 v22, 4, v0')
    a(f'ds_write_b128 v22, v[120:123] offset:{K2_FS}')
    a('s_waitcnt lgkmcnt(0)')
    a('s_barrier')
    a('s_cmp_lg_u32 s3, 0')
    a('s_cbranch_scc1 K2_NOACT')
    a(f'ds_read_b128 v[96:99], v22 offset:{K2_FS}')
    a(f'ds_read_b128 v[100:103], v22 offset:{K2_FS+1024}')
    a(f'ds_read_b128 v[104:107], v22 offset:{K2_FS+2048}')
    a(f'ds_read_b128 v[108:111], v22 offset:{K2_FS+3072}')
    a('s_waitcnt lgkmcnt(0)')
    for e in range(4):
        a(f'v_add_f32 v{96+e}, v{96+e}, v{104+e}')
        a(f'v_add_f32 v{100+e}, v{100+e}, v{108+e}')
    bf16_round_pair(a, 96, 97, 96, 97, 23)
    bf16_round_pair(a, 98, 99, 98, 99, 23)
    bf16_round_pair(a, 100, 101, 100, 101, 23)
    bf16_round_pair(a, 102, 103, 102, 103, 23)
    gelu4(a, [96, 97, 98, 99], 23)
    bf16_round_pair(a, 96, 97, 96, 97, 23)
    bf16_round_pair(a, 98, 99, 98, 99, 23)
    for e in range(4):
        a(f'v_mul_f32 v{96+e}, v{96+e}, v{100+e}')
    a('v_cvt_pk_bf16_f32 v104, v96, v97')
    a('v_cvt_pk_bf16_f32 v105, v98, v99')
    a('s_mov_b32 s70, 288')
    a('v_mul_lo_u32 v22, v8, s70')
    a('v_lshl_add_u32 v22, v5, 3, v22')
    a(f'ds_write_b64 v22, v[104:105] offset:{K2_HB}')
    a.label('K2_NOACT')
    a('s_waitcnt vmcnt(1) lgkmcnt(0)')
    a('s_barrier')
    a(f'ds_read_b128 v[32:35], v16 offset:{K2_HB}')
    for tl in range(2):
        r = 64 + 4 * tl
        a(f'ds_read_b64_tr_b16 v[{r}:{r+1}], v{26+tl} offset:{K2_WD}')
        a(f'ds_read_b64_tr_b16 v[{r+2}:{r+3}], v{26+tl} offset:{K2_WD+1024}')
    for r in range(72, 80):
        a(f'v_mov_b32 v{r}, 0')
    a('v_lshlrev_b32 v29, 11, v5')
    a('v_lshl_add_u32 v29, v4, 4, v29')
    a('s_lshl_b32 s70, s74, 14')
    a('s_lshl_b32 s71, s75, 9')
    a('s_add_u32 s70, s70, s71')
    a('s_lshl_b32 s71, s3, 7')
    a('s_add_u32 s70, s70, s71')
    a('s_cmp_ge_u32 s2, 172')
    a('s_cselect_b32 s70, 0x40000000, s70')
    a('s_waitcnt lgkmcnt(0)')
    for tl in range(2):
        r = 64 + 4 * tl
        a(f'v_mfma_f32_16x16x32_bf16 v[{72+4*tl}:{75+4*tl}], v[{r}:{r+3}], v[32:35], v[{72+4*tl}:{75+4*tl}]')
    a.nop(10)
    a('buffer_store_dwordx4 v[72:75], v29, s[56:59], s70 offen')
    a('buffer_store_dwordx4 v[76:79], v29, s[56:59], s70 offen offset:64')
    a.label('K2_EXIT')
    a('s_endpgm')

R0 = 131072
K3_P = R0
K3_ST = R0 + 8192
K3_LDS = 163840
def gen_k3(a):
    a.label('k3_kernel')
    a('s_cmp_ge_u32 s2, 256')
    a('s_cbranch_scc1 K3_EXIT')
    stamp(a, 0)
    a('s_load_dwordx2 s[6:7], s[0:1], 8')
    a('s_load_dwordx2 s[18:19], s[0:1], 96')
    wave_lane(a, 3, 2)
    a('v_lshlrev_b32 v8, 4, v2')
    a('s_waitcnt lgkmcnt(0)')
    srd(a, 52, 18, 262144, WS_QABS)
    srd(a, 24, 6, 33554432)
    a('s_lshr_b32 s69, s2, 5')
    a('s_lshl_b32 s70, s69, 15')
    a('s_lshl_b32 s71, s3, 13')
    a('s_add_u32 s70, s70, s71')
    a(f's_add_u32 s71, s71, {R0}')
    a('s_and_b32 s72, s3, 1')
    a('s_lshl_b32 s72, s72, 5')
    a('v_xor_b32 v9, s72, v8')
    for i in range(8):
        a(f'v_xor_b32 v4, {(((i & 3) << 2) | (i >> 2)) << 4}, v9')
        a('s_mov_b32 m0, s71')
        a('s_add_u32 s71, s71, 1024')
        a('buffer_load_dwordx4 v4, s[52:55], s70 offen lds')
        a('s_add_u32 s70, s70, 1024')
    a('s_lshl_b32 s70, s2, 17')
    a('s_lshl_b32 s71, s3, 15')
    a('s_add_u32 s70, s70, s71')
    for i in range(32):
        a(f'v_xor_b32 v4, {fsw(i & 15) << 4}, v8')
        a('s_mov_b32 m0, s71')
        a('s_add_u32 s71, s71, 1024')
        a(f'buffer_load_dwordx4 v4, s[24:27], s70 offen {CKV_POLICY} lds')
        a('s_add_u32 s70, s70, 1024')
    srd(a, 60, 18, 65536, WS_STATS)
    srd(a, 64, 18, 8388608, WS_OPART)
    a('v_and_b32 v5, 31, v2')
    a('v_lshrrev_b32 v6, 5, v2')
    a('v_and_b32 v9, 3, v5')
    a('v_lshlrev_b32 v9, 2, v9')
    a('v_lshrrev_b32 v10, 2, v5')
    a('v_and_b32 v10, 3, v10')
    a('v_or_b32 v9, v9, v10')
    a('v_xor_b32 v9, v9, v6')
    a('v_lshlrev_b32 v10, 10, v5')
    a('s_lshl_b32 s70, s3, 15')
    a('v_add_u32 v11, s70, v10')
    a(f'v_add_u32 v12, {R0}, v10')
    for e in range(8):
        a(f'v_xor_b32 v13, {2*e}, v9')
        a(f'v_lshl_add_u32 v{16+e}, v13, 4, v11')
        a(f'v_lshl_add_u32 v{24+e}, v13, 4, v12')
    for r in range(32, 48):
        a(f'v_mov_b32 v{r}, 0')
    for r in range(64+16, 128):
        a(f'v_mov_b32 v{r}, 0')
    a('v_lshrrev_b32 v14, 2, v2')
    a('v_and_b32 v14, 3, v14')
    a('v_and_b32 v15, 3, v2')
    a('v_lshrrev_b32 v3, 4, v2')
    a('v_and_b32 v3, 1, v3')
    a('v_lshrrev_b32 v7, 1, v15')
    a('v_lshl_add_u32 v7, v3, 1, v7')
    a('v_lshl_add_u32 v13, v6, 2, v14')
    a('v_lshlrev_b32 v13, 10, v13')
    a('s_lshl_b32 s70, s3, 8')
    a('v_add_u32 v13, s70, v13')
    a('v_and_b32 v3, 1, v15')
    a('v_lshl_add_u32 v13, v3, 3, v13')
    for sec in range(2):
        a(f'v_add_u32 v3, {2*sec}, v6')
        a('v_xor_b32 v3, v3, v7')
        for t in range(4):
            a(f'v_xor_b32 v4, {t}, v14')
            a('v_lshl_add_u32 v4, v4, 2, v3')
            a(f'v_lshl_add_u32 v{160+2*t+sec}, v4, 4, v13')
            if sec:
                a(f'v_add_u32 v{160+2*t+sec}, 8192, v{160+2*t+sec}')
    stamp(a, 1)
    a('s_waitcnt vmcnt(0)')
    a('s_barrier')
    stamp(a, 2)
    def rd(st):
        return [f'ds_read_b128 v[{48+4*(st&3)}:{51+4*(st&3)}], v{16+(st&7)} offset:{(st>>3)*256}',
                f'ds_read_b128 v[{64+4*(st&3)}:{67+4*(st&3)}], v{24+(st&7)} offset:{(st>>3)*256}']
    for st in range(3):
        for s in rd(st): a(s)
    for st in range(32):
        if st + 3 < 32:
            for s in rd(st + 3): a(s)
            a('s_waitcnt lgkmcnt(6)')
        else:
            a(f's_waitcnt lgkmcnt({2*(31-st)})')
        a(f'v_mfma_f32_32x32x16_bf16 v[32:47], v[{48+4*(st&3)}:{51+4*(st&3)}], v[{64+4*(st&3)}:{67+4*(st&3)}], v[32:47]')
    a('s_barrier')
    for r in range(64, 80):
        a(f'v_mov_b32 v{r}, 0')
    stamp(a, 3)
    a('s_mov_b32 s70, 0x3db504f3')
    for i in range(8):
        bf16_round_pair(a, 32+2*i, 33+2*i, 32+2*i, 33+2*i, 48)
        a(f'v_mul_f32 v{32+2*i}, s70, v{32+2*i}')
        a(f'v_mul_f32 v{33+2*i}, s70, v{33+2*i}')
        bf16_round_pair(a, 32+2*i, 33+2*i, 32+2*i, 33+2*i, 48)
    a('v_max3_f32 v48, v32, v33, v34')
    for i in range(35, 47, 2):
        a(f'v_max3_f32 v48, v48, v{i}, v{i+1}')
    a('v_max_f32 v48, v48, v47')
    a('v_mov_b32 v49, v48')
    a('s_nop 1')
    a('v_permlane32_swap_b32 v48, v49')
    a('v_max_f32 v48, v48, v49')
    a('v_lshlrev_b32 v11, 2, v5')
    a(f'v_add_u32 v11, {K3_ST}, v11')
    a('s_lshl_b32 s70, s3, 7')
    a('v_add_u32 v12, s70, v11')
    a('ds_write_b32 v12, v48')
    a('s_waitcnt lgkmcnt(0)')
    a('s_barrier')
    a('ds_read_b32 v48, v11')
    a('ds_read_b32 v49, v11 offset:128')
    a('ds_read_b32 v50, v11 offset:256')
    a('ds_read_b32 v51, v11 offset:384')
    a('s_waitcnt lgkmcnt(0)')
    a('v_max3_f32 v48, v48, v49, v50')
    a('v_max_f32 v48, v48, v51')
    a('s_mov_b32 s70, 0x3fb8aa3b')
    a('v_mul_f32 v49, s70, v48')
    for i in range(16):
        a(f'v_fma_f32 v{32+i}, v{32+i}, s70, -v49')
        a(f'v_exp_f32 v{32+i}, v{32+i}')
    a('s_nop 0')
    a('v_add_f32 v50, v32, v33')
    for i in range(2, 16):
        a(f'v_add_f32 v50, v50, v{32+i}')
    a('v_mov_b32 v51, v50')
    a('s_nop 1')
    a('v_permlane32_swap_b32 v50, v51')
    a('v_add_f32 v50, v50, v51')
    a('ds_write_b32 v12, v50 offset:512')
    for i in range(8):
        a(f'v_cvt_pk_bf16_f32 v{52+i}, v{32+2*i}, v{33+2*i}')
    a('s_lshl_b32 s70, s3, 11')
    a(f's_add_u32 s70, s70, {K3_P}')
    a('v_add_u32 v13, s70, v8')
    a('ds_write_b128 v13, v[52:55]')
    a('ds_write_b128 v13, v[56:59] offset:1024')
    a('s_waitcnt lgkmcnt(0)')
    a('s_barrier')
    stamp(a, 4)
    a('ds_read_b32 v50, v11 offset:512')
    a('ds_read_b32 v51, v11 offset:640')
    a('ds_read_b32 v52, v11 offset:768')
    a('ds_read_b32 v53, v11 offset:896')
    a(f'v_add_u32 v13, {K3_P}, v8')
    for u in range(8):
        a(f'ds_read_b128 v[{128+4*u}:{131+4*u}], v13 offset:{u*1024}')
    def trrd(u, t, buf):
        off = (u & 3) * 16384
        return [f'ds_read_b64_tr_b16 v[{buf}:{buf+1}], v{160+2*t} offset:{off}',
                f'ds_read_b64_tr_b16 v[{buf+2}:{buf+3}], v{161+2*t} offset:{off}']
    seq = [(u, t) for u in range(8) for t in range(4)]
    bufs = [168, 172, 176, 180]
    def issue(idx):
        u, t = seq[idx]
        if u == 4 and t == 0:
            for r in range(160, 168):
                a(f'v_add_u32 v{r}, 0x10000, v{r}')
        for s in trrd(u, t, bufs[idx & 3]):
            a(s)
    for idx in range(3):
        issue(idx)
    a('s_waitcnt lgkmcnt(6)')
    a('v_add_f32 v50, v50, v51')
    a('v_add_f32 v52, v52, v53')
    a('v_add_f32 v49, v50, v52')
    a('v_lshlrev_b32 v19, 11, v5')
    a('s_lshl_b32 s70, s2, 3')
    a('buffer_store_dwordx2 v[48:49], v19, s[60:63], s70 offen')
    for idx in range(32):
        u, t = seq[idx]
        if idx + 3 < 32:
            issue(idx + 3)
            a('s_waitcnt lgkmcnt(6)')
        else:
            a(f's_waitcnt lgkmcnt({2*(31-idx)})')
        b = bufs[idx & 3]
        a(f'v_mfma_f32_32x32x16_bf16 v[{64+16*t}:{79+16*t}], v[{b}:{b+3}], v[{128+4*u}:{131+4*u}], v[{64+16*t}:{79+16*t}]')
    a('s_barrier')
    stamp(a, 5)
    a('v_and_b32 v3, 7, v5')
    a('v_lshlrev_b32 v4, 3, v6')
    a('s_lshl_b32 s70, s3, 4')
    a('v_add_u32 v4, s70, v4')
    a('v_lshlrev_b32 v10, 10, v5')
    a.nop(6)
    for t in range(4):
        for i in range(8):
            a(f'v_cvt_pk_bf16_f32 v{128+8*t+i}, v{64+16*t+2*i}, v{65+16*t+2*i}')
        for i in range(2):
            a(f'v_xor_b32 v7, {2*t+i}, v3')
            a('v_add_u32 v7, v7, v4')
            a('v_lshl_add_u32 v7, v7, 4, v10')
            a(f'ds_write_b128 v7, v[{128+8*t+4*i}:{131+8*t+4*i}]')
    a('s_waitcnt lgkmcnt(0)')
    a('s_barrier')
    a('s_lshl_b32 s70, s3, 13')
    a('s_lshl_b32 s71, s2, 15')
    a('s_add_u32 s71, s71, s70')
    for i in range(8):
        a(f'v_xor_b32 v7, {i << 4}, v8')
        a('v_add_u32 v7, s70, v7')
        a(f'ds_read_b128 v[{128+4*i}:{131+4*i}], v7 offset:{i*1024}')
    for i in range(8):
        a(f's_waitcnt lgkmcnt({7-i})')
        a(f'buffer_store_dwordx4 v[{128+4*i}:{131+4*i}], v8, s[64:67], s71 offen')
        a('s_add_u32 s71, s71, 1024')
    if STAMP:
        stamp(a, 6)
        a('s_waitcnt vmcnt(0)')
        stamp(a, 7)
        a('s_cmp_lg_u32 s3, 0')
        a('s_cbranch_scc1 K3_EXIT')
        stamp_flush(a, 8, 18, 0)
    a.label('K3_EXIT')
    a('s_endpgm')

K4_AL = 0
K4_CB = 1024
K4_OC = 9216
K4_WUV = 11264
K4_LDS = K4_WUV + 16384
def gen_k4(a):
    a.label('k4_kernel')
    a('s_cmp_ge_u32 s2, 256')
    a('s_cbranch_scc1 K4_EXIT')
    a('s_load_dwordx2 s[4:5], s[0:1], 32')
    a('s_load_dwordx2 s[18:19], s[0:1], 96')
    wave_lane(a, 3, 2)
    lane_decomp(a)
    a('s_lshr_b32 s73, s2, 3')
    a('s_and_b32 s68, s2, 7')
    a('v_lshlrev_b32 v9, 3, v0')
    a('v_lshrrev_b32 v8, 3, v2')
    a('v_lshlrev_b32 v19, 20, v8')
    a('v_lshl_add_u32 v19, v5, 4, v19')
    a('v_lshlrev_b32 v12, 1, v4')
    a('v_xor_b32 v12, v12, v3')
    a('v_lshlrev_b32 v12, 4, v12')
    a('v_lshl_add_u32 v13, v4, 13, v12')
    a('v_xor_b32 v14, 128, v13')
    a('s_waitcnt lgkmcnt(0)')
    srd(a, 32, 18, 65536, WS_STATS)
    srd(a, 36, 18, 8388608, WS_OPART)
    srd(a, 20, 4, 4194304)
    a('s_lshl_b32 s70, s73, 11')
    a('buffer_load_dwordx2 v[10:11], v9, s[32:35], s70 offen')
    a('s_lshl_b32 s70, s3, 18')
    a('s_lshl_b32 s71, s73, 10')
    a('s_add_u32 s70, s70, s71')
    a('s_lshl_b32 s71, s68, 7')
    a('s_add_u32 s70, s70, s71')
    for i in range(8):
        a(f'buffer_load_dwordx4 v[{64+4*i}:{67+4*i}], v19, s[36:39], s70 offen')
        a('s_add_u32 s70, s70, 32768')
    a('s_lshr_b32 s70, s68, 1')
    a('s_lshl_b32 s70, s70, 7')
    a('s_and_b32 s71, s68, 1')
    a('s_lshl_b32 s71, s71, 2')
    a('s_add_u32 s70, s70, s71')
    a('s_lshl_b32 s71, s3, 5')
    a('s_add_u32 s70, s70, s71')
    a('s_lshl_b32 s70, s70, 13')
    a('s_lshl_b32 s71, s73, 8')
    a('s_add_u32 s70, s70, s71')
    a('s_lshl_b32 s71, s3, 12')
    a(f's_add_u32 s71, s71, {K4_WUV}')
    for i in range(4):
        a('s_mov_b32 m0, s71')
        a('s_add_u32 s71, s71, 1024')
        a(f'buffer_load_dwordx4 v{13 + ((i >> 1) & 1)}, s[20:23], s70 offen nt lds')
        a('s_add_u32 s70, s70, 65536')
    srd(a, 48, 18, 1048576, WS_CTXP)
    a('s_waitcnt vmcnt(12)')
    a('v_mov_b32 v20, v10')
    swz_reduce32(a, 20, 21, 'v_max_f32')
    a('v_sub_f32 v20, v10, v20')
    a('v_mul_f32 v20, 0x3fb8aa3b, v20')
    a('v_exp_f32 v20, v20')
    a('s_nop 0')
    a('v_mul_f32 v22, v20, v11')
    swz_reduce32(a, 22, 21, 'v_add_f32')
    a('v_rcp_f32 v22, v22')
    a('s_nop 0')
    a('v_mul_f32 v20, v20, v22')
    a('v_lshlrev_b32 v21, 2, v0')
    a(f'ds_write_b32 v21, v20 offset:{K4_AL}')
    a('s_waitcnt lgkmcnt(0)')
    a('s_barrier')
    a('v_lshlrev_b32 v21, 7, v8')
    a('s_lshl_b32 s70, s3, 5')
    a('v_add_u32 v21, s70, v21')
    a(f'ds_read_b128 v[32:35], v21 offset:{K4_AL}')
    a(f'ds_read_b128 v[36:39], v21 offset:{K4_AL+16}')
    for r in range(48, 56):
        a(f'v_mov_b32 v{r}, 0')
    a('s_waitcnt lgkmcnt(0)')
    for i in range(8):
        a(f's_waitcnt vmcnt({11-i})')
        for e in range(4):
            a(f'v_lshlrev_b32 v22, 16, v{64+4*i+e}')
            a(f'v_and_b32 v23, 0xffff0000, v{64+4*i+e}')
            a(f'v_fmac_f32 v{48+2*e}, v22, v{32+i}')
            a(f'v_fmac_f32 v{49+2*e}, v23, v{32+i}')
    a('v_lshlrev_b32 v21, 5, v0')
    a(f'ds_write_b128 v21, v[48:51] offset:{K4_CB}')
    a(f'ds_write_b128 v21, v[52:55] offset:{K4_CB+16}')
    a('s_waitcnt lgkmcnt(0)')
    a('s_barrier')
    a('s_cmp_lg_u32 s3, 0')
    a('s_cbranch_scc1 K4_NOSUM')
    for w in range(1, 4):
        a(f'ds_read_b128 v[{56+8*(w-1)}:{59+8*(w-1)}], v21 offset:{K4_CB+w*2048}')
        a(f'ds_read_b128 v[{60+8*(w-1)}:{63+8*(w-1)}], v21 offset:{K4_CB+w*2048+16}')
    a('s_waitcnt lgkmcnt(0)')
    for e in range(8):
        a(f'v_add_f32 v{48+e}, v{48+e}, v{56+e}')
        a(f'v_add_f32 v{64+e}, v{64+e}, v{72+e}')
        a(f'v_add_f32 v{48+e}, v{48+e}, v{64+e}')
    for e in range(4):
        a(f'v_cvt_pk_bf16_f32 v{56+e}, v{48+2*e}, v{49+2*e}')
    a('s_mov_b32 s70, 160')
    a('v_mul_lo_u32 v21, v8, s70')
    a('v_lshl_add_u32 v21, v5, 4, v21')
    a(f'ds_write_b128 v21, v[56:59] offset:{K4_OC}')
    a.label('K4_NOSUM')
    a('s_mov_b32 s70, 160')
    a('v_mul_lo_u32 v24, v5, s70')
    a('v_lshl_add_u32 v24, v4, 4, v24')
    a('s_lshl_b32 s69, s3, 2')
    tr_base_p256(a, 26, 28, 0, 69)
    a('s_add_u32 s69, s69, 2')
    tr_base_p256(a, 27, 28, 0, 69)
    for r in range(96, 104):
        a(f'v_mov_b32 v{r}, 0')
    a('v_lshlrev_b32 v28, 9, v5')
    a('v_lshl_add_u32 v28, v4, 4, v28')
    a('s_lshl_b32 s70, s2, 12')
    a('s_lshl_b32 s71, s3, 7')
    a('s_add_u32 s70, s70, s71')
    a('s_waitcnt vmcnt(0) lgkmcnt(0)')
    a('s_barrier')
    for ks in range(2):
        a(f'ds_read_b128 v[{32+4*ks}:{35+4*ks}], v24 offset:{K4_OC+ks*64}')
        for tl in range(2):
            r = 64 + 8 * ks + 4 * tl
            a(f'ds_read_b64_tr_b16 v[{r}:{r+1}], v{26+tl} offset:{K4_WUV+ks*8192}')
            a(f'ds_read_b64_tr_b16 v[{r+2}:{r+3}], v{26+tl} offset:{K4_WUV+ks*8192+1024}')
    a('s_waitcnt lgkmcnt(0)')
    for ks in range(2):
        for tl in range(2):
            r = 64 + 8 * ks + 4 * tl
            a(f'v_mfma_f32_16x16x32_bf16 v[{96+4*tl}:{99+4*tl}], v[{r}:{r+3}], v[{32+4*ks}:{35+4*ks}], v[{96+4*tl}:{99+4*tl}]')
    a.nop(10)
    a('buffer_store_dwordx4 v[96:99], v28, s[48:51], s70 offen')
    a('buffer_store_dwordx4 v[100:103], v28, s[48:51], s70 offen offset:64')
    a.label('K4_EXIT')
    a('s_endpgm')

K5_CX = 0
K5_WO = 3072
K5_LDS = K5_WO + 16384
def gen_k5(a):
    a.label('k5_kernel')
    a('s_cmp_ge_u32 s2, 256')
    a('s_cbranch_scc1 K5_EXIT')
    a('s_load_dwordx2 s[6:7], s[0:1], 40')
    a('s_load_dwordx2 s[18:19], s[0:1], 96')
    wave_lane(a, 3, 2)
    lane_decomp(a)
    a('s_lshr_b32 s73, s2, 3')
    a('s_and_b32 s68, s2, 7')
    a('v_lshrrev_b32 v8, 3, v2')
    a('v_lshrrev_b32 v22, 5, v0')
    a('v_and_b32 v23, 31, v0')
    a('v_lshlrev_b32 v28, 9, v22')
    a('v_lshl_add_u32 v28, v23, 4, v28')
    a('v_lshrrev_b32 v15, 1, v8')
    a('v_and_b32 v15, 1, v15')
    a('v_lshlrev_b32 v15, 1, v15')
    a('v_xor_b32 v15, v15, v5')
    a('v_lshlrev_b32 v15, 4, v15')
    a('v_lshl_add_u32 v15, v8, 10, v15')
    a('v_xor_b32 v16, 64, v15')
    a('s_waitcnt lgkmcnt(0)')
    srd(a, 48, 18, 1048576, WS_CTXP)
    srd(a, 24, 6, 4194304)
    a('s_lshl_b32 s70, s73, 15')
    for m in range(8):
        a(f'buffer_load_dwordx4 v[{64+4*m}:{67+4*m}], v28, s[48:51], s70 offen')
        a('s_add_u32 s70, s70, 4096')
    a('s_lshl_b32 s70, s73, 17')
    a('s_lshl_b32 s71, s3, 15')
    a('s_add_u32 s70, s70, s71')
    a('s_lshl_b32 s71, s68, 7')
    a('s_add_u32 s70, s70, s71')
    a('s_lshl_b32 s71, s3, 12')
    a(f's_add_u32 s71, s71, {K5_WO}')
    for i in range(4):
        a('s_mov_b32 m0, s71')
        a('s_add_u32 s71, s71, 1024')
        a(f'buffer_load_dwordx4 v{15 + (i & 1)}, s[24:27], s70 offen nt lds')
        a('s_add_u32 s70, s70, 8192')
    srd(a, 52, 18, 524288, WS_ATTP)
    a('s_mov_b32 s70, 288')
    a('v_mul_lo_u32 v22, v22, s70')
    a('v_lshl_add_u32 v22, v23, 3, v22')
    a('v_mul_lo_u32 v25, v5, s70')
    a('v_lshl_add_u32 v25, v4, 4, v25')
    a('s_lshl_b32 s69, s3, 1')
    tr_base_p128(a, 26, 27, K5_WO, 69)
    a('v_lshlrev_b32 v29, 11, v5')
    a('v_lshl_add_u32 v29, v4, 4, v29')
    a('s_lshl_b32 s70, s73, 14')
    a('s_lshl_b32 s71, s68, 8')
    a('s_add_u32 s70, s70, s71')
    a('s_lshl_b32 s71, s3, 6')
    a('s_add_u32 s70, s70, s71')
    for r in range(56, 60):
        a(f'v_mov_b32 v{r}, 0')
    a('s_waitcnt vmcnt(4)')
    for e in range(4):
        a(f'v_add_f32 v{64+e}, v{64+e}, v{68+e}')
        a(f'v_add_f32 v{72+e}, v{72+e}, v{76+e}')
        a(f'v_add_f32 v{80+e}, v{80+e}, v{84+e}')
        a(f'v_add_f32 v{88+e}, v{88+e}, v{92+e}')
        a(f'v_add_f32 v{64+e}, v{64+e}, v{72+e}')
        a(f'v_add_f32 v{80+e}, v{80+e}, v{88+e}')
        a(f'v_add_f32 v{64+e}, v{64+e}, v{80+e}')
    a('v_cvt_pk_bf16_f32 v68, v64, v65')
    a('v_cvt_pk_bf16_f32 v69, v66, v67')
    a(f'ds_write_b64 v22, v[68:69] offset:{K5_CX}')
    a('s_waitcnt vmcnt(0) lgkmcnt(0)')
    a('s_barrier')
    for ks in range(4):
        a(f'ds_read_b128 v[{32+4*ks}:{35+4*ks}], v25 offset:{K5_CX+ks*64}')
        a(f'ds_read_b64_tr_b16 v[{64+4*ks}:{65+4*ks}], v26 offset:{ks*4096}')
        a(f'ds_read_b64_tr_b16 v[{66+4*ks}:{67+4*ks}], v26 offset:{ks*4096+512}')
    for ks in range(4):
        a(f's_waitcnt lgkmcnt({12-3*(ks+1)})')
        a(f'v_mfma_f32_16x16x32_bf16 v[56:59], v[{64+4*ks}:{67+4*ks}], v[{32+4*ks}:{35+4*ks}], v[56:59]')
    a.nop(10)
    a('buffer_store_dwordx4 v[56:59], v29, s[52:55], s70 offen')
    a.label('K5_EXIT')
    a('s_endpgm')

KC_LDS = 8192
def gen_kc(a):
    a.label('kc_kernel')
    a('s_cmp_ge_u32 s2, 128')
    a('s_cbranch_scc1 KC_EXIT')
    a('s_load_dwordx2 s[4:5], s[0:1], 0')
    a('s_load_dwordx2 s[6:7], s[0:1], 80')
    a('s_load_dwordx2 s[8:9], s[0:1], 96')
    a('s_waitcnt lgkmcnt(0)')
    srd(a, 12, 4, 8192)
    srd(a, 16, 6, 8192)
    srd(a, 20, 8, 524288, WS_ATTP)
    srd(a, 24, 8, 43 * 16384, WS_FFNO)
    a('v_and_b32 v1, 7, v0')
    a('v_lshrrev_b32 v2, 3, v0')
    a('v_lshlrev_b32 v3, 14, v2')
    a('v_lshl_add_u32 v3, v1, 4, v3')
    a('s_lshl_b32 s41, s2, 7')
    a('buffer_load_dwordx4 v[8:11], v3, s[20:23], s41 offen')
    a('buffer_load_dwordx4 v[24:27], v3, s[24:27], s41 offen')
    a('s_add_u32 s41, s41, 524288')
    a('buffer_load_dwordx4 v[28:31], v3, s[24:27], s41 offen')
    a('v_lshlrev_b32 v4, 1, v0')
    a('s_lshl_b32 s42, s2, 6')
    a('buffer_load_ushort v5, v4, s[12:15], s42 offen')
    a('s_waitcnt vmcnt(1)')
    for e in range(4):
        a(f'v_add_f32 v{24+e}, v{24+e}, v{28+e}')
    a('v_lshlrev_b32 v6, 4, v0')
    a('ds_write_b128 v6, v[8:11]')
    a('ds_write_b128 v6, v[24:27] offset:4096')
    a('s_waitcnt lgkmcnt(0)')
    a('s_barrier')
    a('v_cmp_gt_u32 vcc, 32, v0')
    a('s_and_saveexec_b64 s[28:29], vcc')
    a('s_cbranch_execz KC_EXIT')
    a('v_lshlrev_b32 v6, 2, v0')
    for g in range(32):
        a(f'ds_read_b32 v{32+g}, v6 offset:{g*128}')
        a(f'ds_read_b32 v{64+g}, v6 offset:{4096+g*128}')
    a('s_waitcnt lgkmcnt(0)')
    for base in (32, 64):
        for step in (16, 8, 4, 2, 1):
            for i in range(step):
                a(f'v_add_f32 v{base+i}, v{base+i}, v{base+i+step}')
    a('s_waitcnt vmcnt(0)')
    a('v_lshlrev_b32 v5, 16, v5')
    bf16_round_pair(a, 32, 64, 32, 64, 7)
    a('v_add_f32 v32, v32, v5')
    bf16_round_pair(a, 32, 33, 32, 32, 7)
    a('v_add_f32 v32, v32, v64')
    a('v_cvt_pk_bf16_f32 v32, v32, v32')
    a('buffer_store_short v32, v4, s[16:19], s42 offen')
    a.label('KC_EXIT')
    a('s_endpgm')


CKV_POLICY = 'nt'
CODE_PREFETCH = False
NPF = 4
def main(out):
    a = Asm()
    a.raw(HDR.rstrip('\n'))
    ks = (('k1_kernel', gen_k1, 256, 256, K1_LDS), ('k2_kernel', gen_k2, 256, 256, K2_LDS), ('k3_kernel', gen_k3, 256, 256, K3_LDS),
          ('k4_kernel', gen_k4, 256, 256, K4_LDS), ('k5_kernel', gen_k5, 256, 256, K5_LDS), ('kc_kernel', gen_kc, 128, 256, KC_LDS))
    for name, g, grid, blk, lds in ks:
        a.raw(f'; @launch kernel={name} grid=({grid},1,1) block=({blk},1,1) lds={lds}')
    a.raw('.amdgcn_target "amdgcn-amd-amdhsa--gfx950"')
    a.raw('.text')
    for name, g, grid, blk, lds in ks:
        a.raw(f'.globl {name}')
        a.raw('.p2align 8')
        a.raw(f'.type {name},@function')
        g(a)
    a.raw('.p2align 4')
    a.raw('CODE_END:')
    a.raw('s_endpgm')
    a.raw('.section .rodata,"a"')
    for name, g, grid, blk, lds in ks:
        a.raw('.p2align 6')
        a.raw(kd(name))
    open(out, 'w').write('\n'.join(a.L) + '\n')

if __name__ == '__main__':
    if 'stamp' in sys.argv[2:]: STAMP = True
    if 'ckvplain' in sys.argv[2:]: CKV_POLICY = ''
    if 'cpf' in sys.argv[2:]: CODE_PREFETCH = True
    main(sys.argv[1] if len(sys.argv) > 1 else 'parallel_sum__compressed_kv_cla__geglu_ffn__decode.s')
```

```python
import sys, math, struct
sys.path.insert(0, 'work')
from gen1 import Asm, srd, HDR, kd, bf16_round_pair, swz_reduce32, fsw

def f2u(f): return struct.unpack('<I', struct.pack('<f', f))[0]

WS_QPART = 0x0
WS_QABS = 0x80000
WS_FFNP = 0xC0000
WS_STATS = 0x180000
WS_CTXP = 0x190000
WS_ATTP = 0x290000
WS_FFNO = 0x310000
WS_OPART = 0x400000
WS_STAMP = 0xF000000
POLL_LIMIT = 200000

STAMP = False
def stamp(a, i):
    if STAMP:
        a(f's_memtime s[{84+2*i}:{85+2*i}]')
        a('s_waitcnt lgkmcnt(0)')
def stamp_flush(a, n, ws, kidx):
    if not STAMP: return
    srd(a, 76, ws, 1 << 20, WS_STAMP + kidx * 65536)
    a('s_lshl_b32 s80, s2, 7')
    a('v_mov_b32 v250, 0')
    for i in range(n):
        a(f'v_mov_b32 v251, s{84+2*i}')
        a(f'buffer_store_dword v251, v250, s[76:79], s80 offen offset:{4*i}')

def wave_lane(a, s_wave, v_lane):
    a('v_lshrrev_b32 v1, 6, v0')
    a(f'v_and_b32 v{v_lane}, 63, v0')
    a(f'v_readfirstlane_b32 s{s_wave}, v1')
    a('s_nop 3')

def lane_decomp(a):
    a('v_and_b32 v3, 15, v2')
    a('v_lshrrev_b32 v4, 4, v2')
    a('v_and_b32 v5, 7, v2')
    a('v_lshrrev_b32 v6, 2, v2')
    a('v_and_b32 v6, 3, v6')
    a('v_and_b32 v7, 3, v2')

def tr_base_p128(a, dst, tmp, base, s_tile2):
    a(f'v_lshrrev_b32 v{tmp}, 1, v6')
    a(f'v_and_b32 v{dst}, 1, v4')
    a(f'v_lshl_add_u32 v{tmp}, v{dst}, 1, v{tmp}')
    a(f'v_lshlrev_b32 v{tmp}, 1, v{tmp}')
    a(f'v_lshrrev_b32 v{dst}, 1, v7')
    a(f'v_add_u32 v{dst}, s{s_tile2}, v{dst}')
    a(f'v_xor_b32 v{tmp}, v{tmp}, v{dst}')
    a(f'v_lshl_add_u32 v{dst}, v4, 3, v6')
    a(f'v_lshlrev_b32 v{dst}, 7, v{dst}')
    a(f'v_lshl_add_u32 v{dst}, v{tmp}, 4, v{dst}')
    a(f'v_and_b32 v{tmp}, 1, v7')
    a(f'v_lshl_add_u32 v{dst}, v{tmp}, 3, v{dst}')
    a(f'v_add_u32 v{dst}, {base}, v{dst}')

def tr_base_p256(a, dst, tmp, base, s_tile2):
    a(f'v_and_b32 v{tmp}, 1, v4')
    a(f'v_lshl_add_u32 v{tmp}, v{tmp}, 2, v6')
    a(f'v_lshlrev_b32 v{tmp}, 1, v{tmp}')
    a(f'v_xor_b32 v{tmp}, s{s_tile2}, v{tmp}')
    a(f'v_lshrrev_b32 v{dst}, 1, v7')
    a(f'v_add_u32 v{tmp}, v{tmp}, v{dst}')
    a(f'v_lshl_add_u32 v{dst}, v4, 3, v6')
    a(f'v_lshlrev_b32 v{dst}, 8, v{dst}')
    a(f'v_lshl_add_u32 v{dst}, v{tmp}, 4, v{dst}')
    a(f'v_and_b32 v{tmp}, 1, v7')
    a(f'v_lshl_add_u32 v{dst}, v{tmp}, 3, v{dst}')
    a(f'v_add_u32 v{dst}, {base}, v{dst}')

def ln_issue(a, srd_x, s_wave, t):
    a(f'v_lshrrev_b32 v{t}, 5, v2')
    a(f's_lshl_b32 s70, s{s_wave}, 1')
    a(f'v_add_u32 v{t}, s70, v{t}')
    a(f'v_and_b32 v{t+1}, 31, v2')
    a(f'v_lshlrev_b32 v{t+2}, 5, v{t+1}')
    a(f'v_lshl_add_u32 v{t+2}, v{t}, 10, v{t+2}')
    a(f'buffer_load_dwordx4 v[{t+4}:{t+7}], v{t+2}, s[{srd_x}:{srd_x+3}], 0 offen')
    a(f'buffer_load_dwordx4 v[{t+8}:{t+11}], v{t+2}, s[{srd_x}:{srd_x+3}], 0 offen offset:16')

def ln_compute(a, t, vm):
    a(f's_waitcnt vmcnt({vm})')
    for i in range(8):
        a(f'v_lshlrev_b32 v{t+12+2*i}, 16, v{t+4+i}')
        a(f'v_and_b32 v{t+12+2*i+1}, 0xffff0000, v{t+4+i}')
    X = t + 12; S = t + 28; TMP = t + 29; M = t + 30; V = t + 31; R = t + 32
    a(f'v_add_f32 v{S}, v{X}, v{X+1}')
    for i in range(2, 16):
        a(f'v_add_f32 v{S}, v{S}, v{X+i}')
    swz_reduce32(a, S, TMP, 'v_add_f32')
    a(f'v_mul_f32 v{M}, 0x3b000000, v{S}')
    a(f'v_sub_f32 v{TMP}, v{X}, v{M}')
    a(f'v_mul_f32 v{V}, v{TMP}, v{TMP}')
    for i in range(1, 16):
        a(f'v_sub_f32 v{TMP}, v{X+i}, v{M}')
        a(f'v_fmac_f32 v{V}, v{TMP}, v{TMP}')
    swz_reduce32(a, V, TMP, 'v_add_f32')
    a(f'v_mul_f32 v{V}, 0x3b000000, v{V}')
    bf16_round_pair(a, M, V, M, V, TMP)
    a(f'v_add_f32 v{V}, 0x3727c5ac, v{V}')
    bf16_round_pair(a, V, TMP, V, V, S)
    a(f'v_sqrt_f32 v{V}, v{V}')
    a('s_nop 0')
    bf16_round_pair(a, V, TMP, V, V, S)
    a(f'v_rcp_f32 v{R}, v{V}')
    a('s_nop 0')
    for i in range(8):
        a(f'v_sub_f32 v{X+2*i}, v{X+2*i}, v{M}')
        a(f'v_sub_f32 v{X+2*i+1}, v{X+2*i+1}, v{M}')
        bf16_round_pair(a, X+2*i, X+2*i+1, X+2*i, X+2*i+1, TMP)
    for i in range(16):
        a(f'v_mul_f32 v{TMP}, v{X+i}, v{R}')
        a(f'v_fma_f32 v{S}, -v{TMP}, v{V}, v{X+i}')
        a(f'v_fma_f32 v{X+i}, v{S}, v{R}, v{TMP}')
    for i in range(8):
        a(f'v_cvt_pk_bf16_f32 v{t+4+i}, v{X+2*i}, v{X+2*i+1}')

def atomic_arrive(a, srd_dbg, v_off, v_one):
    a('s_mov_b64 exec, 1')
    a(f'buffer_atomic_add v{v_one}, v{v_off}, s[{srd_dbg}:{srd_dbg+3}], 0 offen sc1')
    a('s_mov_b64 exec, -1')

def poll(a, name, srd_dbg, v_off, v_tmp, target):
    a('s_mov_b32 s72, 0')
    a.label(f'{name}_LOOP')
    a(f'buffer_load_dword v{v_tmp}, v{v_off}, s[{srd_dbg}:{srd_dbg+3}], 0 offen sc1')
    a('s_waitcnt vmcnt(0)')
    a(f'v_cmp_le_u32 vcc, {target}, v{v_tmp}')
    a('s_nop 3')
    a('s_cmp_eq_u64 vcc, exec')
    a(f's_cbranch_scc1 {name}_DONE')
    a('s_add_u32 s72, s72, 1')
    a(f's_cmp_lt_u32 s72, {POLL_LIMIT}')
    a(f's_cbranch_scc0 {name}_DONE')
    a('s_sleep 1')
    a(f's_branch {name}_LOOP')
    a.label(f'{name}_DONE')

def gelu4(a, regs, tmp):
    c1 = -2.0 * math.log2(math.e) * math.sqrt(2.0 / math.pi)
    a(f's_mov_b32 s70, {f2u(0.044715):#x}')
    a(f's_mov_b32 s71, {f2u(c1):#x}')
    for r in regs:
        a(f'v_mul_f32 v{tmp}, v{r}, v{r}')
        a(f'v_mul_f32 v{tmp}, s70, v{tmp}')
        a(f'v_fma_f32 v{tmp}, v{tmp}, v{r}, v{r}')
        a(f'v_mul_f32 v{tmp}, s71, v{tmp}')
        a(f'v_exp_f32 v{tmp}, v{tmp}')
        a('s_nop 0')
        a(f'v_add_f32 v{tmp}, 1.0, v{tmp}')
        a(f'v_rcp_f32 v{tmp}, v{tmp}')
        a('s_nop 0')
        a(f'v_mul_f32 v{r}, v{r}, v{tmp}')

K1_WQT = 0
K1_FT = 16384
K1_XNA = 32768
K1_XNF = K1_XNA + 2304
K1_LDS = K1_XNF + 1280

def gen_k1(a):
    a.label('k1_kernel')
    a('s_cmp_ge_u32 s2, 256')
    a('s_cbranch_scc1 K1_EXIT')
    a('s_load_dwordx2 s[4:5], s[0:1], 0')
    a('s_load_dwordx2 s[8:9], s[0:1], 16')
    a('s_load_dwordx4 s[12:15], s[0:1], 56')
    a('s_load_dwordx2 s[18:19], s[0:1], 96')
    wave_lane(a, 3, 2)
    lane_decomp(a)
    a('s_lshr_b32 s73, s2, 3')
    a('s_lshr_b32 s74, s2, 1')
    a('s_and_b32 s74, s74, 3')
    a('s_and_b32 s75, s2, 1')
    a('s_and_b32 s68, s2, 7')
    a('v_lshrrev_b32 v8, 3, v2')
    a('v_lshrrev_b32 v9, 1, v8')
    a('v_and_b32 v9, 1, v9')
    a('v_lshlrev_b32 v9, 1, v9')
    a('v_xor_b32 v9, v9, v5')
    a('v_lshlrev_b32 v9, 4, v9')
    a('v_lshl_add_u32 v10, v8, 13, v9')
    a('v_xor_b32 v11, 64, v10')
    a('s_mov_b32 s70, 2752')
    a('v_mul_lo_u32 v12, v8, s70')
    a('v_add_u32 v13, v12, v9')
    a('v_xor_b32 v9, 64, v9')
    a('v_add_u32 v12, v12, v9')
    a('s_waitcnt lgkmcnt(0)')
    srd(a, 20, 4, 8192)
    srd(a, 28, 8, 4194304)
    T = 60
    ln_issue(a, 20, 3, T)
    a('s_lshl_b32 s70, s74, 20')
    a('s_lshl_b32 s71, s3, 18')
    a('s_add_u32 s70, s70, s71')
    a('s_lshl_b32 s71, s73, 8')
    a('s_add_u32 s70, s70, s71')
    a('s_lshl_b32 s71, s75, 7')
    a('s_add_u32 s70, s70, s71')
    a('s_lshl_b32 s71, s3, 12')
    for i in range(4):
        a('s_mov_b32 m0, s71')
        a('s_add_u32 s71, s71, 1024')
        a(f'buffer_load_dwordx4 v{10 + (i & 1)}, s[28:31], s70 offen nt lds')
        a('s_add_u32 s70, s70, 65536')
    a('s_cmp_ge_u32 s3, 2')
    a('s_cselect_b32 s76, s14, s12')
    a('s_cselect_b32 s77, s15, s13')
    a('s_and_b32 s77, s77, 0xffff')
    a('s_mov_b32 s78, 1409024')
    a('s_mov_b32 s79, 0x00020000')
    a('s_and_b32 s70, s3, 1')
    a('s_lshl_b32 s70, s70, 5')
    a('s_lshl_b32 s71, s68, 6')
    a('s_add_u32 s70, s70, s71')
    a('s_mul_i32 s70, s70, 2752')
    a('s_lshl_b32 s71, s73, 7')
    a('s_add_u32 s70, s70, s71')
    a('s_cmp_ge_u32 s2, 176')
    a('s_cselect_b32 s70, 0x40000000, s70')
    a('s_lshl_b32 s71, s3, 12')
    a(f's_add_u32 s71, s71, {K1_FT}')
    for i in range(4):
        a('s_mov_b32 m0, s71')
        a('s_add_u32 s71, s71, 1024')
        a(f'buffer_load_dwordx4 v{13 - (i & 1)}, s[76:79], s70 offen nt lds')
        a('s_add_u32 s70, s70, 22016')
    if TOUCH:
        a('s_load_dwordx2 s[86:87], s[0:1], 8')
        a('s_load_dwordx4 s[88:91], s[0:1], 24')
        a('s_load_dwordx2 s[92:93], s[0:1], 40')
        a('s_load_dwordx2 s[94:95], s[0:1], 72')
        a('s_waitcnt lgkmcnt(0)')
        srd(a, 96, 86, 33554432)
        a('v_lshlrev_b32 v21, 11, v2')
        a('s_lshl_b32 s70, s2, 17')
        a('buffer_load_dword v200, v21, s[96:99], s70 offen')
        srd(a, 96, 88, 4194304)
        a('v_lshlrev_b32 v21, 13, v2')
        a('s_lshl_b32 s70, s68, 19')
        a('s_lshl_b32 s71, s73, 8')
        a('s_add_u32 s70, s70, s71')
        a('buffer_load_dword v201, v21, s[96:99], s70 offen')
        srd(a, 96, 90, 4194304)
        a('s_lshr_b32 s70, s68, 1')
        a('s_lshl_b32 s70, s70, 20')
        a('s_add_u32 s70, s70, s71')
        a('v_lshlrev_b32 v21, 14, v2')
        a('buffer_load_dword v202, v21, s[96:99], s70 offen')
        srd(a, 96, 92, 4194304)
        a('v_lshlrev_b32 v21, 11, v2')
        a('s_lshl_b32 s70, s73, 17')
        a('buffer_load_dword v203, v21, s[96:99], s70 offen')
        srd(a, 96, 94, 1409024)
        a('v_lshlrev_b32 v21, 9, v2')
        a('s_lshr_b32 s70, s2, 2')
        a('s_lshl_b32 s70, s70, 15')
        a('buffer_load_dword v204, v21, s[96:99], s70 offen')
        srd(a, 96, 18, 0xC00000)
        a('v_lshrrev_b32 v21, 3, v2')
        a('v_lshlrev_b32 v21, 20, v21')
        a('v_lshl_add_u32 v21, v5, 15, v21')
        a('s_lshl_b32 s70, s3, 18')
        a('s_lshl_b32 s71, s73, 10')
        a('s_add_u32 s70, s70, s71')
        a(f's_add_u32 s70, s70, {WS_OPART}')
        a('buffer_load_dword v205, v21, s[96:99], s70 offen')
        a('v_lshlrev_b32 v21, 9, v2')
        a('s_lshl_b32 s70, s2, 15')
        a(f's_add_u32 s70, s70, {WS_OPART}')
        a('buffer_load_dword v206, v21, s[96:99], s70 offen')
        a('v_lshlrev_b32 v21, 16, v2')
        a('buffer_load_dword v207, v21, s[96:99], 0 offen')
    if PF1:
        a('s_load_dwordx2 s[86:87], s[0:1], 8')
        a('s_waitcnt lgkmcnt(0)')
        srd(a, 96, 86, 33554432)
        a('v_lshlrev_b32 v21, 7, v2')
        a('s_lshl_b32 s70, s2, 17')
        a('s_lshl_b32 s71, s3, 13')
        a('s_add_u32 s70, s70, s71')
        for i in range(PF1):
            a(f'buffer_load_dword v{200+i}, v21, s[96:99], s70 offen')
            a('s_add_u32 s70, s70, 32768')
    if CODE_PREFETCH:
        a('s_getpc_b64 s[84:85]')
        a.label('K1_PC')
        a('s_add_u32 s84, s84, k2_kernel-K1_PC')
        a('s_addc_u32 s85, s85, 0')
        a('s_lshl_b32 s70, s3, 10')
        a('v_lshl_add_u32 v21, v2, 4, s70')
        for i in range(NPF):
            a('v_min_u32 v22, CODE_END-k2_kernel-16, v21')
            a(f'global_load_dwordx4 v[{200+4*i}:{203+4*i}], v22, s[84:85]')
            a('v_add_u32 v21, 4096, v21')
    srd(a, 48, 18, 524288, WS_QPART)
    srd(a, 56, 18, 0xB0000, WS_FFNP)
    ln_compute(a, T, 8 + ((NPF if CODE_PREFETCH else 0) + (8 if TOUCH else 0) + PF1))
    a('s_mov_b32 s70, 288')
    a(f'v_mul_lo_u32 v14, v{T}, s70')
    a(f'v_and_b32 v15, 7, v{T+1}')
    a('v_lshl_add_u32 v14, v15, 5, v14')
    a(f'v_lshrrev_b32 v15, 3, v{T+1}')
    a('v_cmp_eq_u32 vcc, s74, v15')
    a('s_and_saveexec_b64 s[80:81], vcc')
    a(f'ds_write_b128 v14, v[{T+4}:{T+7}] offset:{K1_XNA}')
    a(f'ds_write_b128 v14, v[{T+8}:{T+11}] offset:{K1_XNA+16}')
    a('s_mov_b64 exec, s[80:81]')
    a('s_mov_b32 s70, 160')
    a(f'v_mul_lo_u32 v14, v{T}, s70')
    a(f'v_and_b32 v15, 3, v{T+1}')
    a('v_lshl_add_u32 v14, v15, 5, v14')
    a(f'v_lshrrev_b32 v15, 2, v{T+1}')
    a('v_cmp_eq_u32 vcc, s68, v15')
    a('s_and_saveexec_b64 s[80:81], vcc')
    a(f'ds_write_b128 v14, v[{T+4}:{T+7}] offset:{K1_XNF}')
    a(f'ds_write_b128 v14, v[{T+8}:{T+11}] offset:{K1_XNF+16}')
    a('s_mov_b64 exec, s[80:81]')
    a('s_mov_b32 s70, 288')
    a('v_mul_lo_u32 v15, v5, s70')
    a('v_lshl_add_u32 v15, v4, 4, v15')
    a('s_mov_b32 s70, 160')
    a('v_mul_lo_u32 v17, v5, s70')
    a('v_lshl_add_u32 v17, v4, 4, v17')
    a('s_lshl_b32 s69, s3, 1')
    tr_base_p128(a, 18, 19, 0, 69)
    for r in range(24, 36):
        a(f'v_mov_b32 v{r}, 0')
    a('v_lshlrev_b32 v19, 9, v5')
    a('v_lshl_add_u32 v19, v4, 4, v19')
    a('s_lshl_b32 s82, s73, 14')
    a('s_lshl_b32 s71, s74, 12')
    a('s_add_u32 s82, s82, s71')
    a('s_lshl_b32 s71, s75, 8')
    a('s_add_u32 s82, s82, s71')
    a('s_lshl_b32 s71, s3, 6')
    a('s_add_u32 s82, s82, s71')
    a('s_mov_b32 s70, 5632')
    a('v_mul_lo_u32 v20, v5, s70')
    a('v_lshl_add_u32 v20, v4, 4, v20')
    a('s_mul_i32 s83, s68, 45056')
    a('s_lshl_b32 s71, s73, 8')
    a('s_add_u32 s83, s83, s71')
    a('s_lshl_b32 s71, s3, 6')
    a('s_add_u32 s83, s83, s71')
    a('s_cmp_ge_u32 s2, 176')
    a('s_cselect_b32 s83, 0x40000000, s83')
    a(f's_waitcnt vmcnt({4 + ((NPF if CODE_PREFETCH else 0) + (8 if TOUCH else 0) + PF1)}) lgkmcnt(0)')
    a('s_barrier')
    for ks in range(4):
        a(f'ds_read_b128 v[{36+8*ks}:{39+8*ks}], v15 offset:{K1_XNA+ks*64}')
        a(f'ds_read_b64_tr_b16 v[{40+8*ks}:{41+8*ks}], v18 offset:{K1_WQT+ks*4096}')
        a(f'ds_read_b64_tr_b16 v[{42+8*ks}:{43+8*ks}], v18 offset:{K1_WQT+ks*4096+512}')
    for ks in range(4):
        a(f's_waitcnt lgkmcnt({12-3*(ks+1)})')
        a(f'v_mfma_f32_16x16x32_bf16 v[24:27], v[{40+8*ks}:{43+8*ks}], v[{36+8*ks}:{39+8*ks}], v[24:27]')
    a(f's_waitcnt vmcnt({((NPF if CODE_PREFETCH else 0) + (8 if TOUCH else 0) + PF1)})')
    a.nop(8)
    a('buffer_store_dwordx4 v[24:27], v19, s[48:51], s82 offen')
    a('s_barrier')
    for ks in range(2):
        a(f'ds_read_b128 v[{36+4*ks}:{39+4*ks}], v17 offset:{K1_XNF+ks*64}')
    for mat in range(2):
        for ks in range(2):
            r = 44 + 8 * mat + 4 * ks
            a(f'ds_read_b64_tr_b16 v[{r}:{r+1}], v18 offset:{K1_FT+mat*8192+ks*4096}')
            a(f'ds_read_b64_tr_b16 v[{r+2}:{r+3}], v18 offset:{K1_FT+mat*8192+ks*4096+512}')
    a('s_waitcnt lgkmcnt(0)')
    for mat in range(2):
        for ks in range(2):
            r = 44 + 8 * mat + 4 * ks
            a(f'v_mfma_f32_16x16x32_bf16 v[{28+4*mat}:{31+4*mat}], v[{r}:{r+3}], v[{36+4*ks}:{39+4*ks}], v[{28+4*mat}:{31+4*mat}]')
    a.nop(10)
    a('buffer_store_dwordx4 v[28:31], v20, s[56:59], s83 offen')
    a('s_add_u32 s83, s83, 360448')
    a('buffer_store_dwordx4 v[32:35], v20, s[56:59], s83 offen')
    a.label('K1_EXIT')
    a('s_endpgm')

K2_QB = 0
K2_FS = 2304
K2_HB = K2_FS + 4096
K2_WD = 9216
K2_LDS = K2_WD + 8192
def gen_k2(a):
    a.label('k2_kernel')
    a('s_cmp_ge_u32 s2, 256')
    a('s_cbranch_scc1 K2_EXIT')
    a('s_load_dwordx2 s[10:11], s[0:1], 24')
    a('s_load_dwordx2 s[8:9], s[0:1], 72')
    a('s_load_dwordx2 s[18:19], s[0:1], 96')
    wave_lane(a, 3, 2)
    lane_decomp(a)
    a('s_lshr_b32 s73, s2, 3')
    a('s_and_b32 s68, s2, 7')
    a('s_lshr_b32 s74, s2, 2')
    a('s_and_b32 s75, s2, 3')
    a('v_lshrrev_b32 v22, 5, v0')
    a('v_and_b32 v23, 31, v0')
    a('v_lshlrev_b32 v19, 9, v22')
    a('v_lshl_add_u32 v19, v23, 4, v19')
    a('v_lshlrev_b32 v12, 13, v3')
    a('v_lshl_add_u32 v12, v4, 4, v12')
    a('v_lshrrev_b32 v8, 3, v2')
    a('s_waitcnt lgkmcnt(0)')
    srd(a, 48, 18, 524288, WS_QPART)
    srd(a, 32, 10, 4194304)
    a('s_lshl_b32 s70, s73, 14')
    for m in range(4):
        a(f'buffer_load_dwordx4 v[{36+4*m}:{39+4*m}], v19, s[48:51], s70 offen')
        a('s_add_u32 s70, s70, 4096')
    a('s_lshl_b32 s70, s68, 19')
    a('s_lshl_b32 s71, s3, 17')
    a('s_add_u32 s70, s70, s71')
    a('s_lshl_b32 s71, s73, 8')
    a('s_add_u32 s70, s70, s71')
    for st in range(4):
        a(f'buffer_load_dwordx4 v[{104+4*st}:{107+4*st}], v12, s[32:35], s70 offen offset:{st*64} nt')
    srd(a, 40, 18, 0xB0000, WS_FFNP)
    srd(a, 28, 8, 1409024)
    a('s_mov_b32 s70, 5632')
    a('v_mul_lo_u32 v18, v8, s70')
    a('v_lshl_add_u32 v18, v5, 4, v18')
    a('s_and_b32 s70, s3, 1')
    a('s_mul_i32 s70, s70, 360448')
    a('s_lshr_b32 s71, s3, 1')
    a('s_mul_i32 s71, s71, 180224')
    a('s_add_u32 s70, s70, s71')
    a('s_lshl_b32 s71, s74, 7')
    a('s_add_u32 s70, s70, s71')
    a('s_cmp_ge_u32 s2, 172')
    a('s_cselect_b32 s70, 0x40000000, s70')
    for i in range(4):
        a(f'buffer_load_dwordx4 v[{120+4*i}:{123+4*i}], v18, s[40:43], s70 offen')
        a('s_add_u32 s70, s70, 45056')
    a('v_lshlrev_b32 v13, 1, v4')
    a('v_xor_b32 v13, v13, v3')
    a('v_lshlrev_b32 v13, 4, v13')
    a('v_lshl_add_u32 v17, v4, 10, v13')
    a('s_and_b32 s70, s3, 1')
    a('s_lshl_b32 s70, s70, 7')
    a('v_xor_b32 v17, s70, v17')
    a('s_lshl_b32 s70, s74, 15')
    a('s_lshl_b32 s71, s3, 13')
    a('s_add_u32 s70, s70, s71')
    a('s_lshl_b32 s71, s75, 8')
    a('s_add_u32 s70, s70, s71')
    a('s_cmp_ge_u32 s2, 172')
    a('s_cselect_b32 s70, 0x40000000, s70')
    a('s_lshl_b32 s71, s3, 11')
    a(f's_add_u32 s71, s71, {K2_WD}')
    for i in range(2):
        a('s_mov_b32 m0, s71')
        a('s_add_u32 s71, s71, 1024')
        a('buffer_load_dwordx4 v17, s[28:31], s70 offen nt lds')
        a('s_add_u32 s70, s70, 4096')
    if PF2:
        a('s_load_dwordx2 s[86:87], s[0:1], 8')
        a('s_waitcnt lgkmcnt(0)')
        srd(a, 96, 86, 33554432)
        a('v_lshlrev_b32 v21, 7, v2')
        a('s_lshl_b32 s70, s2, 17')
        a('s_lshl_b32 s71, s3, 13')
        a('s_add_u32 s70, s70, s71')
        a(f's_add_u32 s70, s70, {PF1*32768}')
        for i in range(PF2):
            a(f'buffer_load_dword v{200+i}, v21, s[96:99], s70 offen')
            a('s_add_u32 s70, s70, 32768')
    srd(a, 52, 18, 262144, WS_QABS)
    srd(a, 56, 18, 43 * 16384, WS_FFNO)
    a('s_mov_b32 s70, 288')
    a('v_mul_lo_u32 v22, v22, s70')
    a('v_lshl_add_u32 v22, v23, 3, v22')
    a('v_mul_lo_u32 v16, v5, s70')
    a('v_lshl_add_u32 v16, v4, 4, v16')
    a('s_lshl_b32 s69, s3, 2')
    tr_base_p256(a, 26, 28, 0, 69)
    a('s_add_u32 s69, s69, 2')
    tr_base_p256(a, 27, 28, 0, 69)
    for r in range(24, 28):
        pass
    a(f's_waitcnt vmcnt({10+PF2})')
    for e in range(4):
        a(f'v_add_f32 v{36+e}, v{36+e}, v{40+e}')
        a(f'v_add_f32 v{44+e}, v{44+e}, v{48+e}')
        a(f'v_add_f32 v{36+e}, v{36+e}, v{44+e}')
    a('v_cvt_pk_bf16_f32 v40, v36, v37')
    a('v_cvt_pk_bf16_f32 v41, v38, v39')
    a(f'ds_write_b64 v22, v[40:41] offset:{K2_QB}')
    a('s_waitcnt lgkmcnt(0)')
    a('s_barrier')
    for st in range(4):
        a(f'ds_read_b128 v[{36+4*st}:{39+4*st}], v16 offset:{K2_QB+st*64}')
    for r in range(56, 60):
        a(f'v_mov_b32 v{r}, 0')
    a('v_lshlrev_b32 v19, 15, v5')
    a('v_lshl_add_u32 v19, v4, 3, v19')
    a('s_lshl_b32 s70, s73, 10')
    a('s_lshl_b32 s71, s68, 7')
    a('s_add_u32 s70, s70, s71')
    a('s_lshl_b32 s71, s3, 5')
    a('s_add_u32 s70, s70, s71')
    a(f's_waitcnt vmcnt({6+PF2}) lgkmcnt(0)')
    for st in range(4):
        a(f'v_mfma_f32_16x16x32_bf16 v[56:59], v[{104+4*st}:{107+4*st}], v[{36+4*st}:{39+4*st}], v[56:59]')
    a.nop(10)
    a('v_cvt_pk_bf16_f32 v60, v56, v57')
    a('v_cvt_pk_bf16_f32 v61, v58, v59')
    a('buffer_store_dwordx2 v[60:61], v19, s[52:55], s70 offen')
    a(f's_waitcnt vmcnt({3+PF2})')
    for e in range(4):
        a(f'v_add_f32 v{120+e}, v{120+e}, v{124+e}')
        a(f'v_add_f32 v{128+e}, v{128+e}, v{132+e}')
        a(f'v_add_f32 v{120+e}, v{120+e}, v{128+e}')
    a('v_lshlrev_b32 v22, 4, v0')
    a(f'ds_write_b128 v22, v[120:123] offset:{K2_FS}')
    a('s_waitcnt lgkmcnt(0)')
    a('s_barrier')
    a('s_cmp_lg_u32 s3, 0')
    a('s_cbranch_scc1 K2_NOACT')
    a(f'ds_read_b128 v[96:99], v22 offset:{K2_FS}')
    a(f'ds_read_b128 v[100:103], v22 offset:{K2_FS+1024}')
    a(f'ds_read_b128 v[104:107], v22 offset:{K2_FS+2048}')
    a(f'ds_read_b128 v[108:111], v22 offset:{K2_FS+3072}')
    a('s_waitcnt lgkmcnt(0)')
    for e in range(4):
        a(f'v_add_f32 v{96+e}, v{96+e}, v{104+e}')
        a(f'v_add_f32 v{100+e}, v{100+e}, v{108+e}')
    bf16_round_pair(a, 96, 97, 96, 97, 23)
    bf16_round_pair(a, 98, 99, 98, 99, 23)
    bf16_round_pair(a, 100, 101, 100, 101, 23)
    bf16_round_pair(a, 102, 103, 102, 103, 23)
    gelu4(a, [96, 97, 98, 99], 23)
    bf16_round_pair(a, 96, 97, 96, 97, 23)
    bf16_round_pair(a, 98, 99, 98, 99, 23)
    for e in range(4):
        a(f'v_mul_f32 v{96+e}, v{96+e}, v{100+e}')
    a('v_cvt_pk_bf16_f32 v104, v96, v97')
    a('v_cvt_pk_bf16_f32 v105, v98, v99')
    a('s_mov_b32 s70, 288')
    a('v_mul_lo_u32 v22, v8, s70')
    a('v_lshl_add_u32 v22, v5, 3, v22')
    a(f'ds_write_b64 v22, v[104:105] offset:{K2_HB}')
    a.label('K2_NOACT')
    a(f's_waitcnt vmcnt({1+PF2}) lgkmcnt(0)')
    a('s_barrier')
    a(f'ds_read_b128 v[32:35], v16 offset:{K2_HB}')
    for tl in range(2):
        r = 64 + 4 * tl
        a(f'ds_read_b64_tr_b16 v[{r}:{r+1}], v{26+tl} offset:{K2_WD}')
        a(f'ds_read_b64_tr_b16 v[{r+2}:{r+3}], v{26+tl} offset:{K2_WD+1024}')
    for r in range(72, 80):
        a(f'v_mov_b32 v{r}, 0')
    a('v_lshlrev_b32 v29, 11, v5')
    a('v_lshl_add_u32 v29, v4, 4, v29')
    a('s_lshl_b32 s70, s74, 14')
    a('s_lshl_b32 s71, s75, 9')
    a('s_add_u32 s70, s70, s71')
    a('s_lshl_b32 s71, s3, 7')
    a('s_add_u32 s70, s70, s71')
    a('s_cmp_ge_u32 s2, 172')
    a('s_cselect_b32 s70, 0x40000000, s70')
    a('s_waitcnt lgkmcnt(0)')
    for tl in range(2):
        r = 64 + 4 * tl
        a(f'v_mfma_f32_16x16x32_bf16 v[{72+4*tl}:{75+4*tl}], v[{r}:{r+3}], v[32:35], v[{72+4*tl}:{75+4*tl}]')
    a.nop(10)
    a('buffer_store_dwordx4 v[72:75], v29, s[56:59], s70 offen')
    a('buffer_store_dwordx4 v[76:79], v29, s[56:59], s70 offen offset:64')
    a.label('K2_EXIT')
    a('s_endpgm')

R0 = 131072
K3_P = R0
K3_ST = R0 + 8192
K3_LDS = 163840
def gen_k3(a):
    a.label('k3_kernel')
    a('s_cmp_ge_u32 s2, 256')
    a('s_cbranch_scc1 K3_EXIT')
    stamp(a, 0)
    a('s_load_dwordx2 s[6:7], s[0:1], 8')
    a('s_load_dwordx2 s[18:19], s[0:1], 96')
    wave_lane(a, 3, 2)
    a('v_lshlrev_b32 v8, 4, v2')
    a('s_waitcnt lgkmcnt(0)')
    srd(a, 52, 18, 262144, WS_QABS)
    srd(a, 24, 6, 33554432)
    a('s_lshr_b32 s69, s2, 5')
    a('s_lshl_b32 s70, s69, 15')
    a('s_lshl_b32 s71, s3, 13')
    a('s_add_u32 s70, s70, s71')
    a(f's_add_u32 s71, s71, {R0}')
    a('s_and_b32 s72, s3, 1')
    a('s_lshl_b32 s72, s72, 5')
    a('v_xor_b32 v9, s72, v8')
    for i in range(8):
        a(f'v_xor_b32 v4, {(((i & 3) << 2) | (i >> 2)) << 4}, v9')
        a('s_mov_b32 m0, s71')
        a('s_add_u32 s71, s71, 1024')
        a('buffer_load_dwordx4 v4, s[52:55], s70 offen lds')
        a('s_add_u32 s70, s70, 1024')
    a('s_lshl_b32 s70, s2, 17')
    a('s_lshl_b32 s71, s3, 15')
    a('s_add_u32 s70, s70, s71')
    for i in range(32):
        a(f'v_xor_b32 v4, {fsw(i & 15) << 4}, v8')
        a('s_mov_b32 m0, s71')
        a('s_add_u32 s71, s71, 1024')
        a(f'buffer_load_dwordx4 v4, s[24:27], s70 offen {CKV_POLICY} lds')
        a('s_add_u32 s70, s70, 1024')
    srd(a, 60, 18, 65536, WS_STATS)
    srd(a, 64, 18, 8388608, WS_OPART)
    a('v_and_b32 v5, 31, v2')
    a('v_lshrrev_b32 v6, 5, v2')
    a('v_and_b32 v9, 3, v5')
    a('v_lshlrev_b32 v9, 2, v9')
    a('v_lshrrev_b32 v10, 2, v5')
    a('v_and_b32 v10, 3, v10')
    a('v_or_b32 v9, v9, v10')
    a('v_xor_b32 v9, v9, v6')
    a('v_lshlrev_b32 v10, 10, v5')
    a('s_lshl_b32 s70, s3, 15')
    a('v_add_u32 v11, s70, v10')
    a(f'v_add_u32 v12, {R0}, v10')
    for e in range(8):
        a(f'v_xor_b32 v13, {2*e}, v9')
        a(f'v_lshl_add_u32 v{16+e}, v13, 4, v11')
        a(f'v_lshl_add_u32 v{24+e}, v13, 4, v12')
    for r in range(32, 48):
        a(f'v_mov_b32 v{r}, 0')
    for r in range(64+16, 128):
        a(f'v_mov_b32 v{r}, 0')
    a('v_lshrrev_b32 v14, 2, v2')
    a('v_and_b32 v14, 3, v14')
    a('v_and_b32 v15, 3, v2')
    a('v_lshrrev_b32 v3, 4, v2')
    a('v_and_b32 v3, 1, v3')
    a('v_lshrrev_b32 v7, 1, v15')
    a('v_lshl_add_u32 v7, v3, 1, v7')
    a('v_lshl_add_u32 v13, v6, 2, v14')
    a('v_lshlrev_b32 v13, 10, v13')
    a('s_lshl_b32 s70, s3, 8')
    a('v_add_u32 v13, s70, v13')
    a('v_and_b32 v3, 1, v15')
    a('v_lshl_add_u32 v13, v3, 3, v13')
    for sec in range(2):
        a(f'v_add_u32 v3, {2*sec}, v6')
        a('v_xor_b32 v3, v3, v7')
        for t in range(4):
            a(f'v_xor_b32 v4, {t}, v14')
            a('v_lshl_add_u32 v4, v4, 2, v3')
            a(f'v_lshl_add_u32 v{160+2*t+sec}, v4, 4, v13')
            if sec:
                a(f'v_add_u32 v{160+2*t+sec}, 8192, v{160+2*t+sec}')
    stamp(a, 1)
    a('s_waitcnt vmcnt(0)')
    a('s_barrier')
    stamp(a, 2)
    def rd(st):
        return [f'ds_read_b128 v[{48+4*(st&3)}:{51+4*(st&3)}], v{16+(st&7)} offset:{(st>>3)*256}',
                f'ds_read_b128 v[{64+4*(st&3)}:{67+4*(st&3)}], v{24+(st&7)} offset:{(st>>3)*256}']
    for st in range(3):
        for s in rd(st): a(s)
    for st in range(32):
        if st + 3 < 32:
            for s in rd(st + 3): a(s)
            a('s_waitcnt lgkmcnt(6)')
        else:
            a(f's_waitcnt lgkmcnt({2*(31-st)})')
        a(f'v_mfma_f32_32x32x16_bf16 v[32:47], v[{48+4*(st&3)}:{51+4*(st&3)}], v[{64+4*(st&3)}:{67+4*(st&3)}], v[32:47]')
    a('s_barrier')
    for r in range(64, 80):
        a(f'v_mov_b32 v{r}, 0')
    stamp(a, 3)
    a('s_mov_b32 s70, 0x3db504f3')
    for i in range(8):
        bf16_round_pair(a, 32+2*i, 33+2*i, 32+2*i, 33+2*i, 48)
        a(f'v_mul_f32 v{32+2*i}, s70, v{32+2*i}')
        a(f'v_mul_f32 v{33+2*i}, s70, v{33+2*i}')
        bf16_round_pair(a, 32+2*i, 33+2*i, 32+2*i, 33+2*i, 48)
    a('v_max3_f32 v48, v32, v33, v34')
    for i in range(35, 47, 2):
        a(f'v_max3_f32 v48, v48, v{i}, v{i+1}')
    a('v_max_f32 v48, v48, v47')
    a('v_mov_b32 v49, v48')
    a('s_nop 1')
    a('v_permlane32_swap_b32 v48, v49')
    a('v_max_f32 v48, v48, v49')
    a('v_lshlrev_b32 v11, 2, v5')
    a(f'v_add_u32 v11, {K3_ST}, v11')
    a('s_lshl_b32 s70, s3, 7')
    a('v_add_u32 v12, s70, v11')
    a('ds_write_b32 v12, v48')
    a('s_waitcnt lgkmcnt(0)')
    a('s_barrier')
    a('ds_read_b32 v48, v11')
    a('ds_read_b32 v49, v11 offset:128')
    a('ds_read_b32 v50, v11 offset:256')
    a('ds_read_b32 v51, v11 offset:384')
    a('s_waitcnt lgkmcnt(0)')
    a('v_max3_f32 v48, v48, v49, v50')
    a('v_max_f32 v48, v48, v51')
    a('s_mov_b32 s70, 0x3fb8aa3b')
    a('v_mul_f32 v49, s70, v48')
    for i in range(16):
        a(f'v_fma_f32 v{32+i}, v{32+i}, s70, -v49')
        a(f'v_exp_f32 v{32+i}, v{32+i}')
    a('s_nop 0')
    a('v_add_f32 v50, v32, v33')
    for i in range(2, 16):
        a(f'v_add_f32 v50, v50, v{32+i}')
    a('v_mov_b32 v51, v50')
    a('s_nop 1')
    a('v_permlane32_swap_b32 v50, v51')
    a('v_add_f32 v50, v50, v51')
    a('ds_write_b32 v12, v50 offset:512')
    for i in range(8):
        a(f'v_cvt_pk_bf16_f32 v{52+i}, v{32+2*i}, v{33+2*i}')
    a('s_lshl_b32 s70, s3, 11')
    a(f's_add_u32 s70, s70, {K3_P}')
    a('v_add_u32 v13, s70, v8')
    a('ds_write_b128 v13, v[52:55]')
    a('ds_write_b128 v13, v[56:59] offset:1024')
    a('s_waitcnt lgkmcnt(0)')
    a('s_barrier')
    stamp(a, 4)
    a('ds_read_b32 v50, v11 offset:512')
    a('ds_read_b32 v51, v11 offset:640')
    a('ds_read_b32 v52, v11 offset:768')
    a('ds_read_b32 v53, v11 offset:896')
    a(f'v_add_u32 v13, {K3_P}, v8')
    for u in range(8):
        a(f'ds_read_b128 v[{128+4*u}:{131+4*u}], v13 offset:{u*1024}')
    def trrd(u, t, buf):
        off = (u & 3) * 16384
        return [f'ds_read_b64_tr_b16 v[{buf}:{buf+1}], v{160+2*t} offset:{off}',
                f'ds_read_b64_tr_b16 v[{buf+2}:{buf+3}], v{161+2*t} offset:{off}']
    seq = [(u, t) for u in range(8) for t in range(4)]
    bufs = [168, 172, 176, 180]
    def issue(idx):
        u, t = seq[idx]
        if u == 4 and t == 0:
            for r in range(160, 168):
                a(f'v_add_u32 v{r}, 0x10000, v{r}')
        for s in trrd(u, t, bufs[idx & 3]):
            a(s)
    for idx in range(3):
        issue(idx)
    a('s_waitcnt lgkmcnt(6)')
    a('v_add_f32 v50, v50, v51')
    a('v_add_f32 v52, v52, v53')
    a('v_add_f32 v49, v50, v52')
    a('v_lshlrev_b32 v19, 11, v5')
    a('s_lshl_b32 s70, s2, 3')
    a('buffer_store_dwordx2 v[48:49], v19, s[60:63], s70 offen')
    for idx in range(32):
        u, t = seq[idx]
        if idx + 3 < 32:
            issue(idx + 3)
            a('s_waitcnt lgkmcnt(6)')
        else:
            a(f's_waitcnt lgkmcnt({2*(31-idx)})')
        b = bufs[idx & 3]
        a(f'v_mfma_f32_32x32x16_bf16 v[{64+16*t}:{79+16*t}], v[{b}:{b+3}], v[{128+4*u}:{131+4*u}], v[{64+16*t}:{79+16*t}]')
    a('s_barrier')
    stamp(a, 5)
    a('v_and_b32 v3, 7, v5')
    a('v_lshlrev_b32 v4, 3, v6')
    a('s_lshl_b32 s70, s3, 4')
    a('v_add_u32 v4, s70, v4')
    a('v_lshlrev_b32 v10, 10, v5')
    a.nop(6)
    for t in range(4):
        for i in range(8):
            a(f'v_cvt_pk_bf16_f32 v{128+8*t+i}, v{64+16*t+2*i}, v{65+16*t+2*i}')
        for i in range(2):
            a(f'v_xor_b32 v7, {2*t+i}, v3')
            a('v_add_u32 v7, v7, v4')
            a('v_lshl_add_u32 v7, v7, 4, v10')
            a(f'ds_write_b128 v7, v[{128+8*t+4*i}:{131+8*t+4*i}]')
    a('s_waitcnt lgkmcnt(0)')
    a('s_barrier')
    a('s_lshl_b32 s70, s3, 13')
    a('s_lshl_b32 s71, s2, 15')
    a('s_add_u32 s71, s71, s70')
    for i in range(8):
        a(f'v_xor_b32 v7, {i << 4}, v8')
        a('v_add_u32 v7, s70, v7')
        a(f'ds_read_b128 v[{128+4*i}:{131+4*i}], v7 offset:{i*1024}')
    for i in range(8):
        a(f's_waitcnt lgkmcnt({7-i})')
        a(f'buffer_store_dwordx4 v[{128+4*i}:{131+4*i}], v8, s[64:67], s71 offen')
        a('s_add_u32 s71, s71, 1024')
    if STAMP:
        stamp(a, 6)
        a('s_waitcnt vmcnt(0)')
        stamp(a, 7)
        a('s_cmp_lg_u32 s3, 0')
        a('s_cbranch_scc1 K3_EXIT')
        stamp_flush(a, 8, 18, 0)
    a.label('K3_EXIT')
    a('s_endpgm')

K4_AL = 0
K4_CB = 1024
K4_OC = 9216
K4_WUV = 11264
K4_LDS = K4_WUV + 16384
def gen_k4(a):
    a.label('k4_kernel')
    a('s_cmp_ge_u32 s2, 256')
    a('s_cbranch_scc1 K4_EXIT')
    a('s_load_dwordx2 s[4:5], s[0:1], 32')
    a('s_load_dwordx2 s[18:19], s[0:1], 96')
    wave_lane(a, 3, 2)
    lane_decomp(a)
    a('s_lshr_b32 s73, s2, 3')
    a('s_and_b32 s68, s2, 7')
    a('v_lshlrev_b32 v9, 3, v0')
    a('v_lshrrev_b32 v8, 3, v2')
    a('v_lshlrev_b32 v19, 20, v8')
    a('v_lshl_add_u32 v19, v5, 4, v19')
    a('v_lshlrev_b32 v12, 1, v4')
    a('v_xor_b32 v12, v12, v3')
    a('v_lshlrev_b32 v12, 4, v12')
    a('v_lshl_add_u32 v13, v4, 13, v12')
    a('v_xor_b32 v14, 128, v13')
    a('s_waitcnt lgkmcnt(0)')
    srd(a, 32, 18, 65536, WS_STATS)
    srd(a, 36, 18, 8388608, WS_OPART)
    srd(a, 20, 4, 4194304)
    a('s_lshl_b32 s70, s73, 11')
    a('buffer_load_dwordx2 v[10:11], v9, s[32:35], s70 offen')
    a('s_lshl_b32 s70, s3, 18')
    a('s_lshl_b32 s71, s73, 10')
    a('s_add_u32 s70, s70, s71')
    a('s_lshl_b32 s71, s68, 7')
    a('s_add_u32 s70, s70, s71')
    for i in range(8):
        a(f'buffer_load_dwordx4 v[{64+4*i}:{67+4*i}], v19, s[36:39], s70 offen')
        a('s_add_u32 s70, s70, 32768')
    a('s_lshr_b32 s70, s68, 1')
    a('s_lshl_b32 s70, s70, 7')
    a('s_and_b32 s71, s68, 1')
    a('s_lshl_b32 s71, s71, 2')
    a('s_add_u32 s70, s70, s71')
    a('s_lshl_b32 s71, s3, 5')
    a('s_add_u32 s70, s70, s71')
    a('s_lshl_b32 s70, s70, 13')
    a('s_lshl_b32 s71, s73, 8')
    a('s_add_u32 s70, s70, s71')
    a('s_lshl_b32 s71, s3, 12')
    a(f's_add_u32 s71, s71, {K4_WUV}')
    for i in range(4):
        a('s_mov_b32 m0, s71')
        a('s_add_u32 s71, s71, 1024')
        a(f'buffer_load_dwordx4 v{13 + ((i >> 1) & 1)}, s[20:23], s70 offen nt lds')
        a('s_add_u32 s70, s70, 65536')
    srd(a, 48, 18, 1048576, WS_CTXP)
    a('s_waitcnt vmcnt(12)')
    a('v_mov_b32 v20, v10')
    swz_reduce32(a, 20, 21, 'v_max_f32')
    a('v_sub_f32 v20, v10, v20')
    a('v_mul_f32 v20, 0x3fb8aa3b, v20')
    a('v_exp_f32 v20, v20')
    a('s_nop 0')
    a('v_mul_f32 v22, v20, v11')
    swz_reduce32(a, 22, 21, 'v_add_f32')
    a('v_rcp_f32 v22, v22')
    a('s_nop 0')
    a('v_mul_f32 v20, v20, v22')
    a('v_lshlrev_b32 v21, 2, v0')
    a(f'ds_write_b32 v21, v20 offset:{K4_AL}')
    a('s_waitcnt lgkmcnt(0)')
    a('s_barrier')
    a('v_lshlrev_b32 v21, 7, v8')
    a('s_lshl_b32 s70, s3, 5')
    a('v_add_u32 v21, s70, v21')
    a(f'ds_read_b128 v[32:35], v21 offset:{K4_AL}')
    a(f'ds_read_b128 v[36:39], v21 offset:{K4_AL+16}')
    for r in range(48, 56):
        a(f'v_mov_b32 v{r}, 0')
    a('s_waitcnt lgkmcnt(0)')
    for i in range(8):
        a(f's_waitcnt vmcnt({11-i})')
        for e in range(4):
            a(f'v_lshlrev_b32 v22, 16, v{64+4*i+e}')
            a(f'v_and_b32 v23, 0xffff0000, v{64+4*i+e}')
            a(f'v_fmac_f32 v{48+2*e}, v22, v{32+i}')
            a(f'v_fmac_f32 v{49+2*e}, v23, v{32+i}')
    a('v_lshlrev_b32 v21, 5, v0')
    a(f'ds_write_b128 v21, v[48:51] offset:{K4_CB}')
    a(f'ds_write_b128 v21, v[52:55] offset:{K4_CB+16}')
    a('s_waitcnt lgkmcnt(0)')
    a('s_barrier')
    a('s_cmp_lg_u32 s3, 0')
    a('s_cbranch_scc1 K4_NOSUM')
    for w in range(1, 4):
        a(f'ds_read_b128 v[{56+8*(w-1)}:{59+8*(w-1)}], v21 offset:{K4_CB+w*2048}')
        a(f'ds_read_b128 v[{60+8*(w-1)}:{63+8*(w-1)}], v21 offset:{K4_CB+w*2048+16}')
    a('s_waitcnt lgkmcnt(0)')
    for e in range(8):
        a(f'v_add_f32 v{48+e}, v{48+e}, v{56+e}')
        a(f'v_add_f32 v{64+e}, v{64+e}, v{72+e}')
        a(f'v_add_f32 v{48+e}, v{48+e}, v{64+e}')
    for e in range(4):
        a(f'v_cvt_pk_bf16_f32 v{56+e}, v{48+2*e}, v{49+2*e}')
    a('s_mov_b32 s70, 160')
    a('v_mul_lo_u32 v21, v8, s70')
    a('v_lshl_add_u32 v21, v5, 4, v21')
    a(f'ds_write_b128 v21, v[56:59] offset:{K4_OC}')
    a.label('K4_NOSUM')
    a('s_mov_b32 s70, 160')
    a('v_mul_lo_u32 v24, v5, s70')
    a('v_lshl_add_u32 v24, v4, 4, v24')
    a('s_lshl_b32 s69, s3, 2')
    tr_base_p256(a, 26, 28, 0, 69)
    a('s_add_u32 s69, s69, 2')
    tr_base_p256(a, 27, 28, 0, 69)
    for r in range(96, 104):
        a(f'v_mov_b32 v{r}, 0')
    a('v_lshlrev_b32 v28, 9, v5')
    a('v_lshl_add_u32 v28, v4, 4, v28')
    a('s_lshl_b32 s70, s2, 12')
    a('s_lshl_b32 s71, s3, 7')
    a('s_add_u32 s70, s70, s71')
    a('s_waitcnt vmcnt(0) lgkmcnt(0)')
    a('s_barrier')
    for ks in range(2):
        a(f'ds_read_b128 v[{32+4*ks}:{35+4*ks}], v24 offset:{K4_OC+ks*64}')
        for tl in range(2):
            r = 64 + 8 * ks + 4 * tl
            a(f'ds_read_b64_tr_b16 v[{r}:{r+1}], v{26+tl} offset:{K4_WUV+ks*8192}')
            a(f'ds_read_b64_tr_b16 v[{r+2}:{r+3}], v{26+tl} offset:{K4_WUV+ks*8192+1024}')
    a('s_waitcnt lgkmcnt(0)')
    for ks in range(2):
        for tl in range(2):
            r = 64 + 8 * ks + 4 * tl
            a(f'v_mfma_f32_16x16x32_bf16 v[{96+4*tl}:{99+4*tl}], v[{r}:{r+3}], v[{32+4*ks}:{35+4*ks}], v[{96+4*tl}:{99+4*tl}]')
    a.nop(10)
    a('buffer_store_dwordx4 v[96:99], v28, s[48:51], s70 offen')
    a('buffer_store_dwordx4 v[100:103], v28, s[48:51], s70 offen offset:64')
    a.label('K4_EXIT')
    a('s_endpgm')

K5_CX = 0
K5_WO = 3072
K5_LDS = K5_WO + 16384
def gen_k5(a):
    a.label('k5_kernel')
    a('s_cmp_ge_u32 s2, 256')
    a('s_cbranch_scc1 K5_EXIT')
    a('s_load_dwordx2 s[6:7], s[0:1], 40')
    a('s_load_dwordx2 s[18:19], s[0:1], 96')
    wave_lane(a, 3, 2)
    lane_decomp(a)
    a('s_lshr_b32 s73, s2, 3')
    a('s_and_b32 s68, s2, 7')
    a('v_lshrrev_b32 v8, 3, v2')
    a('v_lshrrev_b32 v22, 5, v0')
    a('v_and_b32 v23, 31, v0')
    a('v_lshlrev_b32 v28, 9, v22')
    a('v_lshl_add_u32 v28, v23, 4, v28')
    a('v_lshrrev_b32 v15, 1, v8')
    a('v_and_b32 v15, 1, v15')
    a('v_lshlrev_b32 v15, 1, v15')
    a('v_xor_b32 v15, v15, v5')
    a('v_lshlrev_b32 v15, 4, v15')
    a('v_lshl_add_u32 v15, v8, 10, v15')
    a('v_xor_b32 v16, 64, v15')
    a('s_waitcnt lgkmcnt(0)')
    srd(a, 48, 18, 1048576, WS_CTXP)
    srd(a, 24, 6, 4194304)
    a('s_lshl_b32 s70, s73, 15')
    for m in range(8):
        a(f'buffer_load_dwordx4 v[{64+4*m}:{67+4*m}], v28, s[48:51], s70 offen')
        a('s_add_u32 s70, s70, 4096')
    a('s_lshl_b32 s70, s73, 17')
    a('s_lshl_b32 s71, s3, 15')
    a('s_add_u32 s70, s70, s71')
    a('s_lshl_b32 s71, s68, 7')
    a('s_add_u32 s70, s70, s71')
    a('s_lshl_b32 s71, s3, 12')
    a(f's_add_u32 s71, s71, {K5_WO}')
    for i in range(4):
        a('s_mov_b32 m0, s71')
        a('s_add_u32 s71, s71, 1024')
        a(f'buffer_load_dwordx4 v{15 + (i & 1)}, s[24:27], s70 offen nt lds')
        a('s_add_u32 s70, s70, 8192')
    srd(a, 52, 18, 524288, WS_ATTP)
    a('s_mov_b32 s70, 288')
    a('v_mul_lo_u32 v22, v22, s70')
    a('v_lshl_add_u32 v22, v23, 3, v22')
    a('v_mul_lo_u32 v25, v5, s70')
    a('v_lshl_add_u32 v25, v4, 4, v25')
    a('s_lshl_b32 s69, s3, 1')
    tr_base_p128(a, 26, 27, K5_WO, 69)
    a('v_lshlrev_b32 v29, 11, v5')
    a('v_lshl_add_u32 v29, v4, 4, v29')
    a('s_lshl_b32 s70, s73, 14')
    a('s_lshl_b32 s71, s68, 8')
    a('s_add_u32 s70, s70, s71')
    a('s_lshl_b32 s71, s3, 6')
    a('s_add_u32 s70, s70, s71')
    for r in range(56, 60):
        a(f'v_mov_b32 v{r}, 0')
    a('s_waitcnt vmcnt(4)')
    for e in range(4):
        a(f'v_add_f32 v{64+e}, v{64+e}, v{68+e}')
        a(f'v_add_f32 v{72+e}, v{72+e}, v{76+e}')
        a(f'v_add_f32 v{80+e}, v{80+e}, v{84+e}')
        a(f'v_add_f32 v{88+e}, v{88+e}, v{92+e}')
        a(f'v_add_f32 v{64+e}, v{64+e}, v{72+e}')
        a(f'v_add_f32 v{80+e}, v{80+e}, v{88+e}')
        a(f'v_add_f32 v{64+e}, v{64+e}, v{80+e}')
    a('v_cvt_pk_bf16_f32 v68, v64, v65')
    a('v_cvt_pk_bf16_f32 v69, v66, v67')
    a(f'ds_write_b64 v22, v[68:69] offset:{K5_CX}')
    a('s_waitcnt vmcnt(0) lgkmcnt(0)')
    a('s_barrier')
    for ks in range(4):
        a(f'ds_read_b128 v[{32+4*ks}:{35+4*ks}], v25 offset:{K5_CX+ks*64}')
        a(f'ds_read_b64_tr_b16 v[{64+4*ks}:{65+4*ks}], v26 offset:{ks*4096}')
        a(f'ds_read_b64_tr_b16 v[{66+4*ks}:{67+4*ks}], v26 offset:{ks*4096+512}')
    for ks in range(4):
        a(f's_waitcnt lgkmcnt({12-3*(ks+1)})')
        a(f'v_mfma_f32_16x16x32_bf16 v[56:59], v[{64+4*ks}:{67+4*ks}], v[{32+4*ks}:{35+4*ks}], v[56:59]')
    a.nop(10)
    a('buffer_store_dwordx4 v[56:59], v29, s[52:55], s70 offen')
    a.label('K5_EXIT')
    a('s_endpgm')

KC_LDS = 8192
def gen_kc(a):
    a.label('kc_kernel')
    a('s_cmp_ge_u32 s2, 128')
    a('s_cbranch_scc1 KC_EXIT')
    a('s_load_dwordx2 s[4:5], s[0:1], 0')
    a('s_load_dwordx2 s[6:7], s[0:1], 80')
    a('s_load_dwordx2 s[8:9], s[0:1], 96')
    a('s_waitcnt lgkmcnt(0)')
    srd(a, 12, 4, 8192)
    srd(a, 16, 6, 8192)
    srd(a, 20, 8, 524288, WS_ATTP)
    srd(a, 24, 8, 43 * 16384, WS_FFNO)
    a('v_and_b32 v1, 7, v0')
    a('v_lshrrev_b32 v2, 3, v0')
    a('v_lshlrev_b32 v3, 14, v2')
    a('v_lshl_add_u32 v3, v1, 4, v3')
    a('s_lshl_b32 s41, s2, 7')
    a('buffer_load_dwordx4 v[8:11], v3, s[20:23], s41 offen')
    a('buffer_load_dwordx4 v[24:27], v3, s[24:27], s41 offen')
    a('s_add_u32 s41, s41, 524288')
    a('buffer_load_dwordx4 v[28:31], v3, s[24:27], s41 offen')
    a('v_lshlrev_b32 v4, 1, v0')
    a('s_lshl_b32 s42, s2, 6')
    a('buffer_load_ushort v5, v4, s[12:15], s42 offen')
    a('s_waitcnt vmcnt(1)')
    for e in range(4):
        a(f'v_add_f32 v{24+e}, v{24+e}, v{28+e}')
    a('v_lshlrev_b32 v6, 4, v0')
    a('ds_write_b128 v6, v[8:11]')
    a('ds_write_b128 v6, v[24:27] offset:4096')
    a('s_waitcnt lgkmcnt(0)')
    a('s_barrier')
    a('v_cmp_gt_u32 vcc, 32, v0')
    a('s_and_saveexec_b64 s[28:29], vcc')
    a('s_cbranch_execz KC_EXIT')
    a('v_lshlrev_b32 v6, 2, v0')
    for g in range(32):
        a(f'ds_read_b32 v{32+g}, v6 offset:{g*128}')
        a(f'ds_read_b32 v{64+g}, v6 offset:{4096+g*128}')
    a('s_waitcnt lgkmcnt(0)')
    for base in (32, 64):
        for step in (16, 8, 4, 2, 1):
            for i in range(step):
                a(f'v_add_f32 v{base+i}, v{base+i}, v{base+i+step}')
    a('s_waitcnt vmcnt(0)')
    a('v_lshlrev_b32 v5, 16, v5')
    bf16_round_pair(a, 32, 64, 32, 64, 7)
    a('v_add_f32 v32, v32, v5')
    bf16_round_pair(a, 32, 33, 32, 32, 7)
    a('v_add_f32 v32, v32, v64')
    a('v_cvt_pk_bf16_f32 v32, v32, v32')
    a('buffer_store_short v32, v4, s[16:19], s42 offen')
    a.label('KC_EXIT')
    a('s_endpgm')


CKV_POLICY = 'nt'
CODE_PREFETCH = False
TOUCH = False
PF1 = 0
PF2 = 0
NPF = 4
def main(out):
    a = Asm()
    a.raw(HDR.rstrip('\n'))
    ks = (('k1_kernel', gen_k1, 256, 256, K1_LDS), ('k2_kernel', gen_k2, 256, 256, K2_LDS), ('k3_kernel', gen_k3, 256, 256, K3_LDS),
          ('k4_kernel', gen_k4, 256, 256, K4_LDS), ('k5_kernel', gen_k5, 256, 256, K5_LDS), ('kc_kernel', gen_kc, 128, 256, KC_LDS))
    for name, g, grid, blk, lds in ks:
        a.raw(f'; @launch kernel={name} grid=({grid},1,1) block=({blk},1,1) lds={lds}')
    a.raw('.amdgcn_target "amdgcn-amd-amdhsa--gfx950"')
    a.raw('.text')
    for name, g, grid, blk, lds in ks:
        a.raw(f'.globl {name}')
        a.raw('.p2align 8')
        a.raw(f'.type {name},@function')
        g(a)
    a.raw('.p2align 4')
    a.raw('CODE_END:')
    a.raw('s_endpgm')
    a.raw('.section .rodata,"a"')
    for name, g, grid, blk, lds in ks:
        a.raw('.p2align 6')
        a.raw(kd(name))
    open(out, 'w').write('\n'.join(a.L) + '\n')

if __name__ == '__main__':
    if 'stamp' in sys.argv[2:]: STAMP = True
    if 'ckvplain' in sys.argv[2:]: CKV_POLICY = ''
    if 'cpf' in sys.argv[2:]: CODE_PREFETCH = True
    if 'touch' in sys.argv[2:]: TOUCH = True
    if 'pf40' in sys.argv[2:]: PF1 = 4
    if 'pf22' in sys.argv[2:]: PF1 = 2; PF2 = 2
    if 'pf13' in sys.argv[2:]: PF1 = 1; PF2 = 3
    main(sys.argv[1] if len(sys.argv) > 1 else 'parallel_sum__compressed_kv_cla__geglu_ffn__decode.s')
```

```python
import sys, math, struct
sys.path.insert(0, 'work')
from gen1 import Asm, srd, HDR, kd, bf16_round_pair, swz_reduce32, fsw
import gen3
from gen3 import f2u, wave_lane, lane_decomp, tr_base_p128, tr_base_p256, ln_issue, ln_compute, gelu4

WS_QPART = 0x0
WS_FFNP = 0x80000
WS_OPART = 0x800000
PZ = 0x200000
WS_QABS = PZ
WS_STATS = WS_QABS + 0x40000
WS_CTXP = WS_STATS + 0x10000
WS_ATTP = WS_CTXP + 0x100000
WS_FFNO = WS_ATTP + 0x80000
PZ_END = WS_FFNO + 43 * 16384
PZ_SIZE = PZ_END - PZ
PZ_PER_WAVE = 3
assert 256 * 4 * PZ_PER_WAVE * 1024 >= PZ_SIZE
WS_STAMP = 0xF000000
POLL_LIMIT = 20000
STAMP = False
THROTTLE = 8
PZ_POL = ''
SLEEP = 4

def stamp(a, i):
    if STAMP:
        a(f's_memtime s[{84+2*i}:{85+2*i}]')
        a('s_waitcnt lgkmcnt(0)')

uid = [0]
def poll_loads(a, issue_fn, regs, tmpv):
    uid[0] += 1
    n = uid[0]
    a('s_mov_b32 s72, 0')
    a.label(f'PL{n}')
    issue_fn()
    a('s_waitcnt vmcnt(0)')
    r = list(regs)
    a(f'v_max_u32 v{tmpv}, v{r[0]}, v{r[1]}')
    i = 2
    while i < len(r):
        if i + 1 < len(r):
            a(f'v_max3_u32 v{tmpv}, v{tmpv}, v{r[i]}, v{r[i+1]}')
            i += 2
        else:
            a(f'v_max_u32 v{tmpv}, v{tmpv}, v{r[i]}')
            i += 1
    a(f'v_cmp_eq_u32 vcc, -1, v{tmpv}')
    a('s_nop 3')
    a('s_cmp_eq_u64 vcc, 0')
    a(f's_cbranch_scc1 PD{n}')
    a('s_add_u32 s72, s72, 1')
    a(f's_cmp_lt_u32 s72, {POLL_LIMIT}')
    a(f's_cbranch_scc0 PD{n}')
    a(f's_sleep {SLEEP}')
    a(f's_branch PL{n}')
    a.label(f'PD{n}')

def wsync(a, k, vaddr, vone, vtmp):
    uid[0] += 1
    n = uid[0]
    a('s_waitcnt lgkmcnt(0)')
    a('s_mov_b64 exec, 1')
    a(f'ds_add_u32 v{vaddr}, v{vone}')
    a('s_mov_b64 exec, -1')
    a.label(f'WS{n}')
    a(f'ds_read_b32 v{vtmp}, v{vaddr}')
    a('s_waitcnt lgkmcnt(0)')
    a(f'v_readfirstlane_b32 s71, v{vtmp}')
    a('s_nop 3')
    a(f's_cmp_ge_u32 s71, {4*k}')
    a(f's_cbranch_scc0 WS{n}')

K1_WQT = 0
K1_FT = 16384
K1_XNA = 32768
K1_XNF = K1_XNA + 2304
K1_LDS = K1_XNF + 1280

def gen_k1(a):
    a.label('k1_kernel')
    a('s_cmp_ge_u32 s2, 256')
    a('s_cbranch_scc1 K1_EXIT')
    a('s_load_dwordx2 s[4:5], s[0:1], 0')
    a('s_load_dwordx2 s[8:9], s[0:1], 16')
    a('s_load_dwordx4 s[12:15], s[0:1], 56')
    a('s_load_dwordx2 s[18:19], s[0:1], 96')
    wave_lane(a, 3, 2)
    lane_decomp(a)
    a('s_lshr_b32 s73, s2, 3')
    a('s_lshr_b32 s74, s2, 1')
    a('s_and_b32 s74, s74, 3')
    a('s_and_b32 s75, s2, 1')
    a('s_and_b32 s68, s2, 7')
    a('v_lshrrev_b32 v8, 3, v2')
    a('v_lshrrev_b32 v9, 1, v8')
    a('v_and_b32 v9, 1, v9')
    a('v_lshlrev_b32 v9, 1, v9')
    a('v_xor_b32 v9, v9, v5')
    a('v_lshlrev_b32 v9, 4, v9')
    a('v_lshl_add_u32 v10, v8, 13, v9')
    a('v_xor_b32 v11, 64, v10')
    a('s_mov_b32 s70, 2752')
    a('v_mul_lo_u32 v12, v8, s70')
    a('v_add_u32 v13, v12, v9')
    a('v_xor_b32 v9, 64, v9')
    a('v_add_u32 v12, v12, v9')
    for r in range(200, 204):
        a(f'v_mov_b32 v{r}, -1')
    a('v_lshlrev_b32 v21, 4, v2')
    a('s_waitcnt lgkmcnt(0)')
    srd(a, 20, 4, 8192)
    srd(a, 28, 8, 4194304)
    T = 60
    ln_issue(a, 20, 3, T)
    a('s_lshl_b32 s70, s74, 20')
    a('s_lshl_b32 s71, s3, 18')
    a('s_add_u32 s70, s70, s71')
    a('s_lshl_b32 s71, s73, 8')
    a('s_add_u32 s70, s70, s71')
    a('s_lshl_b32 s71, s75, 7')
    a('s_add_u32 s70, s70, s71')
    a('s_lshl_b32 s71, s3, 12')
    for i in range(4):
        a('s_mov_b32 m0, s71')
        a('s_add_u32 s71, s71, 1024')
        a(f'buffer_load_dwordx4 v{10 + (i & 1)}, s[28:31], s70 offen nt lds')
        a('s_add_u32 s70, s70, 65536')
    a('s_cmp_ge_u32 s3, 2')
    a('s_cselect_b32 s76, s14, s12')
    a('s_cselect_b32 s77, s15, s13')
    a('s_and_b32 s77, s77, 0xffff')
    a('s_mov_b32 s78, 1409024')
    a('s_mov_b32 s79, 0x00020000')
    a('s_and_b32 s70, s3, 1')
    a('s_lshl_b32 s70, s70, 5')
    a('s_lshl_b32 s71, s68, 6')
    a('s_add_u32 s70, s70, s71')
    a('s_mul_i32 s70, s70, 2752')
    a('s_lshl_b32 s71, s73, 7')
    a('s_add_u32 s70, s70, s71')
    a('s_cmp_ge_u32 s2, 176')
    a('s_cselect_b32 s70, 0x40000000, s70')
    a('s_lshl_b32 s71, s3, 12')
    a(f's_add_u32 s71, s71, {K1_FT}')
    for i in range(4):
        a('s_mov_b32 m0, s71')
        a('s_add_u32 s71, s71, 1024')
        a(f'buffer_load_dwordx4 v{13 - (i & 1)}, s[76:79], s70 offen nt lds')
        a('s_add_u32 s70, s70, 22016')
    srd(a, 40, 18, PZ_SIZE, PZ)
    a('s_lshl_b32 s70, s2, 2')
    a('s_add_u32 s70, s70, s3')
    a(f's_mul_i32 s70, s70, {PZ_PER_WAVE*1024}')
    for i in range(PZ_PER_WAVE):
        a(f'buffer_store_dwordx4 v[200:203], v21, s[40:43], s70 offen{PZ_POL}')
        a('s_add_u32 s70, s70, 1024')
    NP = PZ_PER_WAVE
    srd(a, 48, 18, 524288, WS_QPART)
    srd(a, 56, 18, 0xB0000, WS_FFNP)
    ln_compute(a, T, 8 + NP)
    a('s_mov_b32 s70, 288')
    a(f'v_mul_lo_u32 v14, v{T}, s70')
    a(f'v_and_b32 v15, 7, v{T+1}')
    a('v_lshl_add_u32 v14, v15, 5, v14')
    a(f'v_lshrrev_b32 v15, 3, v{T+1}')
    a('v_cmp_eq_u32 vcc, s74, v15')
    a('s_and_saveexec_b64 s[80:81], vcc')
    a(f'ds_write_b128 v14, v[{T+4}:{T+7}] offset:{K1_XNA}')
    a(f'ds_write_b128 v14, v[{T+8}:{T+11}] offset:{K1_XNA+16}')
    a('s_mov_b64 exec, s[80:81]')
    a('s_mov_b32 s70, 160')
    a(f'v_mul_lo_u32 v14, v{T}, s70')
    a(f'v_and_b32 v15, 3, v{T+1}')
    a('v_lshl_add_u32 v14, v15, 5, v14')
    a(f'v_lshrrev_b32 v15, 2, v{T+1}')
    a('v_cmp_eq_u32 vcc, s68, v15')
    a('s_and_saveexec_b64 s[80:81], vcc')
    a(f'ds_write_b128 v14, v[{T+4}:{T+7}] offset:{K1_XNF}')
    a(f'ds_write_b128 v14, v[{T+8}:{T+11}] offset:{K1_XNF+16}')
    a('s_mov_b64 exec, s[80:81]')
    a('s_mov_b32 s70, 288')
    a('v_mul_lo_u32 v15, v5, s70')
    a('v_lshl_add_u32 v15, v4, 4, v15')
    a('s_mov_b32 s70, 160')
    a('v_mul_lo_u32 v17, v5, s70')
    a('v_lshl_add_u32 v17, v4, 4, v17')
    a('s_lshl_b32 s69, s3, 1')
    tr_base_p128(a, 18, 19, 0, 69)
    for r in range(24, 36):
        a(f'v_mov_b32 v{r}, 0')
    a('v_lshlrev_b32 v19, 9, v5')
    a('v_lshl_add_u32 v19, v4, 4, v19')
    a('s_lshl_b32 s82, s73, 14')
    a('s_lshl_b32 s71, s74, 12')
    a('s_add_u32 s82, s82, s71')
    a('s_lshl_b32 s71, s75, 8')
    a('s_add_u32 s82, s82, s71')
    a('s_lshl_b32 s71, s3, 6')
    a('s_add_u32 s82, s82, s71')
    a('s_mov_b32 s70, 5632')
    a('v_mul_lo_u32 v20, v5, s70')
    a('v_lshl_add_u32 v20, v4, 4, v20')
    a('s_mul_i32 s83, s68, 45056')
    a('s_lshl_b32 s71, s73, 8')
    a('s_add_u32 s83, s83, s71')
    a('s_lshl_b32 s71, s3, 6')
    a('s_add_u32 s83, s83, s71')
    a('s_cmp_ge_u32 s2, 176')
    a('s_cselect_b32 s83, 0x40000000, s83')
    a(f's_waitcnt vmcnt({4+NP}) lgkmcnt(0)')
    a('s_barrier')
    for ks in range(4):
        a(f'ds_read_b128 v[{36+8*ks}:{39+8*ks}], v15 offset:{K1_XNA+ks*64}')
        a(f'ds_read_b64_tr_b16 v[{40+8*ks}:{41+8*ks}], v18 offset:{K1_WQT+ks*4096}')
        a(f'ds_read_b64_tr_b16 v[{42+8*ks}:{43+8*ks}], v18 offset:{K1_WQT+ks*4096+512}')
    for ks in range(4):
        a(f's_waitcnt lgkmcnt({12-3*(ks+1)})')
        a(f'v_mfma_f32_16x16x32_bf16 v[24:27], v[{40+8*ks}:{43+8*ks}], v[{36+8*ks}:{39+8*ks}], v[24:27]')
    a(f's_waitcnt vmcnt({NP})')
    a.nop(8)
    a('buffer_store_dwordx4 v[24:27], v19, s[48:51], s82 offen')
    a('s_barrier')
    for ks in range(2):
        a(f'ds_read_b128 v[{36+4*ks}:{39+4*ks}], v17 offset:{K1_XNF+ks*64}')
    for mat in range(2):
        for ks in range(2):
            r = 44 + 8 * mat + 4 * ks
            a(f'ds_read_b64_tr_b16 v[{r}:{r+1}], v18 offset:{K1_FT+mat*8192+ks*4096}')
            a(f'ds_read_b64_tr_b16 v[{r+2}:{r+3}], v18 offset:{K1_FT+mat*8192+ks*4096+512}')
    a('s_waitcnt lgkmcnt(0)')
    for mat in range(2):
        for ks in range(2):
            r = 44 + 8 * mat + 4 * ks
            a(f'v_mfma_f32_16x16x32_bf16 v[{28+4*mat}:{31+4*mat}], v[{r}:{r+3}], v[{36+4*ks}:{39+4*ks}], v[{28+4*mat}:{31+4*mat}]')
    a.nop(10)
    a('buffer_store_dwordx4 v[28:31], v20, s[56:59], s83 offen')
    a('s_add_u32 s83, s83, 360448')
    a('buffer_store_dwordx4 v[32:35], v20, s[56:59], s83 offen')
    a.label('K1_EXIT')
    a('s_endpgm')

R0 = 131072
P_QB = R0
P_FS = R0 + 2304
P_HB = P_FS + 4096
P_WD = R0 + 9216
P_P = R0
P_ST = R0 + 8192
D_OT = 0
D_AL = 32768
D_CB = D_AL + 1024
D_OC = D_CB + 8192
D_CX = D_OC + 1280
D_WUV = 46080
D_WO = D_WUV + 16384
D_FA = 81920
KP_LDS = 163840

def gen_kp(a):
    a.label('kp_kernel')
    a('s_cmp_ge_u32 s2, 256')
    a('s_cbranch_scc1 KP_EXIT')
    stamp(a, 0)
    a('s_load_dwordx4 s[4:7], s[0:1], 0')
    a('s_load_dwordx4 s[8:11], s[0:1], 24')
    a('s_load_dwordx2 s[12:13], s[0:1], 40')
    a('s_load_dwordx2 s[14:15], s[0:1], 72')
    a('s_load_dwordx2 s[16:17], s[0:1], 80')
    a('s_load_dwordx2 s[18:19], s[0:1], 96')
    wave_lane(a, 3, 2)
    a('s_waitcnt lgkmcnt(0)')
    srd(a, 24, 6, 33554432)
    a('s_cmp_ge_u32 s3, 4')
    a('s_cbranch_scc1 KP_LOADER')
    lane_decomp(a)
    a('s_lshr_b32 s73, s2, 3')
    a('s_and_b32 s68, s2, 7')
    a('s_lshr_b32 s74, s2, 2')
    a('s_and_b32 s75, s2, 3')
    srd(a, 48, 18, 524288, WS_QPART)
    srd(a, 32, 8, 4194304)
    a('v_lshrrev_b32 v22, 5, v0')
    a('v_and_b32 v23, 31, v0')
    a('v_lshlrev_b32 v19, 9, v22')
    a('v_lshl_add_u32 v19, v23, 4, v19')
    a('v_lshlrev_b32 v12, 13, v3')
    a('v_lshl_add_u32 v12, v4, 4, v12')
    a('v_lshrrev_b32 v8, 3, v2')
    a('s_lshl_b32 s70, s73, 14')
    for m in range(4):
        a(f'buffer_load_dwordx4 v[{36+4*m}:{39+4*m}], v19, s[48:51], s70 offen')
        a('s_add_u32 s70, s70, 4096')
    a('s_lshl_b32 s70, s68, 19')
    a('s_lshl_b32 s71, s3, 17')
    a('s_add_u32 s70, s70, s71')
    a('s_lshl_b32 s71, s73, 8')
    a('s_add_u32 s70, s70, s71')
    for st in range(4):
        a(f'buffer_load_dwordx4 v[{104+4*st}:{107+4*st}], v12, s[32:35], s70 offen offset:{st*64} nt')
    srd(a, 40, 18, 0xB0000, WS_FFNP)
    srd(a, 28, 14, 1409024)
    a('s_mov_b32 s70, 5632')
    a('v_mul_lo_u32 v18, v8, s70')
    a('v_lshl_add_u32 v18, v5, 4, v18')
    a('s_and_b32 s70, s3, 1')
    a('s_mul_i32 s70, s70, 360448')
    a('s_lshr_b32 s71, s3, 1')
    a('s_mul_i32 s71, s71, 180224')
    a('s_add_u32 s70, s70, s71')
    a('s_lshl_b32 s71, s74, 7')
    a('s_add_u32 s70, s70, s71')
    a('s_cmp_ge_u32 s2, 172')
    a('s_cselect_b32 s70, 0x40000000, s70')
    for i in range(4):
        a(f'buffer_load_dwordx4 v[{120+4*i}:{123+4*i}], v18, s[40:43], s70 offen')
        a('s_add_u32 s70, s70, 45056')
    a('v_lshlrev_b32 v13, 1, v4')
    a('v_xor_b32 v13, v13, v3')
    a('v_lshlrev_b32 v13, 4, v13')
    a('v_lshl_add_u32 v17, v4, 10, v13')
    a('s_and_b32 s70, s3, 1')
    a('s_lshl_b32 s70, s70, 7')
    a('v_xor_b32 v17, s70, v17')
    a('s_lshl_b32 s70, s74, 15')
    a('s_lshl_b32 s71, s3, 13')
    a('s_add_u32 s70, s70, s71')
    a('s_lshl_b32 s71, s75, 8')
    a('s_add_u32 s70, s70, s71')
    a('s_cmp_ge_u32 s2, 172')
    a('s_cselect_b32 s70, 0x40000000, s70')
    a('s_lshl_b32 s71, s3, 11')
    a(f's_add_u32 s71, s71, {P_WD}')
    for i in range(2):
        a('s_mov_b32 m0, s71')
        a('s_add_u32 s71, s71, 1024')
        a('buffer_load_dwordx4 v17, s[28:31], s70 offen nt lds')
        a('s_add_u32 s70, s70, 4096')
    srd(a, 36, 10, 4194304)
    a('v_lshlrev_b32 v14, 4, v3')
    a('v_lshl_add_u32 v14, v4, 13, v14')
    a('s_lshr_b32 s70, s68, 1')
    a('s_lshl_b32 s70, s70, 7')
    a('s_and_b32 s71, s68, 1')
    a('s_lshl_b32 s71, s71, 2')
    a('s_add_u32 s70, s70, s71')
    a('s_lshl_b32 s71, s3, 5')
    a('s_add_u32 s70, s70, s71')
    a('s_lshl_b32 s70, s70, 13')
    a('s_lshl_b32 s71, s73, 8')
    a('s_add_u32 s70, s70, s71')
    for i in range(4):
        a(f'buffer_load_dwordx4 v[{192+4*i}:{195+4*i}], v14, s[36:39], s70 offen nt')
        a('s_add_u32 s70, s70, 65536')
    srd(a, 44, 12, 4194304)
    a('v_lshlrev_b32 v14, 4, v5')
    a('v_lshl_add_u32 v14, v8, 10, v14')
    a('s_lshl_b32 s70, s73, 17')
    a('s_lshl_b32 s71, s3, 15')
    a('s_add_u32 s70, s70, s71')
    a('s_lshl_b32 s71, s68, 7')
    a('s_add_u32 s70, s70, s71')
    for i in range(4):
        a(f'buffer_load_dwordx4 v[{208+4*i}:{211+4*i}], v14, s[44:47], s70 offen nt')
        a('s_add_u32 s70, s70, 8192')
    a(f'v_mov_b32 v226, {R0 + 20480}')
    a('v_mov_b32 v227, 1')
    a('v_mov_b32 v228, 0')
    a('ds_write_b32 v226, v228')
    a('ds_write_b32 v226, v228 offset:4')
    a('s_waitcnt lgkmcnt(0)')
    a('s_barrier')
    srd(a, 52, 18, 262144, WS_QABS)
    srd(a, 56, 18, 43 * 16384, WS_FFNO)
    srd(a, 60, 18, 65536, WS_STATS)
    srd(a, 64, 18, 8388608, WS_OPART)
    a('s_mov_b32 s70, 288')
    a('v_mul_lo_u32 v20, v22, s70')
    a('v_lshl_add_u32 v20, v23, 3, v20')
    a('v_mul_lo_u32 v16, v5, s70')
    a('v_lshl_add_u32 v16, v4, 4, v16')
    a(f'v_add_u32 v21, {P_QB}, v20')
    a(f'v_add_u32 v24, {P_QB}, v16')
    a('s_lshl_b32 s69, s3, 2')
    tr_base_p256(a, 26, 28, 0, 69)
    a('s_add_u32 s69, s69, 2')
    tr_base_p256(a, 27, 28, 0, 69)
    a('s_waitcnt vmcnt(18)')
    for e in range(4):
        a(f'v_add_f32 v{36+e}, v{36+e}, v{40+e}')
        a(f'v_add_f32 v{44+e}, v{44+e}, v{48+e}')
        a(f'v_add_f32 v{36+e}, v{36+e}, v{44+e}')
    a('v_cvt_pk_bf16_f32 v40, v36, v37')
    a('v_cvt_pk_bf16_f32 v41, v38, v39')
    a('ds_write_b64 v21, v[40:41]')
    wsync(a, 1, 226, 227, 228)
    for st in range(4):
        a(f'ds_read_b128 v[{36+4*st}:{39+4*st}], v24 offset:{st*64}')
    for r in range(56, 60):
        a(f'v_mov_b32 v{r}, 0')
    a('v_lshlrev_b32 v25, 15, v5')
    a('v_lshl_add_u32 v25, v4, 3, v25')
    a('s_lshl_b32 s70, s73, 10')
    a('s_lshl_b32 s71, s68, 7')
    a('s_add_u32 s70, s70, s71')
    a('s_lshl_b32 s71, s3, 5')
    a('s_add_u32 s70, s70, s71')
    a('s_waitcnt vmcnt(14) lgkmcnt(0)')
    for st in range(4):
        a(f'v_mfma_f32_16x16x32_bf16 v[56:59], v[{104+4*st}:{107+4*st}], v[{36+4*st}:{39+4*st}], v[56:59]')
    a.nop(10)
    a('v_cvt_pk_bf16_f32 v60, v56, v57')
    a('v_cvt_pk_bf16_f32 v61, v58, v59')
    a('buffer_store_dwordx2 v[60:61], v25, s[52:55], s70 offen sc1')
    stamp(a, 1)
    a('s_waitcnt vmcnt(11)')
    for e in range(4):
        a(f'v_add_f32 v{120+e}, v{120+e}, v{124+e}')
        a(f'v_add_f32 v{128+e}, v{128+e}, v{132+e}')
        a(f'v_add_f32 v{120+e}, v{120+e}, v{128+e}')
    a('v_lshlrev_b32 v22, 4, v0')
    a(f'v_add_u32 v22, {P_FS}, v22')
    a('ds_write_b128 v22, v[120:123]')
    wsync(a, 2, 226, 227, 228)
    a('s_cmp_lg_u32 s3, 0')
    a('s_cbranch_scc1 KP_NOACT')
    a('ds_read_b128 v[96:99], v22')
    a('ds_read_b128 v[100:103], v22 offset:1024')
    a('ds_read_b128 v[104:107], v22 offset:2048')
    a('ds_read_b128 v[108:111], v22 offset:3072')
    a('s_waitcnt lgkmcnt(0)')
    for e in range(4):
        a(f'v_add_f32 v{96+e}, v{96+e}, v{104+e}')
        a(f'v_add_f32 v{100+e}, v{100+e}, v{108+e}')
    bf16_round_pair(a, 96, 97, 96, 97, 23)
    bf16_round_pair(a, 98, 99, 98, 99, 23)
    bf16_round_pair(a, 100, 101, 100, 101, 23)
    bf16_round_pair(a, 102, 103, 102, 103, 23)
    gelu4(a, [96, 97, 98, 99], 23)
    bf16_round_pair(a, 96, 97, 96, 97, 23)
    bf16_round_pair(a, 98, 99, 98, 99, 23)
    for e in range(4):
        a(f'v_mul_f32 v{96+e}, v{96+e}, v{100+e}')
    a('v_cvt_pk_bf16_f32 v104, v96, v97')
    a('v_cvt_pk_bf16_f32 v105, v98, v99')
    a('s_mov_b32 s70, 288')
    a('v_mul_lo_u32 v22, v8, s70')
    a('v_lshl_add_u32 v22, v5, 3, v22')
    a(f'v_add_u32 v22, {P_HB}, v22')
    a('ds_write_b64 v22, v[104:105]')
    a.label('KP_NOACT')
    a('s_waitcnt vmcnt(9) lgkmcnt(0)')
    wsync(a, 3, 226, 227, 228)
    a(f'v_add_u32 v22, {P_HB}, v16')
    a('ds_read_b128 v[32:35], v22')
    a(f'v_add_u32 v22, {P_WD}, v26')
    a(f'v_add_u32 v23, {P_WD}, v27')
    for tl in range(2):
        r = 64 + 4 * tl
        a(f'ds_read_b64_tr_b16 v[{r}:{r+1}], v{22+tl}')
        a(f'ds_read_b64_tr_b16 v[{r+2}:{r+3}], v{22+tl} offset:1024')
    for r in range(72, 80):
        a(f'v_mov_b32 v{r}, 0')
    a('v_lshlrev_b32 v29, 11, v5')
    a('v_lshl_add_u32 v29, v4, 4, v29')
    a('s_lshl_b32 s70, s74, 14')
    a('s_lshl_b32 s71, s75, 9')
    a('s_add_u32 s70, s70, s71')
    a('s_lshl_b32 s71, s3, 7')
    a('s_add_u32 s70, s70, s71')
    a('s_cmp_ge_u32 s2, 172')
    a('s_cselect_b32 s70, 0x40000000, s70')
    a('s_waitcnt lgkmcnt(0)')
    for tl in range(2):
        r = 64 + 4 * tl
        a(f'v_mfma_f32_16x16x32_bf16 v[{72+4*tl}:{75+4*tl}], v[{r}:{r+3}], v[32:35], v[{72+4*tl}:{75+4*tl}]')
    a.nop(10)
    a('buffer_store_dwordx4 v[72:75], v29, s[56:59], s70 offen sc1')
    a('buffer_store_dwordx4 v[76:79], v29, s[56:59], s70 offen offset:64 sc1')
    wsync(a, 4, 226, 227, 228)
    a('s_mov_b64 exec, 1')
    a('ds_add_u32 v226, v227 offset:4')
    a('s_mov_b64 exec, -1')
    a('v_lshlrev_b32 v30, 4, v2')
    a('s_lshr_b32 s69, s2, 5')
    def issue_qabs():
        a('s_lshl_b32 s70, s69, 15')
        a('s_lshl_b32 s71, s3, 13')
        a('s_add_u32 s70, s70, s71')
        for i in range(8):
            a(f'buffer_load_dwordx4 v[{128+4*i}:{131+4*i}], v30, s[52:55], s70 offen sc1')
            a('s_add_u32 s70, s70, 1024')
    poll_loads(a, issue_qabs, range(128, 160), 22)
    stamp(a, 2)
    a('s_cmp_lg_u32 s3, 2')
    a('s_cbranch_scc1 KP_NOW2')
    a.label('KP_W2L')
    a('ds_read_b32 v228, v226 offset:4')
    a('s_waitcnt lgkmcnt(0)')
    a('v_readfirstlane_b32 s71, v228')
    a('s_nop 3')
    a('s_cmp_ge_u32 s71, 4')
    a('s_cbranch_scc0 KP_W2L')
    a.label('KP_NOW2')
    a('s_lshl_b32 s71, s3, 13')
    a(f's_add_u32 s71, s71, {R0}')
    a('s_and_b32 s70, s3, 1')
    a('s_lshl_b32 s70, s70, 5')
    for i in range(8):
        a(f'v_xor_b32 v9, {(((i & 3) << 2) | (i >> 2)) << 4}, v30')
        a('v_xor_b32 v9, s70, v9')
        a('v_add_u32 v9, s71, v9')
        a(f'ds_write_b128 v9, v[{128+4*i}:{131+4*i}] offset:{i*1024}')
    a('v_and_b32 v224, 31, v2')
    a('v_lshrrev_b32 v225, 5, v2')
    a('v_and_b32 v9, 3, v224')
    a('v_lshlrev_b32 v9, 2, v9')
    a('v_lshrrev_b32 v10, 2, v224')
    a('v_and_b32 v10, 3, v10')
    a('v_or_b32 v9, v9, v10')
    a('v_xor_b32 v9, v9, v225')
    a('v_lshlrev_b32 v10, 10, v224')
    a('s_lshl_b32 s70, s3, 15')
    a('v_add_u32 v11, s70, v10')
    a(f'v_add_u32 v12, {R0}, v10')
    for e in range(8):
        a(f'v_xor_b32 v14, {2*e}, v9')
        a(f'v_lshl_add_u32 v{232+e}, v14, 4, v11')
        a(f'v_lshl_add_u32 v{240+e}, v14, 4, v12')
    for r in range(32, 48):
        a(f'v_mov_b32 v{r}, 0')
    for r in range(80, 128):
        a(f'v_mov_b32 v{r}, 0')
    a('v_and_b32 v9, 1, v4')
    a('v_lshrrev_b32 v10, 1, v7')
    a('v_lshl_add_u32 v10, v9, 1, v10')
    a('v_lshl_add_u32 v11, v225, 2, v6')
    a('v_lshlrev_b32 v11, 10, v11')
    a('s_lshl_b32 s70, s3, 8')
    a('v_add_u32 v11, s70, v11')
    a('v_and_b32 v9, 1, v7')
    a('v_lshl_add_u32 v11, v9, 3, v11')
    for sec in range(2):
        a(f'v_add_u32 v9, {2*sec}, v225')
        a('v_xor_b32 v9, v9, v10')
        for t in range(4):
            a(f'v_xor_b32 v14, {t}, v6')
            a('v_lshl_add_u32 v14, v14, 2, v9')
            a(f'v_lshl_add_u32 v{160+2*t+sec}, v14, 4, v11')
            if sec:
                a(f'v_add_u32 v{160+2*t+sec}, 8192, v{160+2*t+sec}')
    a('s_waitcnt lgkmcnt(0)')
    a('s_barrier')
    stamp(a, 3)
    def rd(st):
        return [f'ds_read_b128 v[{48+4*(st&3)}:{51+4*(st&3)}], v{232+(st&7)} offset:{(st>>3)*256}',
                f'ds_read_b128 v[{64+4*(st&3)}:{67+4*(st&3)}], v{240+(st&7)} offset:{(st>>3)*256}']
    for st in range(3):
        for s in rd(st): a(s)
    for st in range(32):
        if st + 3 < 32:
            for s in rd(st + 3): a(s)
            a('s_waitcnt lgkmcnt(6)')
        else:
            a(f's_waitcnt lgkmcnt({2*(31-st)})')
        a(f'v_mfma_f32_32x32x16_bf16 v[32:47], v[{48+4*(st&3)}:{51+4*(st&3)}], v[{64+4*(st&3)}:{67+4*(st&3)}], v[32:47]')
    a('s_barrier')
    for r in range(64, 80):
        a(f'v_mov_b32 v{r}, 0')
    a('s_mov_b32 s70, 0x3db504f3')
    for i in range(8):
        bf16_round_pair(a, 32+2*i, 33+2*i, 32+2*i, 33+2*i, 48)
        a(f'v_mul_f32 v{32+2*i}, s70, v{32+2*i}')
        a(f'v_mul_f32 v{33+2*i}, s70, v{33+2*i}')
        bf16_round_pair(a, 32+2*i, 33+2*i, 32+2*i, 33+2*i, 48)
    a('v_max3_f32 v48, v32, v33, v34')
    for i in range(35, 47, 2):
        a(f'v_max3_f32 v48, v48, v{i}, v{i+1}')
    a('v_max_f32 v48, v48, v47')
    a('v_mov_b32 v49, v48')
    a('s_nop 1')
    a('v_permlane32_swap_b32 v48, v49')
    a('v_max_f32 v48, v48, v49')
    a('v_lshlrev_b32 v11, 2, v224')
    a(f'v_add_u32 v11, {P_ST}, v11')
    a('s_lshl_b32 s70, s3, 7')
    a('v_add_u32 v12, s70, v11')
    a('ds_write_b32 v12, v48')
    a('s_waitcnt lgkmcnt(0)')
    a('s_barrier')
    a('ds_read_b32 v48, v11')
    a('ds_read_b32 v49, v11 offset:128')
    a('ds_read_b32 v50, v11 offset:256')
    a('ds_read_b32 v51, v11 offset:384')
    a('s_waitcnt lgkmcnt(0)')
    a('v_max3_f32 v48, v48, v49, v50')
    a('v_max_f32 v48, v48, v51')
    a('s_mov_b32 s70, 0x3fb8aa3b')
    a('v_mul_f32 v49, s70, v48')
    for i in range(16):
        a(f'v_fma_f32 v{32+i}, v{32+i}, s70, -v49')
        a(f'v_exp_f32 v{32+i}, v{32+i}')
    a('s_nop 0')
    a('v_add_f32 v50, v32, v33')
    for i in range(2, 16):
        a(f'v_add_f32 v50, v50, v{32+i}')
    a('v_mov_b32 v51, v50')
    a('s_nop 1')
    a('v_permlane32_swap_b32 v50, v51')
    a('v_add_f32 v50, v50, v51')
    a('ds_write_b32 v12, v50 offset:512')
    for i in range(8):
        a(f'v_cvt_pk_bf16_f32 v{52+i}, v{32+2*i}, v{33+2*i}')
    a('s_lshl_b32 s70, s3, 11')
    a(f's_add_u32 s70, s70, {P_P}')
    a('v_add_u32 v14, s70, v30')
    a('ds_write_b128 v14, v[52:55]')
    a('ds_write_b128 v14, v[56:59] offset:1024')
    a('s_waitcnt lgkmcnt(0)')
    a('s_barrier')
    a('ds_read_b32 v50, v11 offset:512')
    a('ds_read_b32 v51, v11 offset:640')
    a('ds_read_b32 v52, v11 offset:768')
    a('ds_read_b32 v53, v11 offset:896')
    a(f'v_add_u32 v14, {P_P}, v30')
    for u in range(8):
        a(f'ds_read_b128 v[{128+4*u}:{131+4*u}], v14 offset:{u*1024}')
    def trrd(u, t, buf):
        off = (u & 3) * 16384
        return [f'ds_read_b64_tr_b16 v[{buf}:{buf+1}], v{160+2*t} offset:{off}',
                f'ds_read_b64_tr_b16 v[{buf+2}:{buf+3}], v{161+2*t} offset:{off}']
    seq = [(u, t) for u in range(8) for t in range(4)]
    bufs = [168, 172, 176, 180]
    def issue(idx):
        u, t = seq[idx]
        if u == 4 and t == 0:
            for r in range(160, 168):
                a(f'v_add_u32 v{r}, 0x10000, v{r}')
        for s in trrd(u, t, bufs[idx & 3]):
            a(s)
    for idx in range(3):
        issue(idx)
    a('s_waitcnt lgkmcnt(6)')
    a('v_add_f32 v50, v50, v51')
    a('v_add_f32 v52, v52, v53')
    a('v_add_f32 v49, v50, v52')
    a('v_mov_b32 v230, v48')
    a('v_mov_b32 v231, v49')
    for idx in range(32):
        u, t = seq[idx]
        if idx + 3 < 32:
            issue(idx + 3)
            a('s_waitcnt lgkmcnt(6)')
        else:
            a(f's_waitcnt lgkmcnt({2*(31-idx)})')
        b = bufs[idx & 3]
        a(f'v_mfma_f32_32x32x16_bf16 v[{64+16*t}:{79+16*t}], v[{b}:{b+3}], v[{128+4*u}:{131+4*u}], v[{64+16*t}:{79+16*t}]')
    a('s_barrier')
    stamp(a, 4)
    a('v_and_b32 v9, 7, v224')
    a('v_lshlrev_b32 v10, 3, v225')
    a('s_lshl_b32 s70, s3, 4')
    a('v_add_u32 v10, s70, v10')
    a('v_lshlrev_b32 v11, 10, v224')
    a.nop(6)
    for t in range(4):
        for i in range(8):
            a(f'v_cvt_pk_bf16_f32 v{128+8*t+i}, v{64+16*t+2*i}, v{65+16*t+2*i}')
        for i in range(2):
            a(f'v_xor_b32 v14, {2*t+i}, v9')
            a('v_add_u32 v14, v14, v10')
            a('v_lshl_add_u32 v14, v14, 4, v11')
            a(f'ds_write_b128 v14, v[{128+8*t+4*i}:{131+8*t+4*i}]')
    a('v_lshl_add_u32 v14, v4, 8, v13')
    a('s_lshl_b32 s70, s3, 12')
    a(f's_add_u32 s70, s70, {D_WUV}')
    a('v_add_u32 v14, s70, v14')
    a('v_xor_b32 v15, 128, v14')
    for i in range(4):
        a(f'ds_write_b128 v{14 + ((i >> 1) & 1)}, v[{192+4*i}:{195+4*i}] offset:{i*1024}')
    a('v_lshrrev_b32 v14, 1, v8')
    a('v_and_b32 v14, 1, v14')
    a('v_lshlrev_b32 v14, 1, v14')
    a('v_xor_b32 v14, v14, v5')
    a('v_lshlrev_b32 v14, 4, v14')
    a('v_lshl_add_u32 v14, v8, 7, v14')
    a('s_lshl_b32 s70, s3, 12')
    a(f's_add_u32 s70, s70, {D_WO}')
    a('v_add_u32 v14, s70, v14')
    a('v_xor_b32 v15, 64, v14')
    for i in range(4):
        a(f'ds_write_b128 v{14 + (i & 1)}, v[{208+4*i}:{211+4*i}] offset:{i*1024}')
    a('s_waitcnt lgkmcnt(0)')
    a('s_barrier')
    a('s_lshl_b32 s70, s3, 13')
    a('s_lshl_b32 s71, s2, 15')
    a('s_add_u32 s71, s71, s70')
    for i in range(8):
        a(f'v_xor_b32 v14, {i << 4}, v30')
        a('v_add_u32 v14, s70, v14')
        a(f'ds_read_b128 v[{128+4*i}:{131+4*i}], v14 offset:{i*1024}')
    for i in range(8):
        a(f's_waitcnt lgkmcnt({7-i})')
        a(f'buffer_store_dwordx4 v[{128+4*i}:{131+4*i}], v30, s[64:67], s71 offen sc1')
        a('s_add_u32 s71, s71, 1024')
    a('s_waitcnt vmcnt(0)')
    a('s_barrier')
    a('s_cmp_lg_u32 s3, 0')
    a('s_cbranch_scc1 KP_NOST')
    a('v_lshlrev_b32 v14, 11, v224')
    a('s_lshl_b32 s70, s2, 3')
    a('s_mov_b64 exec, 0xffffffff')
    a('buffer_store_dwordx2 v[230:231], v14, s[60:63], s70 offen sc1')
    a('s_mov_b64 exec, -1')
    a.label('KP_NOST')
    stamp(a, 5)
    srd(a, 48, 18, 1048576, WS_CTXP)
    srd(a, 40, 18, 524288, WS_ATTP)
    a('v_lshlrev_b32 v9, 3, v0')
    a('v_lshlrev_b32 v10, 20, v8')
    a('v_lshl_add_u32 v10, v5, 4, v10')
    def issue_S():
        a('s_lshl_b32 s70, s73, 11')
        a('buffer_load_dwordx2 v[32:33], v9, s[60:63], s70 offen sc1')
    poll_loads(a, issue_S, [32, 33], 22)
    a('s_barrier')
    a('s_lshl_b32 s70, s3, 18')
    a('s_lshl_b32 s71, s73, 10')
    a('s_add_u32 s70, s70, s71')
    a('s_lshl_b32 s71, s68, 7')
    a('s_add_u32 s70, s70, s71')
    for i in range(8):
        a(f'buffer_load_dwordx4 v[{64+4*i}:{67+4*i}], v10, s[64:67], s70 offen sc1')
        a('s_add_u32 s70, s70, 32768')
    stamp(a, 6)
    a('v_mov_b32 v34, v32')
    swz_reduce32(a, 34, 35, 'v_max_f32')
    a('v_sub_f32 v34, v32, v34')
    a('v_mul_f32 v34, 0x3fb8aa3b, v34')
    a('v_exp_f32 v34, v34')
    a('s_nop 0')
    a('v_mul_f32 v36, v34, v33')
    swz_reduce32(a, 36, 35, 'v_add_f32')
    a('v_rcp_f32 v36, v36')
    a('s_nop 0')
    a('v_mul_f32 v34, v34, v36')
    a('v_lshlrev_b32 v35, 2, v0')
    a(f'ds_write_b32 v35, v34 offset:{D_AL}')
    a('s_waitcnt lgkmcnt(0)')
    a('s_barrier')
    a('v_lshlrev_b32 v35, 7, v8')
    a('s_lshl_b32 s70, s3, 5')
    a('v_add_u32 v35, s70, v35')
    a(f'ds_read_b128 v[36:39], v35 offset:{D_AL}')
    a(f'ds_read_b128 v[40:43], v35 offset:{D_AL+16}')
    for r in range(48, 56):
        a(f'v_mov_b32 v{r}, 0')
    a('s_waitcnt lgkmcnt(0)')
    for i in range(8):
        a(f's_waitcnt vmcnt({7-i})')
        for e in range(4):
            a(f'v_lshlrev_b32 v22, 16, v{64+4*i+e}')
            a(f'v_and_b32 v23, 0xffff0000, v{64+4*i+e}')
            a(f'v_fmac_f32 v{48+2*e}, v22, v{36+i}')
            a(f'v_fmac_f32 v{49+2*e}, v23, v{36+i}')
    a('v_lshlrev_b32 v35, 5, v0')
    a(f'ds_write_b128 v35, v[48:51] offset:{D_CB}')
    a(f'ds_write_b128 v35, v[52:55] offset:{D_CB+16}')
    a('s_waitcnt lgkmcnt(0)')
    a('s_barrier')
    a('s_cmp_lg_u32 s3, 0')
    a('s_cbranch_scc1 KP_NOSUM')
    for w in range(1, 4):
        a(f'ds_read_b128 v[{56+8*(w-1)}:{59+8*(w-1)}], v35 offset:{D_CB+w*2048}')
        a(f'ds_read_b128 v[{60+8*(w-1)}:{63+8*(w-1)}], v35 offset:{D_CB+w*2048+16}')
    a('s_waitcnt lgkmcnt(0)')
    for e in range(8):
        a(f'v_add_f32 v{48+e}, v{48+e}, v{56+e}')
        a(f'v_add_f32 v{64+e}, v{64+e}, v{72+e}')
        a(f'v_add_f32 v{48+e}, v{48+e}, v{64+e}')
    for e in range(4):
        a(f'v_cvt_pk_bf16_f32 v{56+e}, v{48+2*e}, v{49+2*e}')
    a('s_mov_b32 s70, 160')
    a('v_mul_lo_u32 v35, v8, s70')
    a('v_lshl_add_u32 v35, v5, 4, v35')
    a(f'ds_write_b128 v35, v[56:59] offset:{D_OC}')
    a.label('KP_NOSUM')
    a('s_mov_b32 s70, 160')
    a('v_mul_lo_u32 v24, v5, s70')
    a('v_lshl_add_u32 v24, v4, 4, v24')
    for r in range(96, 104):
        a(f'v_mov_b32 v{r}, 0')
    a('v_lshlrev_b32 v28, 9, v5')
    a('v_lshl_add_u32 v28, v4, 4, v28')
    a('s_lshl_b32 s70, s2, 12')
    a('s_lshl_b32 s71, s3, 7')
    a('s_add_u32 s70, s70, s71')
    a('s_waitcnt lgkmcnt(0)')
    a('s_barrier')
    for ks in range(2):
        a(f'ds_read_b128 v[{32+4*ks}:{35+4*ks}], v24 offset:{D_OC+ks*64}')
        for tl in range(2):
            r = 64 + 8 * ks + 4 * tl
            a(f'ds_read_b64_tr_b16 v[{r}:{r+1}], v{26+tl} offset:{D_WUV+ks*8192}')
            a(f'ds_read_b64_tr_b16 v[{r+2}:{r+3}], v{26+tl} offset:{D_WUV+ks*8192+1024}')
    a('s_waitcnt lgkmcnt(0)')
    for ks in range(2):
        for tl in range(2):
            r = 64 + 8 * ks + 4 * tl
            a(f'v_mfma_f32_16x16x32_bf16 v[{96+4*tl}:{99+4*tl}], v[{r}:{r+3}], v[{32+4*ks}:{35+4*ks}], v[{96+4*tl}:{99+4*tl}]')
    a.nop(10)
    a('buffer_store_dwordx4 v[96:99], v28, s[48:51], s70 offen sc1')
    a('buffer_store_dwordx4 v[100:103], v28, s[48:51], s70 offen offset:64 sc1')
    a('s_lshl_b32 s69, s3, 1')
    tr_base_p128(a, 26, 27, D_WO, 69)
    def issue_ctx():
        a('s_lshl_b32 s70, s73, 15')
        for m in range(8):
            a(f'buffer_load_dwordx4 v[{64+4*m}:{67+4*m}], v19, s[48:51], s70 offen sc1')
            a('s_add_u32 s70, s70, 4096')
    poll_loads(a, issue_ctx, range(64, 96), 22)
    stamp(a, 7)
    for e in range(4):
        a(f'v_add_f32 v{64+e}, v{64+e}, v{68+e}')
        a(f'v_add_f32 v{72+e}, v{72+e}, v{76+e}')
        a(f'v_add_f32 v{80+e}, v{80+e}, v{84+e}')
        a(f'v_add_f32 v{88+e}, v{88+e}, v{92+e}')
        a(f'v_add_f32 v{64+e}, v{64+e}, v{72+e}')
        a(f'v_add_f32 v{80+e}, v{80+e}, v{88+e}')
        a(f'v_add_f32 v{64+e}, v{64+e}, v{80+e}')
    a('v_cvt_pk_bf16_f32 v68, v64, v65')
    a('v_cvt_pk_bf16_f32 v69, v66, v67')
    a(f'ds_write_b64 v20, v[68:69] offset:{D_CX}')
    for r in range(56, 60):
        a(f'v_mov_b32 v{r}, 0')
    a('s_lshl_b32 s70, s73, 14')
    a('s_lshl_b32 s71, s68, 8')
    a('s_add_u32 s70, s70, s71')
    a('s_lshl_b32 s71, s3, 6')
    a('s_add_u32 s70, s70, s71')
    a('s_waitcnt lgkmcnt(0)')
    a('s_barrier')
    for ks in range(4):
        a(f'ds_read_b128 v[{32+4*ks}:{35+4*ks}], v16 offset:{D_CX+ks*64}')
        a(f'ds_read_b64_tr_b16 v[{64+4*ks}:{65+4*ks}], v26 offset:{ks*4096}')
        a(f'ds_read_b64_tr_b16 v[{66+4*ks}:{67+4*ks}], v26 offset:{ks*4096+512}')
    for ks in range(4):
        a(f's_waitcnt lgkmcnt({12-3*(ks+1)})')
        a(f'v_mfma_f32_16x16x32_bf16 v[56:59], v[{64+4*ks}:{67+4*ks}], v[{32+4*ks}:{35+4*ks}], v[56:59]')
    a.nop(10)
    a('buffer_store_dwordx4 v[56:59], v29, s[40:43], s70 offen sc1')
    srd(a, 20, 4, 8192)
    srd(a, 28, 16, 8192)
    a('v_and_b32 v9, 3, v0')
    a('v_lshrrev_b32 v10, 2, v0')
    a('v_lshlrev_b32 v11, 14, v10')
    a('v_lshl_add_u32 v11, v9, 4, v11')
    a('v_lshlrev_b32 v12, 1, v0')
    a('s_lshl_b32 s69, s2, 5')
    a('buffer_load_ushort v40, v12, s[20:23], s69 offen')
    def issue_fin():
        a('s_lshl_b32 s70, s2, 6')
        a('buffer_load_dwordx4 v[64:67], v11, s[40:43], s70 offen sc1')
        a('buffer_load_dwordx4 v[68:71], v11, s[56:59], s70 offen sc1')
    poll_loads(a, issue_fin, range(64, 72), 22)
    a('v_lshlrev_b32 v14, 4, v0')
    a(f'v_add_u32 v14, {D_FA}, v14')
    a('ds_write_b128 v14, v[64:67]')
    a('ds_write_b128 v14, v[68:71] offset:4096')
    a('s_waitcnt lgkmcnt(0)')
    a('s_barrier')
    a('v_cmp_gt_u32 vcc, 16, v0')
    a('s_and_saveexec_b64 s[80:81], vcc')
    a('s_cbranch_execz KP_FIN')
    a('v_lshlrev_b32 v14, 2, v0')
    a(f'v_add_u32 v14, {D_FA}, v14')
    for g in range(32):
        a(f'ds_read_b32 v{64+g}, v14 offset:{g*64}')
    for g in range(43):
        a(f'ds_read_b32 v{128+g}, v14 offset:{4096+g*64}')
    a('s_waitcnt lgkmcnt(0)')
    for step in (16, 8, 4, 2, 1):
        for i in range(step):
            a(f'v_add_f32 v{64+i}, v{64+i}, v{64+i+step}')
    for i in range(11):
        a(f'v_add_f32 v{128+i}, v{128+i}, v{160+i}')
    for step in (16, 8, 4, 2, 1):
        for i in range(step):
            a(f'v_add_f32 v{128+i}, v{128+i}, v{128+i+step}')
    a('v_lshlrev_b32 v40, 16, v40')
    bf16_round_pair(a, 64, 128, 64, 128, 15)
    a('v_add_f32 v64, v64, v40')
    bf16_round_pair(a, 64, 65, 64, 64, 15)
    a('v_add_f32 v64, v64, v128')
    a('v_cvt_pk_bf16_f32 v64, v64, v64')
    a('buffer_store_short v64, v12, s[28:31], s69 offen')
    a.label('KP_FIN')
    a('s_mov_b64 exec, s[80:81]')
    if STAMP:
        stamp(a, 8)
        a('s_cmp_lg_u32 s3, 0')
        a('s_cbranch_scc1 KP_EXIT')
        srd(a, 76, 18, 1 << 20, WS_STAMP)
        a('s_lshl_b32 s80, s2, 7')
        a('v_mov_b32 v250, 0')
        for i in range(9):
            a(f'v_mov_b32 v251, s{84+2*i}')
            a(f'buffer_store_dword v251, v250, s[76:79], s80 offen offset:{4*i}')
    a('s_branch KP_EXIT')

    a.label('KP_LOADER')
    a('s_sub_u32 s69, s3, 4')
    a('v_lshlrev_b32 v3, 4, v2')
    a('s_lshl_b32 s70, s2, 17')
    a('s_lshl_b32 s71, s69, 15')
    a('s_add_u32 s70, s70, s71')
    a('s_barrier')
    for i in range(32):
        a(f'v_xor_b32 v4, {fsw(i & 15) << 4}, v3')
        a('s_mov_b32 m0, s71')
        a('s_add_u32 s71, s71, 1024')
        a('buffer_load_dwordx4 v4, s[24:27], s70 offen nt lds')
        a('s_add_u32 s70, s70, 1024')
        if THROTTLE and i >= THROTTLE:
            a(f's_waitcnt vmcnt({THROTTLE})')
    a('s_waitcnt vmcnt(0)')
    a('s_barrier')
    a.label('KP_EXIT')
    a('s_endpgm')

def main(out):
    a = Asm()
    a.raw(HDR.rstrip('\n'))
    ks = (('k1_kernel', gen_k1, 256, 256, K1_LDS), ('kp_kernel', gen_kp, 256, 512, KP_LDS))
    for name, g, grid, blk, lds in ks:
        a.raw(f'; @launch kernel={name} grid=({grid},1,1) block=({blk},1,1) lds={lds}')
    a.raw('.amdgcn_target "amdgcn-amd-amdhsa--gfx950"')
    a.raw('.text')
    for name, g, grid, blk, lds in ks:
        a.raw(f'.globl {name}')
        a.raw('.p2align 8')
        a.raw(f'.type {name},@function')
        g(a)
    a.raw('.section .rodata,"a"')
    for name, g, grid, blk, lds in ks:
        a.raw('.p2align 6')
        a.raw(kd(name))
    open(out, 'w').write('\n'.join(a.L) + '\n')

if __name__ == '__main__':
    if 'stamp' in sys.argv[2:]: STAMP = True
    for x in sys.argv[2:]:
        if x.startswith('thr'): THROTTLE = int(x[3:])
        if x.startswith('slp'): SLEEP = int(x[3:])
        if x == 'pzsc1': PZ_POL = ' sc1'
    main(sys.argv[1] if len(sys.argv) > 1 else 'parallel_sum__compressed_kv_cla__geglu_ffn__decode.s')
```

```python
import sys, math, struct
sys.path.insert(0, 'work')
from gen1 import Asm, srd, HDR, kd, bf16_round_pair, swz_reduce32, fsw
import gen3
from gen3 import f2u, wave_lane, lane_decomp, tr_base_p128, tr_base_p256, ln_issue, ln_compute, gelu4

WS_QPART = 0x0
WS_FFNP = 0x80000
WS_OPART = 0x800000
PZ = 0x200000
WS_QABS = PZ
WS_STATS = WS_QABS + 0x40000
WS_CTXP = WS_STATS + 0x10000
WS_ATTP = WS_CTXP + 0x100000
WS_FFNO = WS_ATTP + 0x80000
PZ_END = WS_FFNO + 43 * 16384
PZ_SIZE = PZ_END - PZ
PZ_PER_WAVE = 3
assert 256 * 4 * PZ_PER_WAVE * 1024 >= PZ_SIZE
WS_STAMP = 0xF000000
POLL_LIMIT = 20000
STAMP = False
THROTTLE = 8
PZ_POL = ''
SLEEP = 4
SENT = True
QPOS = 22

def stamp(a, i):
    if STAMP:
        a(f's_memtime s[{84+2*i}:{85+2*i}]')
        a('s_waitcnt lgkmcnt(0)')

uid = [0]
def poll_loads(a, issue_fn, regs, tmpv):
    uid[0] += 1
    n = uid[0]
    a('s_mov_b32 s72, 0')
    a.label(f'PL{n}')
    issue_fn()
    a('s_waitcnt vmcnt(0)')
    r = list(regs)
    a(f'v_max_u32 v{tmpv}, v{r[0]}, v{r[1]}')
    i = 2
    while i < len(r):
        if i + 1 < len(r):
            a(f'v_max3_u32 v{tmpv}, v{tmpv}, v{r[i]}, v{r[i+1]}')
            i += 2
        else:
            a(f'v_max_u32 v{tmpv}, v{tmpv}, v{r[i]}')
            i += 1
    a(f'v_cmp_eq_u32 vcc, -1, v{tmpv}')
    a('s_nop 3')
    a('s_cmp_eq_u64 vcc, 0')
    a(f's_cbranch_scc1 PD{n}')
    a('s_add_u32 s72, s72, 1')
    a(f's_cmp_lt_u32 s72, {POLL_LIMIT}')
    a(f's_cbranch_scc0 PD{n}')
    a(f's_sleep {SLEEP}')
    a(f's_branch PL{n}')
    a.label(f'PD{n}')

def wsync(a, k, vaddr, vone, vtmp):
    uid[0] += 1
    n = uid[0]
    a('s_waitcnt lgkmcnt(0)')
    a('s_mov_b64 exec, 1')
    a(f'ds_add_u32 v{vaddr}, v{vone}')
    a('s_mov_b64 exec, -1')
    a.label(f'WS{n}')
    a(f'ds_read_b32 v{vtmp}, v{vaddr}')
    a('s_waitcnt lgkmcnt(0)')
    a(f'v_readfirstlane_b32 s71, v{vtmp}')
    a('s_nop 3')
    a(f's_cmp_ge_u32 s71, {4*k}')
    a(f's_cbranch_scc0 WS{n}')

K1_WQT = 0
K1_FT = 16384
K1_XNA = 32768
K1_XNF = K1_XNA + 2304
K1_LDS = K1_XNF + 1280

def gen_k1(a):
    a.label('k1_kernel')
    a('s_cmp_ge_u32 s2, 256')
    a('s_cbranch_scc1 K1_EXIT')
    a('s_load_dwordx2 s[4:5], s[0:1], 0')
    a('s_load_dwordx2 s[8:9], s[0:1], 16')
    a('s_load_dwordx4 s[12:15], s[0:1], 56')
    a('s_load_dwordx2 s[18:19], s[0:1], 96')
    wave_lane(a, 3, 2)
    lane_decomp(a)
    a('s_lshr_b32 s73, s2, 3')
    a('s_lshr_b32 s74, s2, 1')
    a('s_and_b32 s74, s74, 3')
    a('s_and_b32 s75, s2, 1')
    a('s_and_b32 s68, s2, 7')
    a('v_lshrrev_b32 v8, 3, v2')
    a('v_lshrrev_b32 v9, 1, v8')
    a('v_and_b32 v9, 1, v9')
    a('v_lshlrev_b32 v9, 1, v9')
    a('v_xor_b32 v9, v9, v5')
    a('v_lshlrev_b32 v9, 4, v9')
    a('v_lshl_add_u32 v10, v8, 13, v9')
    a('v_xor_b32 v11, 64, v10')
    a('s_mov_b32 s70, 2752')
    a('v_mul_lo_u32 v12, v8, s70')
    a('v_add_u32 v13, v12, v9')
    a('v_xor_b32 v9, 64, v9')
    a('v_add_u32 v12, v12, v9')
    for r in range(200, 204):
        a(f'v_mov_b32 v{r}, -1')
    a('v_lshlrev_b32 v21, 4, v2')
    a('s_waitcnt lgkmcnt(0)')
    srd(a, 20, 4, 8192)
    srd(a, 28, 8, 4194304)
    T = 60
    ln_issue(a, 20, 3, T)
    a('s_lshl_b32 s70, s74, 20')
    a('s_lshl_b32 s71, s3, 18')
    a('s_add_u32 s70, s70, s71')
    a('s_lshl_b32 s71, s73, 8')
    a('s_add_u32 s70, s70, s71')
    a('s_lshl_b32 s71, s75, 7')
    a('s_add_u32 s70, s70, s71')
    a('s_lshl_b32 s71, s3, 12')
    for i in range(4):
        a('s_mov_b32 m0, s71')
        a('s_add_u32 s71, s71, 1024')
        a(f'buffer_load_dwordx4 v{10 + (i & 1)}, s[28:31], s70 offen nt lds')
        a('s_add_u32 s70, s70, 65536')
    a('s_cmp_ge_u32 s3, 2')
    a('s_cselect_b32 s76, s14, s12')
    a('s_cselect_b32 s77, s15, s13')
    a('s_and_b32 s77, s77, 0xffff')
    a('s_mov_b32 s78, 1409024')
    a('s_mov_b32 s79, 0x00020000')
    a('s_and_b32 s70, s3, 1')
    a('s_lshl_b32 s70, s70, 5')
    a('s_lshl_b32 s71, s68, 6')
    a('s_add_u32 s70, s70, s71')
    a('s_mul_i32 s70, s70, 2752')
    a('s_lshl_b32 s71, s73, 7')
    a('s_add_u32 s70, s70, s71')
    a('s_cmp_ge_u32 s2, 176')
    a('s_cselect_b32 s70, 0x40000000, s70')
    a('s_lshl_b32 s71, s3, 12')
    a(f's_add_u32 s71, s71, {K1_FT}')
    for i in range(4):
        a('s_mov_b32 m0, s71')
        a('s_add_u32 s71, s71, 1024')
        a(f'buffer_load_dwordx4 v{13 - (i & 1)}, s[76:79], s70 offen nt lds')
        a('s_add_u32 s70, s70, 22016')
    srd(a, 40, 18, PZ_SIZE, PZ)
    a('s_lshl_b32 s70, s2, 2')
    a('s_add_u32 s70, s70, s3')
    a(f's_mul_i32 s70, s70, {PZ_PER_WAVE*1024}')
    for i in range(PZ_PER_WAVE):
        a(f'buffer_store_dwordx4 v[200:203], v21, s[40:43], s70 offen{PZ_POL}')
        a('s_add_u32 s70, s70, 1024')
    NP = PZ_PER_WAVE
    srd(a, 48, 18, 524288, WS_QPART)
    srd(a, 56, 18, 0xB0000, WS_FFNP)
    ln_compute(a, T, 8 + NP)
    a('s_mov_b32 s70, 288')
    a(f'v_mul_lo_u32 v14, v{T}, s70')
    a(f'v_and_b32 v15, 7, v{T+1}')
    a('v_lshl_add_u32 v14, v15, 5, v14')
    a(f'v_lshrrev_b32 v15, 3, v{T+1}')
    a('v_cmp_eq_u32 vcc, s74, v15')
    a('s_and_saveexec_b64 s[80:81], vcc')
    a(f'ds_write_b128 v14, v[{T+4}:{T+7}] offset:{K1_XNA}')
    a(f'ds_write_b128 v14, v[{T+8}:{T+11}] offset:{K1_XNA+16}')
    a('s_mov_b64 exec, s[80:81]')
    a('s_mov_b32 s70, 160')
    a(f'v_mul_lo_u32 v14, v{T}, s70')
    a(f'v_and_b32 v15, 3, v{T+1}')
    a('v_lshl_add_u32 v14, v15, 5, v14')
    a(f'v_lshrrev_b32 v15, 2, v{T+1}')
    a('v_cmp_eq_u32 vcc, s68, v15')
    a('s_and_saveexec_b64 s[80:81], vcc')
    a(f'ds_write_b128 v14, v[{T+4}:{T+7}] offset:{K1_XNF}')
    a(f'ds_write_b128 v14, v[{T+8}:{T+11}] offset:{K1_XNF+16}')
    a('s_mov_b64 exec, s[80:81]')
    a('s_mov_b32 s70, 288')
    a('v_mul_lo_u32 v15, v5, s70')
    a('v_lshl_add_u32 v15, v4, 4, v15')
    a('s_mov_b32 s70, 160')
    a('v_mul_lo_u32 v17, v5, s70')
    a('v_lshl_add_u32 v17, v4, 4, v17')
    a('s_lshl_b32 s69, s3, 1')
    tr_base_p128(a, 18, 19, 0, 69)
    for r in range(24, 36):
        a(f'v_mov_b32 v{r}, 0')
    a('v_lshlrev_b32 v19, 9, v5')
    a('v_lshl_add_u32 v19, v4, 4, v19')
    a('s_lshl_b32 s82, s73, 14')
    a('s_lshl_b32 s71, s74, 12')
    a('s_add_u32 s82, s82, s71')
    a('s_lshl_b32 s71, s75, 8')
    a('s_add_u32 s82, s82, s71')
    a('s_lshl_b32 s71, s3, 6')
    a('s_add_u32 s82, s82, s71')
    a('s_mov_b32 s70, 5632')
    a('v_mul_lo_u32 v20, v5, s70')
    a('v_lshl_add_u32 v20, v4, 4, v20')
    a('s_mul_i32 s83, s68, 45056')
    a('s_lshl_b32 s71, s73, 8')
    a('s_add_u32 s83, s83, s71')
    a('s_lshl_b32 s71, s3, 6')
    a('s_add_u32 s83, s83, s71')
    a('s_cmp_ge_u32 s2, 176')
    a('s_cselect_b32 s83, 0x40000000, s83')
    a(f's_waitcnt vmcnt({4+NP}) lgkmcnt(0)')
    a('s_barrier')
    for ks in range(4):
        a(f'ds_read_b128 v[{36+8*ks}:{39+8*ks}], v15 offset:{K1_XNA+ks*64}')
        a(f'ds_read_b64_tr_b16 v[{40+8*ks}:{41+8*ks}], v18 offset:{K1_WQT+ks*4096}')
        a(f'ds_read_b64_tr_b16 v[{42+8*ks}:{43+8*ks}], v18 offset:{K1_WQT+ks*4096+512}')
    for ks in range(4):
        a(f's_waitcnt lgkmcnt({12-3*(ks+1)})')
        a(f'v_mfma_f32_16x16x32_bf16 v[24:27], v[{40+8*ks}:{43+8*ks}], v[{36+8*ks}:{39+8*ks}], v[24:27]')
    a(f's_waitcnt vmcnt({NP})')
    a.nop(8)
    a('buffer_store_dwordx4 v[24:27], v19, s[48:51], s82 offen')
    a('s_barrier')
    for ks in range(2):
        a(f'ds_read_b128 v[{36+4*ks}:{39+4*ks}], v17 offset:{K1_XNF+ks*64}')
    for mat in range(2):
        for ks in range(2):
            r = 44 + 8 * mat + 4 * ks
            a(f'ds_read_b64_tr_b16 v[{r}:{r+1}], v18 offset:{K1_FT+mat*8192+ks*4096}')
            a(f'ds_read_b64_tr_b16 v[{r+2}:{r+3}], v18 offset:{K1_FT+mat*8192+ks*4096+512}')
    a('s_waitcnt lgkmcnt(0)')
    for mat in range(2):
        for ks in range(2):
            r = 44 + 8 * mat + 4 * ks
            a(f'v_mfma_f32_16x16x32_bf16 v[{28+4*mat}:{31+4*mat}], v[{r}:{r+3}], v[{36+4*ks}:{39+4*ks}], v[{28+4*mat}:{31+4*mat}]')
    a.nop(10)
    a('buffer_store_dwordx4 v[28:31], v20, s[56:59], s83 offen')
    a('s_add_u32 s83, s83, 360448')
    a('buffer_store_dwordx4 v[32:35], v20, s[56:59], s83 offen')
    a.label('K1_EXIT')
    a('s_endpgm')

R0 = 131072
P_QB = R0
P_FS = R0 + 2304
P_HB = P_FS + 4096
P_WD = R0 + 9216
P_P = R0
P_ST = R0 + 8192
D_OT = 0
D_AL = 32768
D_CB = D_AL + 1024
D_OC = D_CB + 8192
D_CX = D_OC + 1280
D_WUV = 46080
D_WO = D_WUV + 16384
D_FA = 81920
F_FS = 90112
F_HB = 94208
F_WD = 97280
KP_LDS = 163840

def gen_kp(a):
    a.label('kp_kernel')
    a('s_cmp_ge_u32 s2, 256')
    a('s_cbranch_scc1 KP_EXIT')
    stamp(a, 0)
    a('s_load_dwordx4 s[4:7], s[0:1], 0')
    a('s_load_dwordx4 s[8:11], s[0:1], 24')
    a('s_load_dwordx2 s[12:13], s[0:1], 40')
    a('s_load_dwordx2 s[14:15], s[0:1], 72')
    a('s_load_dwordx2 s[16:17], s[0:1], 80')
    a('s_load_dwordx2 s[18:19], s[0:1], 96')
    wave_lane(a, 3, 2)
    a('s_waitcnt lgkmcnt(0)')
    srd(a, 24, 6, 33554432)
    a('s_cmp_ge_u32 s3, 4')
    a('s_cbranch_scc1 KP_LOADER')
    lane_decomp(a)
    a('s_lshr_b32 s73, s2, 3')
    a('s_and_b32 s68, s2, 7')
    a('s_lshr_b32 s74, s2, 2')
    a('s_and_b32 s75, s2, 3')
    srd(a, 48, 18, 524288, WS_QPART)
    srd(a, 32, 8, 4194304)
    a('v_lshrrev_b32 v22, 5, v0')
    a('v_and_b32 v23, 31, v0')
    a('v_lshlrev_b32 v19, 9, v22')
    a('v_lshl_add_u32 v19, v23, 4, v19')
    a('v_lshlrev_b32 v12, 13, v3')
    a('v_lshl_add_u32 v12, v4, 4, v12')
    a('v_lshrrev_b32 v8, 3, v2')
    a('s_lshl_b32 s70, s73, 14')
    for m in range(4):
        a(f'buffer_load_dwordx4 v[{36+4*m}:{39+4*m}], v19, s[48:51], s70 offen')
        a('s_add_u32 s70, s70, 4096')
    a('s_lshl_b32 s70, s68, 19')
    a('s_lshl_b32 s71, s3, 17')
    a('s_add_u32 s70, s70, s71')
    a('s_lshl_b32 s71, s73, 8')
    a('s_add_u32 s70, s70, s71')
    for st in range(4):
        a(f'buffer_load_dwordx4 v[{104+4*st}:{107+4*st}], v12, s[32:35], s70 offen offset:{st*64} nt')
    a('v_lshlrev_b32 v13, 1, v4')
    a('v_xor_b32 v13, v13, v3')
    a('v_lshlrev_b32 v13, 4, v13')
    a(f'v_mov_b32 v226, {R0 + 20480}')
    a('v_mov_b32 v227, 1')
    a('v_mov_b32 v228, 0')
    a('ds_write_b32 v226, v228')
    a('ds_write_b32 v226, v228 offset:4')
    a('ds_write_b32 v226, v228 offset:8')
    a('s_waitcnt lgkmcnt(0)')
    a('s_barrier')
    srd(a, 52, 18, 262144, WS_QABS)
    srd(a, 56, 18, 43 * 16384, WS_FFNO)
    srd(a, 60, 18, 65536, WS_STATS)
    srd(a, 64, 18, 8388608, WS_OPART)
    a('s_mov_b32 s70, 288')
    a('v_mul_lo_u32 v20, v22, s70')
    a('v_lshl_add_u32 v20, v23, 3, v20')
    a('v_mul_lo_u32 v16, v5, s70')
    a('v_lshl_add_u32 v16, v4, 4, v16')
    a(f'v_add_u32 v21, {P_QB}, v20')
    a(f'v_add_u32 v24, {P_QB}, v16')
    a('s_lshl_b32 s69, s3, 2')
    tr_base_p256(a, 26, 28, 0, 69)
    a('s_add_u32 s69, s69, 2')
    tr_base_p256(a, 27, 28, 0, 69)
    a('s_waitcnt vmcnt(4)')
    for e in range(4):
        a(f'v_add_f32 v{36+e}, v{36+e}, v{40+e}')
        a(f'v_add_f32 v{44+e}, v{44+e}, v{48+e}')
        a(f'v_add_f32 v{36+e}, v{36+e}, v{44+e}')
    a('v_cvt_pk_bf16_f32 v40, v36, v37')
    a('v_cvt_pk_bf16_f32 v41, v38, v39')
    a('ds_write_b64 v21, v[40:41]')
    wsync(a, 1, 226, 227, 228)
    for st in range(4):
        a(f'ds_read_b128 v[{36+4*st}:{39+4*st}], v24 offset:{st*64}')
    for r in range(56, 60):
        a(f'v_mov_b32 v{r}, 0')
    a('v_lshlrev_b32 v25, 15, v5')
    a('v_lshl_add_u32 v25, v4, 3, v25')
    a('s_lshl_b32 s70, s73, 10')
    a('s_lshl_b32 s71, s68, 7')
    a('s_add_u32 s70, s70, s71')
    a('s_lshl_b32 s71, s3, 5')
    a('s_add_u32 s70, s70, s71')
    a('s_waitcnt vmcnt(0) lgkmcnt(0)')
    for st in range(4):
        a(f'v_mfma_f32_16x16x32_bf16 v[56:59], v[{104+4*st}:{107+4*st}], v[{36+4*st}:{39+4*st}], v[56:59]')
    a.nop(10)
    a('v_cvt_pk_bf16_f32 v60, v56, v57')
    a('v_cvt_pk_bf16_f32 v61, v58, v59')
    a('buffer_store_dwordx2 v[60:61], v25, s[52:55], s70 offen sc1')
    stamp(a, 1)
    a('v_lshlrev_b32 v29, 11, v5')
    a('v_lshl_add_u32 v29, v4, 4, v29')
    wsync(a, 2, 226, 227, 228)
    a('s_mov_b64 exec, 1')
    a('ds_add_u32 v226, v227 offset:4')
    a('s_mov_b64 exec, -1')
    a('v_lshlrev_b32 v30, 4, v2')
    a('s_lshr_b32 s69, s2, 5')
    stamp(a, 2)
    a('v_and_b32 v224, 31, v2')
    a('v_lshrrev_b32 v225, 5, v2')
    a('v_and_b32 v9, 3, v224')
    a('v_lshlrev_b32 v9, 2, v9')
    a('v_lshrrev_b32 v10, 2, v224')
    a('v_and_b32 v10, 3, v10')
    a('v_or_b32 v9, v9, v10')
    a('v_xor_b32 v9, v9, v225')
    a('v_lshlrev_b32 v10, 10, v224')
    a('s_lshl_b32 s70, s3, 15')
    a('v_add_u32 v11, s70, v10')
    a(f'v_add_u32 v12, {R0}, v10')
    for e in range(8):
        a(f'v_xor_b32 v14, {2*e}, v9')
        a(f'v_lshl_add_u32 v{232+e}, v14, 4, v11')
        a(f'v_lshl_add_u32 v{240+e}, v14, 4, v12')
    for r in range(32, 48):
        a(f'v_mov_b32 v{r}, 0')
    for r in range(80, 128):
        a(f'v_mov_b32 v{r}, 0')
    a('v_and_b32 v9, 1, v4')
    a('v_lshrrev_b32 v10, 1, v7')
    a('v_lshl_add_u32 v10, v9, 1, v10')
    a('v_lshl_add_u32 v11, v225, 2, v6')
    a('v_lshlrev_b32 v11, 10, v11')
    a('s_lshl_b32 s70, s3, 8')
    a('v_add_u32 v11, s70, v11')
    a('v_and_b32 v9, 1, v7')
    a('v_lshl_add_u32 v11, v9, 3, v11')
    for sec in range(2):
        a(f'v_add_u32 v9, {2*sec}, v225')
        a('v_xor_b32 v9, v9, v10')
        for t in range(4):
            a(f'v_xor_b32 v14, {t}, v6')
            a('v_lshl_add_u32 v14, v14, 2, v9')
            a(f'v_lshl_add_u32 v{160+2*t+sec}, v14, 4, v11')
            if sec:
                a(f'v_add_u32 v{160+2*t+sec}, 8192, v{160+2*t+sec}')
    a('s_waitcnt lgkmcnt(0)')
    a('s_barrier')
    a('s_lshl_b32 s71, s3, 13')
    a(f's_add_u32 s71, s71, {R0}')
    a('v_add_u32 v9, s71, v30')
    for i in range(8):
        a(f'ds_read_b128 v[{128+4*i}:{131+4*i}], v9 offset:{i*1024}')
    a('s_waitcnt lgkmcnt(0)')
    a('v_max_u32 v22, v128, v129')
    for i in range(130, 160, 2):
        a(f'v_max3_u32 v22, v22, v{i}, v{i+1}')
    a('v_cmp_eq_u32 vcc, -1, v22')
    a('s_nop 3')
    a('s_cmp_eq_u64 vcc, 0')
    a('s_cbranch_scc1 KP_QOK')
    def issue_qabs():
        a('s_lshl_b32 s70, s69, 15')
        a('s_lshl_b32 s71, s3, 13')
        a('s_add_u32 s70, s70, s71')
        for i in range(8):
            a(f'buffer_load_dwordx4 v[{128+4*i}:{131+4*i}], v30, s[52:55], s70 offen sc1')
            a('s_add_u32 s70, s70, 1024')
    poll_loads(a, issue_qabs, range(128, 160), 22)
    a('s_lshl_b32 s71, s3, 13')
    a(f's_add_u32 s71, s71, {R0}')
    a('s_and_b32 s70, s3, 1')
    a('s_lshl_b32 s70, s70, 5')
    for i in range(8):
        a(f'v_xor_b32 v9, {(((i & 3) << 2) | (i >> 2)) << 4}, v30')
        a('v_xor_b32 v9, s70, v9')
        a('v_add_u32 v9, s71, v9')
        a(f'ds_write_b128 v9, v[{128+4*i}:{131+4*i}] offset:{i*1024}')
    a('s_waitcnt lgkmcnt(0)')
    a.label('KP_QOK')
    a('s_barrier')
    stamp(a, 3)
    srd(a, 36, 10, 4194304)
    a('v_lshlrev_b32 v14, 4, v3')
    a('v_lshl_add_u32 v14, v4, 13, v14')
    a('s_lshr_b32 s70, s68, 1')
    a('s_lshl_b32 s70, s70, 7')
    a('s_and_b32 s71, s68, 1')
    a('s_lshl_b32 s71, s71, 2')
    a('s_add_u32 s70, s70, s71')
    a('s_lshl_b32 s71, s3, 5')
    a('s_add_u32 s70, s70, s71')
    a('s_lshl_b32 s70, s70, 13')
    a('s_lshl_b32 s71, s73, 8')
    a('s_add_u32 s70, s70, s71')
    for i in range(4):
        a(f'buffer_load_dwordx4 v[{192+4*i}:{195+4*i}], v14, s[36:39], s70 offen nt')
        a('s_add_u32 s70, s70, 65536')
    srd(a, 44, 12, 4194304)
    a('v_lshlrev_b32 v14, 4, v5')
    a('v_lshl_add_u32 v14, v8, 10, v14')
    a('s_lshl_b32 s70, s73, 17')
    a('s_lshl_b32 s71, s3, 15')
    a('s_add_u32 s70, s70, s71')
    a('s_lshl_b32 s71, s68, 7')
    a('s_add_u32 s70, s70, s71')
    for i in range(4):
        a(f'buffer_load_dwordx4 v[{208+4*i}:{211+4*i}], v14, s[44:47], s70 offen nt')
        a('s_add_u32 s70, s70, 8192')
    def rd(st):
        return [f'ds_read_b128 v[{48+4*(st&3)}:{51+4*(st&3)}], v{232+(st&7)} offset:{(st>>3)*256}',
                f'ds_read_b128 v[{64+4*(st&3)}:{67+4*(st&3)}], v{240+(st&7)} offset:{(st>>3)*256}']
    for st in range(3):
        for s in rd(st): a(s)
    for st in range(32):
        if st + 3 < 32:
            for s in rd(st + 3): a(s)
            a('s_waitcnt lgkmcnt(6)')
        else:
            a(f's_waitcnt lgkmcnt({2*(31-st)})')
        a(f'v_mfma_f32_32x32x16_bf16 v[32:47], v[{48+4*(st&3)}:{51+4*(st&3)}], v[{64+4*(st&3)}:{67+4*(st&3)}], v[32:47]')
    a('s_barrier')
    for r in range(64, 80):
        a(f'v_mov_b32 v{r}, 0')
    srd(a, 40, 18, 0xB0000, WS_FFNP)
    srd(a, 28, 14, 1409024)
    a('s_mov_b32 s70, 5632')
    a('v_mul_lo_u32 v14, v8, s70')
    a('v_lshl_add_u32 v14, v5, 4, v14')
    a('s_and_b32 s70, s3, 1')
    a('s_mul_i32 s70, s70, 360448')
    a('s_lshr_b32 s71, s3, 1')
    a('s_mul_i32 s71, s71, 180224')
    a('s_add_u32 s70, s70, s71')
    a('s_lshl_b32 s71, s74, 7')
    a('s_add_u32 s70, s70, s71')
    a('s_cmp_ge_u32 s2, 172')
    a('s_cselect_b32 s70, 0x40000000, s70')
    for i in range(4):
        a(f'buffer_load_dwordx4 v[{232+4*i}:{235+4*i}], v14, s[40:43], s70 offen')
        a('s_add_u32 s70, s70, 45056')
    a('v_lshlrev_b32 v14, 4, v3')
    a('v_lshl_add_u32 v14, v4, 10, v14')
    a('s_lshl_b32 s70, s74, 15')
    a('s_lshl_b32 s71, s3, 13')
    a('s_add_u32 s70, s70, s71')
    a('s_lshl_b32 s71, s75, 8')
    a('s_add_u32 s70, s70, s71')
    a('s_cmp_ge_u32 s2, 172')
    a('s_cselect_b32 s70, 0x40000000, s70')
    for i in range(2):
        a(f'buffer_load_dwordx4 v[{184+4*i}:{187+4*i}], v14, s[28:31], s70 offen nt')
        a('s_add_u32 s70, s70, 4096')
    a('s_mov_b32 s70, 0x3db504f3')
    for i in range(8):
        bf16_round_pair(a, 32+2*i, 33+2*i, 32+2*i, 33+2*i, 48)
        a(f'v_mul_f32 v{32+2*i}, s70, v{32+2*i}')
        a(f'v_mul_f32 v{33+2*i}, s70, v{33+2*i}')
        bf16_round_pair(a, 32+2*i, 33+2*i, 32+2*i, 33+2*i, 48)
    a('v_max3_f32 v48, v32, v33, v34')
    for i in range(35, 47, 2):
        a(f'v_max3_f32 v48, v48, v{i}, v{i+1}')
    a('v_max_f32 v48, v48, v47')
    a('v_mov_b32 v49, v48')
    a('s_nop 1')
    a('v_permlane32_swap_b32 v48, v49')
    a('v_max_f32 v48, v48, v49')
    a('v_lshlrev_b32 v11, 2, v224')
    a(f'v_add_u32 v11, {P_ST}, v11')
    a('s_lshl_b32 s70, s3, 7')
    a('v_add_u32 v12, s70, v11')
    a('ds_write_b32 v12, v48')
    a('s_waitcnt lgkmcnt(0)')
    a('s_barrier')
    a('ds_read_b32 v48, v11')
    a('ds_read_b32 v49, v11 offset:128')
    a('ds_read_b32 v50, v11 offset:256')
    a('ds_read_b32 v51, v11 offset:384')
    a('s_waitcnt lgkmcnt(0)')
    a('v_max3_f32 v48, v48, v49, v50')
    a('v_max_f32 v48, v48, v51')
    a('s_mov_b32 s70, 0x3fb8aa3b')
    a('v_mul_f32 v49, s70, v48')
    for i in range(16):
        a(f'v_fma_f32 v{32+i}, v{32+i}, s70, -v49')
        a(f'v_exp_f32 v{32+i}, v{32+i}')
    a('s_nop 0')
    a('v_add_f32 v50, v32, v33')
    for i in range(2, 16):
        a(f'v_add_f32 v50, v50, v{32+i}')
    a('v_mov_b32 v51, v50')
    a('s_nop 1')
    a('v_permlane32_swap_b32 v50, v51')
    a('v_add_f32 v50, v50, v51')
    a('ds_write_b32 v12, v50 offset:512')
    for i in range(8):
        a(f'v_cvt_pk_bf16_f32 v{52+i}, v{32+2*i}, v{33+2*i}')
    a('s_lshl_b32 s70, s3, 11')
    a(f's_add_u32 s70, s70, {P_P}')
    a('v_add_u32 v14, s70, v30')
    a('ds_write_b128 v14, v[52:55]')
    a('ds_write_b128 v14, v[56:59] offset:1024')
    a('s_waitcnt lgkmcnt(0)')
    a('s_barrier')
    a('ds_read_b32 v50, v11 offset:512')
    a('ds_read_b32 v51, v11 offset:640')
    a('ds_read_b32 v52, v11 offset:768')
    a('ds_read_b32 v53, v11 offset:896')
    a(f'v_add_u32 v14, {P_P}, v30')
    for u in range(8):
        a(f'ds_read_b128 v[{128+4*u}:{131+4*u}], v14 offset:{u*1024}')
    def trrd(u, t, buf):
        off = (u & 3) * 16384
        return [f'ds_read_b64_tr_b16 v[{buf}:{buf+1}], v{160+2*t} offset:{off}',
                f'ds_read_b64_tr_b16 v[{buf+2}:{buf+3}], v{161+2*t} offset:{off}']
    seq = [(u, t) for u in range(8) for t in range(4)]
    bufs = [168, 172, 176, 180]
    def issue(idx):
        u, t = seq[idx]
        if u == 4 and t == 0:
            for r in range(160, 168):
                a(f'v_add_u32 v{r}, 0x10000, v{r}')
        for s in trrd(u, t, bufs[idx & 3]):
            a(s)
    for idx in range(3):
        issue(idx)
    a('s_waitcnt lgkmcnt(6)')
    a('v_add_f32 v50, v50, v51')
    a('v_add_f32 v52, v52, v53')
    a('v_add_f32 v49, v50, v52')
    a('v_mov_b32 v230, v48')
    a('v_mov_b32 v231, v49')
    for idx in range(32):
        u, t = seq[idx]
        if idx + 3 < 32:
            issue(idx + 3)
            a('s_waitcnt lgkmcnt(6)')
        else:
            a(f's_waitcnt lgkmcnt({2*(31-idx)})')
        b = bufs[idx & 3]
        a(f'v_mfma_f32_32x32x16_bf16 v[{64+16*t}:{79+16*t}], v[{b}:{b+3}], v[{128+4*u}:{131+4*u}], v[{64+16*t}:{79+16*t}]')
    a('s_barrier')
    stamp(a, 4)
    a('v_and_b32 v9, 7, v224')
    a('v_lshlrev_b32 v10, 3, v225')
    a('s_lshl_b32 s70, s3, 4')
    a('v_add_u32 v10, s70, v10')
    a('v_lshlrev_b32 v11, 10, v224')
    a.nop(6)
    for t in range(4):
        for i in range(8):
            a(f'v_cvt_pk_bf16_f32 v{128+8*t+i}, v{64+16*t+2*i}, v{65+16*t+2*i}')
        for i in range(2):
            a(f'v_xor_b32 v14, {2*t+i}, v9')
            a('v_add_u32 v14, v14, v10')
            a('v_lshl_add_u32 v14, v14, 4, v11')
            a(f'ds_write_b128 v14, v[{128+8*t+4*i}:{131+8*t+4*i}]')
    a('s_waitcnt vmcnt(0)')
    a('v_lshl_add_u32 v14, v4, 8, v13')
    a('s_and_b32 s70, s3, 1')
    a('s_lshl_b32 s70, s70, 7')
    a('v_xor_b32 v14, s70, v14')
    a('s_lshl_b32 s70, s3, 11')
    a(f's_add_u32 s70, s70, {F_WD}')
    a('v_add_u32 v14, s70, v14')
    a('ds_write_b128 v14, v[184:187]')
    a('ds_write_b128 v14, v[188:191] offset:1024')
    for e in range(4):
        a(f'v_add_f32 v{232+e}, v{232+e}, v{236+e}')
        a(f'v_add_f32 v{240+e}, v{240+e}, v{244+e}')
        a(f'v_add_f32 v{232+e}, v{232+e}, v{240+e}')
    a('v_lshlrev_b32 v21, 4, v0')
    a(f'v_add_u32 v21, {F_FS}, v21')
    a('ds_write_b128 v21, v[232:235]')
    a('v_lshl_add_u32 v14, v4, 8, v13')
    a('s_lshl_b32 s70, s3, 12')
    a(f's_add_u32 s70, s70, {D_WUV}')
    a('v_add_u32 v14, s70, v14')
    a('v_xor_b32 v15, 128, v14')
    for i in range(4):
        a(f'ds_write_b128 v{14 + ((i >> 1) & 1)}, v[{192+4*i}:{195+4*i}] offset:{i*1024}')
    a('v_lshrrev_b32 v14, 1, v8')
    a('v_and_b32 v14, 1, v14')
    a('v_lshlrev_b32 v14, 1, v14')
    a('v_xor_b32 v14, v14, v5')
    a('v_lshlrev_b32 v14, 4, v14')
    a('v_lshl_add_u32 v14, v8, 7, v14')
    a('s_lshl_b32 s70, s3, 12')
    a(f's_add_u32 s70, s70, {D_WO}')
    a('v_add_u32 v14, s70, v14')
    a('v_xor_b32 v15, 64, v14')
    for i in range(4):
        a(f'ds_write_b128 v{14 + (i & 1)}, v[{208+4*i}:{211+4*i}] offset:{i*1024}')
    a('s_waitcnt lgkmcnt(0)')
    a('s_barrier')
    a('s_lshl_b32 s70, s3, 13')
    a('s_lshl_b32 s71, s2, 15')
    a('s_add_u32 s71, s71, s70')
    for i in range(8):
        a(f'v_xor_b32 v14, {i << 4}, v30')
        a('v_add_u32 v14, s70, v14')
        a(f'ds_read_b128 v[{128+4*i}:{131+4*i}], v14 offset:{i*1024}')
    for i in range(8):
        a(f's_waitcnt lgkmcnt({7-i})')
        a(f'buffer_store_dwordx4 v[{128+4*i}:{131+4*i}], v30, s[64:67], s71 offen sc1')
        a('s_add_u32 s71, s71, 1024')
    a('s_waitcnt vmcnt(0)')
    a('s_barrier')
    a('s_cmp_lg_u32 s3, 0')
    a('s_cbranch_scc1 KP_NOST')
    a('v_lshlrev_b32 v14, 11, v224')
    a('s_lshl_b32 s70, s2, 3')
    a('s_mov_b64 exec, 0xffffffff')
    a('buffer_store_dwordx2 v[230:231], v14, s[60:63], s70 offen sc1')
    a('s_mov_b64 exec, -1')
    a('ds_read_b128 v[96:99], v21')
    a('ds_read_b128 v[100:103], v21 offset:1024')
    a('ds_read_b128 v[104:107], v21 offset:2048')
    a('ds_read_b128 v[108:111], v21 offset:3072')
    a('s_waitcnt lgkmcnt(0)')
    for e in range(4):
        a(f'v_add_f32 v{96+e}, v{96+e}, v{104+e}')
        a(f'v_add_f32 v{100+e}, v{100+e}, v{108+e}')
    bf16_round_pair(a, 96, 97, 96, 97, 23)
    bf16_round_pair(a, 98, 99, 98, 99, 23)
    bf16_round_pair(a, 100, 101, 100, 101, 23)
    bf16_round_pair(a, 102, 103, 102, 103, 23)
    gelu4(a, [96, 97, 98, 99], 23)
    bf16_round_pair(a, 96, 97, 96, 97, 23)
    bf16_round_pair(a, 98, 99, 98, 99, 23)
    for e in range(4):
        a(f'v_mul_f32 v{96+e}, v{96+e}, v{100+e}')
    a('v_cvt_pk_bf16_f32 v104, v96, v97')
    a('v_cvt_pk_bf16_f32 v105, v98, v99')
    a('s_mov_b32 s70, 288')
    a('v_mul_lo_u32 v22, v8, s70')
    a('v_lshl_add_u32 v22, v5, 3, v22')
    a(f'v_add_u32 v22, {F_HB}, v22')
    a('ds_write_b64 v22, v[104:105]')
    a.label('KP_NOST')
    stamp(a, 5)
    a('s_waitcnt lgkmcnt(0)')
    a('s_barrier')
    a(f'v_add_u32 v22, {F_HB}, v16')
    a('ds_read_b128 v[32:35], v22')
    a(f'v_add_u32 v22, {F_WD}, v26')
    a(f'v_add_u32 v23, {F_WD}, v27')
    for tl in range(2):
        r = 64 + 4 * tl
        a(f'ds_read_b64_tr_b16 v[{r}:{r+1}], v{22+tl}')
        a(f'ds_read_b64_tr_b16 v[{r+2}:{r+3}], v{22+tl} offset:1024')
    for r in range(72, 80):
        a(f'v_mov_b32 v{r}, 0')
    a('s_lshl_b32 s70, s74, 14')
    a('s_lshl_b32 s71, s75, 9')
    a('s_add_u32 s70, s70, s71')
    a('s_lshl_b32 s71, s3, 7')
    a('s_add_u32 s70, s70, s71')
    a('s_cmp_ge_u32 s2, 172')
    a('s_cselect_b32 s70, 0x40000000, s70')
    a('s_waitcnt lgkmcnt(0)')
    for tl in range(2):
        r = 64 + 4 * tl
        a(f'v_mfma_f32_16x16x32_bf16 v[{72+4*tl}:{75+4*tl}], v[{r}:{r+3}], v[32:35], v[{72+4*tl}:{75+4*tl}]')
    a.nop(10)
    a('buffer_store_dwordx4 v[72:75], v29, s[56:59], s70 offen sc1')
    a('buffer_store_dwordx4 v[76:79], v29, s[56:59], s70 offen offset:64 sc1')
    srd(a, 48, 18, 1048576, WS_CTXP)
    srd(a, 40, 18, 524288, WS_ATTP)
    a('v_lshlrev_b32 v9, 3, v0')
    a('v_lshlrev_b32 v10, 20, v8')
    a('v_lshl_add_u32 v10, v5, 4, v10')
    def issue_S():
        a('s_lshl_b32 s70, s73, 11')
        a('buffer_load_dwordx2 v[32:33], v9, s[60:63], s70 offen sc1')
    poll_loads(a, issue_S, [32, 33], 22)
    a('s_barrier')
    a('s_lshl_b32 s70, s3, 18')
    a('s_lshl_b32 s71, s73, 10')
    a('s_add_u32 s70, s70, s71')
    a('s_lshl_b32 s71, s68, 7')
    a('s_add_u32 s70, s70, s71')
    for i in range(8):
        a(f'buffer_load_dwordx4 v[{64+4*i}:{67+4*i}], v10, s[64:67], s70 offen sc1')
        a('s_add_u32 s70, s70, 32768')
    stamp(a, 6)
    a('v_mov_b32 v34, v32')
    swz_reduce32(a, 34, 35, 'v_max_f32')
    a('v_sub_f32 v34, v32, v34')
    a('v_mul_f32 v34, 0x3fb8aa3b, v34')
    a('v_exp_f32 v34, v34')
    a('s_nop 0')
    a('v_mul_f32 v36, v34, v33')
    swz_reduce32(a, 36, 35, 'v_add_f32')
    a('v_rcp_f32 v36, v36')
    a('s_nop 0')
    a('v_mul_f32 v34, v34, v36')
    a('v_lshlrev_b32 v35, 2, v0')
    a(f'ds_write_b32 v35, v34 offset:{D_AL}')
    a('s_waitcnt lgkmcnt(0)')
    a('s_barrier')
    a('v_lshlrev_b32 v35, 7, v8')
    a('s_lshl_b32 s70, s3, 5')
    a('v_add_u32 v35, s70, v35')
    a(f'ds_read_b128 v[36:39], v35 offset:{D_AL}')
    a(f'ds_read_b128 v[40:43], v35 offset:{D_AL+16}')
    for r in range(48, 56):
        a(f'v_mov_b32 v{r}, 0')
    a('s_waitcnt lgkmcnt(0)')
    for i in range(8):
        a(f's_waitcnt vmcnt({7-i})')
        for e in range(4):
            a(f'v_lshlrev_b32 v22, 16, v{64+4*i+e}')
            a(f'v_and_b32 v23, 0xffff0000, v{64+4*i+e}')
            a(f'v_fmac_f32 v{48+2*e}, v22, v{36+i}')
            a(f'v_fmac_f32 v{49+2*e}, v23, v{36+i}')
    a('v_lshlrev_b32 v35, 5, v0')
    a(f'ds_write_b128 v35, v[48:51] offset:{D_CB}')
    a(f'ds_write_b128 v35, v[52:55] offset:{D_CB+16}')
    a('s_waitcnt lgkmcnt(0)')
    a('s_barrier')
    a('s_cmp_lg_u32 s3, 0')
    a('s_cbranch_scc1 KP_NOSUM')
    for w in range(1, 4):
        a(f'ds_read_b128 v[{56+8*(w-1)}:{59+8*(w-1)}], v35 offset:{D_CB+w*2048}')
        a(f'ds_read_b128 v[{60+8*(w-1)}:{63+8*(w-1)}], v35 offset:{D_CB+w*2048+16}')
    a('s_waitcnt lgkmcnt(0)')
    for e in range(8):
        a(f'v_add_f32 v{48+e}, v{48+e}, v{56+e}')
        a(f'v_add_f32 v{64+e}, v{64+e}, v{72+e}')
        a(f'v_add_f32 v{48+e}, v{48+e}, v{64+e}')
    for e in range(4):
        a(f'v_cvt_pk_bf16_f32 v{56+e}, v{48+2*e}, v{49+2*e}')
    a('s_mov_b32 s70, 160')
    a('v_mul_lo_u32 v35, v8, s70')
    a('v_lshl_add_u32 v35, v5, 4, v35')
    a(f'ds_write_b128 v35, v[56:59] offset:{D_OC}')
    a.label('KP_NOSUM')
    a('s_mov_b32 s70, 160')
    a('v_mul_lo_u32 v24, v5, s70')
    a('v_lshl_add_u32 v24, v4, 4, v24')
    for r in range(96, 104):
        a(f'v_mov_b32 v{r}, 0')
    a('v_lshlrev_b32 v28, 9, v5')
    a('v_lshl_add_u32 v28, v4, 4, v28')
    a('s_lshl_b32 s70, s2, 12')
    a('s_lshl_b32 s71, s3, 7')
    a('s_add_u32 s70, s70, s71')
    a('s_waitcnt lgkmcnt(0)')
    a('s_barrier')
    for ks in range(2):
        a(f'ds_read_b128 v[{32+4*ks}:{35+4*ks}], v24 offset:{D_OC+ks*64}')
        for tl in range(2):
            r = 64 + 8 * ks + 4 * tl
            a(f'ds_read_b64_tr_b16 v[{r}:{r+1}], v{26+tl} offset:{D_WUV+ks*8192}')
            a(f'ds_read_b64_tr_b16 v[{r+2}:{r+3}], v{26+tl} offset:{D_WUV+ks*8192+1024}')
    a('s_waitcnt lgkmcnt(0)')
    for ks in range(2):
        for tl in range(2):
            r = 64 + 8 * ks + 4 * tl
            a(f'v_mfma_f32_16x16x32_bf16 v[{96+4*tl}:{99+4*tl}], v[{r}:{r+3}], v[{32+4*ks}:{35+4*ks}], v[{96+4*tl}:{99+4*tl}]')
    a.nop(10)
    a('buffer_store_dwordx4 v[96:99], v28, s[48:51], s70 offen sc1')
    a('buffer_store_dwordx4 v[100:103], v28, s[48:51], s70 offen offset:64 sc1')
    a('s_lshl_b32 s69, s3, 1')
    tr_base_p128(a, 26, 27, D_WO, 69)
    def issue_ctx():
        a('s_lshl_b32 s70, s73, 15')
        for m in range(8):
            a(f'buffer_load_dwordx4 v[{64+4*m}:{67+4*m}], v19, s[48:51], s70 offen sc1')
            a('s_add_u32 s70, s70, 4096')
    poll_loads(a, issue_ctx, range(64, 96), 22)
    stamp(a, 7)
    for e in range(4):
        a(f'v_add_f32 v{64+e}, v{64+e}, v{68+e}')
        a(f'v_add_f32 v{72+e}, v{72+e}, v{76+e}')
        a(f'v_add_f32 v{80+e}, v{80+e}, v{84+e}')
        a(f'v_add_f32 v{88+e}, v{88+e}, v{92+e}')
        a(f'v_add_f32 v{64+e}, v{64+e}, v{72+e}')
        a(f'v_add_f32 v{80+e}, v{80+e}, v{88+e}')
        a(f'v_add_f32 v{64+e}, v{64+e}, v{80+e}')
    a('v_cvt_pk_bf16_f32 v68, v64, v65')
    a('v_cvt_pk_bf16_f32 v69, v66, v67')
    a(f'ds_write_b64 v20, v[68:69] offset:{D_CX}')
    for r in range(56, 60):
        a(f'v_mov_b32 v{r}, 0')
    a('s_lshl_b32 s70, s73, 14')
    a('s_lshl_b32 s71, s68, 8')
    a('s_add_u32 s70, s70, s71')
    a('s_lshl_b32 s71, s3, 6')
    a('s_add_u32 s70, s70, s71')
    a('s_waitcnt lgkmcnt(0)')
    a('s_barrier')
    for ks in range(4):
        a(f'ds_read_b128 v[{32+4*ks}:{35+4*ks}], v16 offset:{D_CX+ks*64}')
        a(f'ds_read_b64_tr_b16 v[{64+4*ks}:{65+4*ks}], v26 offset:{ks*4096}')
        a(f'ds_read_b64_tr_b16 v[{66+4*ks}:{67+4*ks}], v26 offset:{ks*4096+512}')
    for ks in range(4):
        a(f's_waitcnt lgkmcnt({12-3*(ks+1)})')
        a(f'v_mfma_f32_16x16x32_bf16 v[56:59], v[{64+4*ks}:{67+4*ks}], v[{32+4*ks}:{35+4*ks}], v[56:59]')
    a.nop(10)
    a('buffer_store_dwordx4 v[56:59], v29, s[40:43], s70 offen sc1')
    srd(a, 20, 4, 8192)
    srd(a, 28, 16, 8192)
    a('v_and_b32 v9, 3, v0')
    a('v_lshrrev_b32 v10, 2, v0')
    a('v_lshlrev_b32 v11, 14, v10')
    a('v_lshl_add_u32 v11, v9, 4, v11')
    a('v_lshlrev_b32 v12, 1, v0')
    a('s_lshl_b32 s69, s2, 5')
    a('buffer_load_ushort v40, v12, s[20:23], s69 offen')
    def issue_fin():
        a('s_lshl_b32 s70, s2, 6')
        a('buffer_load_dwordx4 v[64:67], v11, s[40:43], s70 offen sc1')
        a('buffer_load_dwordx4 v[68:71], v11, s[56:59], s70 offen sc1')
    poll_loads(a, issue_fin, range(64, 72), 22)
    a('v_lshlrev_b32 v14, 4, v0')
    a(f'v_add_u32 v14, {D_FA}, v14')
    a('ds_write_b128 v14, v[64:67]')
    a('ds_write_b128 v14, v[68:71] offset:4096')
    a('s_waitcnt lgkmcnt(0)')
    a('s_barrier')
    a('v_cmp_gt_u32 vcc, 16, v0')
    a('s_and_saveexec_b64 s[80:81], vcc')
    a('s_cbranch_execz KP_FIN')
    a('v_lshlrev_b32 v14, 2, v0')
    a(f'v_add_u32 v14, {D_FA}, v14')
    for g in range(32):
        a(f'ds_read_b32 v{64+g}, v14 offset:{g*64}')
    for g in range(43):
        a(f'ds_read_b32 v{128+g}, v14 offset:{4096+g*64}')
    a('s_waitcnt lgkmcnt(0)')
    for step in (16, 8, 4, 2, 1):
        for i in range(step):
            a(f'v_add_f32 v{64+i}, v{64+i}, v{64+i+step}')
    for i in range(11):
        a(f'v_add_f32 v{128+i}, v{128+i}, v{160+i}')
    for step in (16, 8, 4, 2, 1):
        for i in range(step):
            a(f'v_add_f32 v{128+i}, v{128+i}, v{128+i+step}')
    a('v_lshlrev_b32 v40, 16, v40')
    bf16_round_pair(a, 64, 128, 64, 128, 15)
    a('v_add_f32 v64, v64, v40')
    bf16_round_pair(a, 64, 65, 64, 64, 15)
    a('v_add_f32 v64, v64, v128')
    a('v_cvt_pk_bf16_f32 v64, v64, v64')
    a('buffer_store_short v64, v12, s[28:31], s69 offen')
    a.label('KP_FIN')
    a('s_mov_b64 exec, s[80:81]')
    if STAMP:
        stamp(a, 8)
        a('s_cmp_lg_u32 s3, 0')
        a('s_cbranch_scc1 KP_EXIT')
        srd(a, 76, 18, 1 << 20, WS_STAMP)
        a('s_lshl_b32 s80, s2, 7')
        a('v_mov_b32 v250, 0')
        for i in range(9):
            a(f'v_mov_b32 v251, s{84+2*i}')
            a(f'buffer_store_dword v251, v250, s[76:79], s80 offen offset:{4*i}')
    a('s_branch KP_EXIT')

    a.label('KP_LOADER')
    srd(a, 52, 18, 262144, WS_QABS)
    a('s_sub_u32 s69, s3, 4')
    a('v_lshlrev_b32 v3, 4, v2')
    a('s_lshl_b32 s70, s2, 17')
    a('s_lshl_b32 s71, s69, 15')
    a('s_add_u32 s70, s70, s71')
    a('s_barrier')
    for i in range(32):
        a(f'v_xor_b32 v4, {fsw(i & 15) << 4}, v3')
        a('s_mov_b32 m0, s71')
        a('s_add_u32 s71, s71, 1024')
        a('buffer_load_dwordx4 v4, s[24:27], s70 offen nt lds')
        a('s_add_u32 s70, s70, 1024')
        if THROTTLE and i >= THROTTLE:
            a(f's_waitcnt vmcnt({THROTTLE})')
        if i == QPOS - 1:
            a(f'v_mov_b32 v5, {R0 + 20480}')
            a.label('KP_LW')
            a('ds_read_b32 v6, v5 offset:4')
            a('s_waitcnt lgkmcnt(0)')
            a('v_readfirstlane_b32 s72, v6')
            a('s_nop 3')
            a('s_cmp_ge_u32 s72, 4')
            a('s_cbranch_scc0 KP_LW')
            a('v_mov_b32 v6, 1')
            a('s_mov_b64 exec, 1')
            a('ds_add_u32 v5, v6 offset:8')
            a('s_mov_b64 exec, -1')
            a('s_cmp_lg_u32 s69, 2')
            a('s_cbranch_scc1 KP_LW3')
            a.label('KP_LW2')
            a('ds_read_b32 v6, v5 offset:8')
            a('s_waitcnt lgkmcnt(0)')
            a('v_readfirstlane_b32 s72, v6')
            a('s_nop 3')
            a('s_cmp_ge_u32 s72, 4')
            a('s_cbranch_scc0 KP_LW2')
            a.label('KP_LW3')
            a('s_lshr_b32 s72, s2, 5')
            a('s_lshl_b32 s72, s72, 15')
            a('s_lshl_b32 s73, s69, 13')
            a('s_add_u32 s72, s72, s73')
            a(f's_add_u32 s73, s73, {R0}')
            a('s_and_b32 s74, s69, 1')
            a('s_lshl_b32 s74, s74, 5')
            a('v_xor_b32 v5, s74, v3')
            for q in range(8):
                a(f'v_xor_b32 v4, {(((q & 3) << 2) | (q >> 2)) << 4}, v5')
                a('s_mov_b32 m0, s73')
                a('s_add_u32 s73, s73, 1024')
                a('buffer_load_dwordx4 v4, s[52:55], s72 offen sc1 lds')
                a('s_add_u32 s72, s72, 1024')
    a('s_waitcnt vmcnt(0)')
    a('s_barrier')
    a.label('KP_EXIT')
    a('s_endpgm')

def main(out):
    a = Asm()
    a.raw(HDR.rstrip('\n'))
    ks = (('k1_kernel', gen_k1, 256, 256, K1_LDS), ('kp_kernel', gen_kp, 256, 512, KP_LDS))
    for name, g, grid, blk, lds in ks:
        a.raw(f'; @launch kernel={name} grid=({grid},1,1) block=({blk},1,1) lds={lds}')
    a.raw('.amdgcn_target "amdgcn-amd-amdhsa--gfx950"')
    a.raw('.text')
    for name, g, grid, blk, lds in ks:
        a.raw(f'.globl {name}')
        a.raw('.p2align 8')
        a.raw(f'.type {name},@function')
        g(a)
    a.raw('.section .rodata,"a"')
    for name, g, grid, blk, lds in ks:
        a.raw('.p2align 6')
        a.raw(kd(name))
    open(out, 'w').write('\n'.join(a.L) + '\n')

if __name__ == '__main__':
    if 'stamp' in sys.argv[2:]: STAMP = True
    for x in sys.argv[2:]:
        if x.startswith('thr'): THROTTLE = int(x[3:])
        if x.startswith('slp'): SLEEP = int(x[3:])
        if x == 'pzsc1': PZ_POL = ' sc1'
        if x == 'nosent': SENT = False
        if x.startswith('qpos'): QPOS = int(x[4:])
    main(sys.argv[1] if len(sys.argv) > 1 else 'parallel_sum__compressed_kv_cla__geglu_ffn__decode.s')
```

```python
import sys, math, struct
sys.path.insert(0, 'work')
from gen1 import Asm, srd, HDR, kd, bf16_round_pair, swz_reduce32, fsw
import gen3
from gen3 import f2u, wave_lane, lane_decomp, tr_base_p128, tr_base_p256, ln_issue, ln_compute, gelu4

WS_QPART = 0x0
WS_FFNP = 0x80000
WS_OPART = 0x800000
PZ = 0x200000
WS_QABS = PZ
WS_STATS = WS_QABS + 0x40000
WS_CTXP = WS_STATS + 0x10000
WS_ATTP = WS_CTXP + 0x100000
WS_FFNO = WS_ATTP + 0x80000
PZ_END = WS_FFNO + 43 * 16384
PZ_SIZE = PZ_END - PZ
PZ_PER_WAVE = 3
assert 256 * 4 * PZ_PER_WAVE * 1024 >= PZ_SIZE
WS_STAMP = 0xF000000
POLL_LIMIT = 20000
STAMP = False
THROTTLE = 8
PZ_POL = ''
SLEEP = 4
SENT = True
QPOS = 22

SMAP = {0:0,1:1,2:2,3:3,4:4,5:5,6:6,7:7,8:8}
def stamp(a, i):
    if STAMP and i in SMAP:
        j = SMAP[i]
        a(f's_memtime s[{84+2*j}:{85+2*j}]')
        a('s_waitcnt lgkmcnt(0)')

uid = [0]
def poll_loads(a, issue_fn, regs, tmpv):
    uid[0] += 1
    n = uid[0]
    a('s_mov_b32 s72, 0')
    a.label(f'PL{n}')
    issue_fn()
    a('s_waitcnt vmcnt(0)')
    r = list(regs)
    a(f'v_max_u32 v{tmpv}, v{r[0]}, v{r[1]}')
    i = 2
    while i < len(r):
        if i + 1 < len(r):
            a(f'v_max3_u32 v{tmpv}, v{tmpv}, v{r[i]}, v{r[i+1]}')
            i += 2
        else:
            a(f'v_max_u32 v{tmpv}, v{tmpv}, v{r[i]}')
            i += 1
    a(f'v_cmp_eq_u32 vcc, -1, v{tmpv}')
    a('s_nop 3')
    a('s_cmp_eq_u64 vcc, 0')
    a(f's_cbranch_scc1 PD{n}')
    a('s_add_u32 s72, s72, 1')
    a(f's_cmp_lt_u32 s72, {POLL_LIMIT}')
    a(f's_cbranch_scc0 PD{n}')
    a(f's_sleep {SLEEP}')
    a(f's_branch PL{n}')
    a.label(f'PD{n}')

def wsync(a, k, vaddr, vone, vtmp):
    uid[0] += 1
    n = uid[0]
    a('s_waitcnt lgkmcnt(0)')
    a('s_mov_b64 exec, 1')
    a(f'ds_add_u32 v{vaddr}, v{vone}')
    a('s_mov_b64 exec, -1')
    a.label(f'WS{n}')
    a(f'ds_read_b32 v{vtmp}, v{vaddr}')
    a('s_waitcnt lgkmcnt(0)')
    a(f'v_readfirstlane_b32 s71, v{vtmp}')
    a('s_nop 3')
    a(f's_cmp_ge_u32 s71, {4*k}')
    a(f's_cbranch_scc0 WS{n}')

K1_WQT = 0
K1_FT = 16384
K1_XNA = 32768
K1_XNF = K1_XNA + 2304
K1_LDS = K1_XNF + 1280

def gen_k1(a):
    a.label('k1_kernel')
    a('s_cmp_ge_u32 s2, 256')
    a('s_cbranch_scc1 K1_EXIT')
    a('s_load_dwordx2 s[4:5], s[0:1], 0')
    a('s_load_dwordx2 s[8:9], s[0:1], 16')
    a('s_load_dwordx4 s[12:15], s[0:1], 56')
    a('s_load_dwordx2 s[18:19], s[0:1], 96')
    wave_lane(a, 3, 2)
    lane_decomp(a)
    a('s_lshr_b32 s73, s2, 3')
    a('s_lshr_b32 s74, s2, 1')
    a('s_and_b32 s74, s74, 3')
    a('s_and_b32 s75, s2, 1')
    a('s_and_b32 s68, s2, 7')
    a('v_lshrrev_b32 v8, 3, v2')
    a('v_lshrrev_b32 v9, 1, v8')
    a('v_and_b32 v9, 1, v9')
    a('v_lshlrev_b32 v9, 1, v9')
    a('v_xor_b32 v9, v9, v5')
    a('v_lshlrev_b32 v9, 4, v9')
    a('v_lshl_add_u32 v10, v8, 13, v9')
    a('v_xor_b32 v11, 64, v10')
    a('s_mov_b32 s70, 2752')
    a('v_mul_lo_u32 v12, v8, s70')
    a('v_add_u32 v13, v12, v9')
    a('v_xor_b32 v9, 64, v9')
    a('v_add_u32 v12, v12, v9')
    for r in range(200, 204):
        a(f'v_mov_b32 v{r}, -1')
    a('v_lshlrev_b32 v21, 4, v2')
    a('s_waitcnt lgkmcnt(0)')
    srd(a, 20, 4, 8192)
    srd(a, 28, 8, 4194304)
    T = 60
    ln_issue(a, 20, 3, T)
    a('s_lshl_b32 s70, s74, 20')
    a('s_lshl_b32 s71, s3, 18')
    a('s_add_u32 s70, s70, s71')
    a('s_lshl_b32 s71, s73, 8')
    a('s_add_u32 s70, s70, s71')
    a('s_lshl_b32 s71, s75, 7')
    a('s_add_u32 s70, s70, s71')
    a('s_lshl_b32 s71, s3, 12')
    for i in range(4):
        a('s_mov_b32 m0, s71')
        a('s_add_u32 s71, s71, 1024')
        a(f'buffer_load_dwordx4 v{10 + (i & 1)}, s[28:31], s70 offen nt lds')
        a('s_add_u32 s70, s70, 65536')
    a('s_cmp_ge_u32 s3, 2')
    a('s_cselect_b32 s76, s14, s12')
    a('s_cselect_b32 s77, s15, s13')
    a('s_and_b32 s77, s77, 0xffff')
    a('s_mov_b32 s78, 1409024')
    a('s_mov_b32 s79, 0x00020000')
    a('s_and_b32 s70, s3, 1')
    a('s_lshl_b32 s70, s70, 5')
    a('s_lshl_b32 s71, s68, 6')
    a('s_add_u32 s70, s70, s71')
    a('s_mul_i32 s70, s70, 2752')
    a('s_lshl_b32 s71, s73, 7')
    a('s_add_u32 s70, s70, s71')
    a('s_cmp_ge_u32 s2, 176')
    a('s_cselect_b32 s70, 0x40000000, s70')
    a('s_lshl_b32 s71, s3, 12')
    a(f's_add_u32 s71, s71, {K1_FT}')
    for i in range(4):
        a('s_mov_b32 m0, s71')
        a('s_add_u32 s71, s71, 1024')
        a(f'buffer_load_dwordx4 v{13 - (i & 1)}, s[76:79], s70 offen nt lds')
        a('s_add_u32 s70, s70, 22016')
    srd(a, 40, 18, PZ_SIZE, PZ)
    a('s_lshl_b32 s70, s2, 2')
    a('s_add_u32 s70, s70, s3')
    a(f's_mul_i32 s70, s70, {PZ_PER_WAVE*1024}')
    for i in range(PZ_PER_WAVE):
        a(f'buffer_store_dwordx4 v[200:203], v21, s[40:43], s70 offen{PZ_POL}')
        a('s_add_u32 s70, s70, 1024')
    NP = PZ_PER_WAVE
    srd(a, 48, 18, 524288, WS_QPART)
    srd(a, 56, 18, 0xB0000, WS_FFNP)
    ln_compute(a, T, 8 + NP)
    a('s_mov_b32 s70, 288')
    a(f'v_mul_lo_u32 v14, v{T}, s70')
    a(f'v_and_b32 v15, 7, v{T+1}')
    a('v_lshl_add_u32 v14, v15, 5, v14')
    a(f'v_lshrrev_b32 v15, 3, v{T+1}')
    a('v_cmp_eq_u32 vcc, s74, v15')
    a('s_and_saveexec_b64 s[80:81], vcc')
    a(f'ds_write_b128 v14, v[{T+4}:{T+7}] offset:{K1_XNA}')
    a(f'ds_write_b128 v14, v[{T+8}:{T+11}] offset:{K1_XNA+16}')
    a('s_mov_b64 exec, s[80:81]')
    a('s_mov_b32 s70, 160')
    a(f'v_mul_lo_u32 v14, v{T}, s70')
    a(f'v_and_b32 v15, 3, v{T+1}')
    a('v_lshl_add_u32 v14, v15, 5, v14')
    a(f'v_lshrrev_b32 v15, 2, v{T+1}')
    a('v_cmp_eq_u32 vcc, s68, v15')
    a('s_and_saveexec_b64 s[80:81], vcc')
    a(f'ds_write_b128 v14, v[{T+4}:{T+7}] offset:{K1_XNF}')
    a(f'ds_write_b128 v14, v[{T+8}:{T+11}] offset:{K1_XNF+16}')
    a('s_mov_b64 exec, s[80:81]')
    a('s_mov_b32 s70, 288')
    a('v_mul_lo_u32 v15, v5, s70')
    a('v_lshl_add_u32 v15, v4, 4, v15')
    a('s_mov_b32 s70, 160')
    a('v_mul_lo_u32 v17, v5, s70')
    a('v_lshl_add_u32 v17, v4, 4, v17')
    a('s_lshl_b32 s69, s3, 1')
    tr_base_p128(a, 18, 19, 0, 69)
    for r in range(24, 36):
        a(f'v_mov_b32 v{r}, 0')
    a('v_lshlrev_b32 v19, 9, v5')
    a('v_lshl_add_u32 v19, v4, 4, v19')
    a('s_lshl_b32 s82, s73, 14')
    a('s_lshl_b32 s71, s74, 12')
    a('s_add_u32 s82, s82, s71')
    a('s_lshl_b32 s71, s75, 8')
    a('s_add_u32 s82, s82, s71')
    a('s_lshl_b32 s71, s3, 6')
    a('s_add_u32 s82, s82, s71')
    a('s_mov_b32 s70, 5632')
    a('v_mul_lo_u32 v20, v5, s70')
    a('v_lshl_add_u32 v20, v4, 4, v20')
    a('s_mul_i32 s83, s68, 45056')
    a('s_lshl_b32 s71, s73, 8')
    a('s_add_u32 s83, s83, s71')
    a('s_lshl_b32 s71, s3, 6')
    a('s_add_u32 s83, s83, s71')
    a('s_cmp_ge_u32 s2, 176')
    a('s_cselect_b32 s83, 0x40000000, s83')
    a(f's_waitcnt vmcnt({4+NP}) lgkmcnt(0)')
    a('s_barrier')
    for ks in range(4):
        a(f'ds_read_b128 v[{36+8*ks}:{39+8*ks}], v15 offset:{K1_XNA+ks*64}')
        a(f'ds_read_b64_tr_b16 v[{40+8*ks}:{41+8*ks}], v18 offset:{K1_WQT+ks*4096}')
        a(f'ds_read_b64_tr_b16 v[{42+8*ks}:{43+8*ks}], v18 offset:{K1_WQT+ks*4096+512}')
    for ks in range(4):
        a(f's_waitcnt lgkmcnt({12-3*(ks+1)})')
        a(f'v_mfma_f32_16x16x32_bf16 v[24:27], v[{40+8*ks}:{43+8*ks}], v[{36+8*ks}:{39+8*ks}], v[24:27]')
    a(f's_waitcnt vmcnt({NP})')
    a.nop(8)
    a('buffer_store_dwordx4 v[24:27], v19, s[48:51], s82 offen')
    a('s_barrier')
    for ks in range(2):
        a(f'ds_read_b128 v[{36+4*ks}:{39+4*ks}], v17 offset:{K1_XNF+ks*64}')
    for mat in range(2):
        for ks in range(2):
            r = 44 + 8 * mat + 4 * ks
            a(f'ds_read_b64_tr_b16 v[{r}:{r+1}], v18 offset:{K1_FT+mat*8192+ks*4096}')
            a(f'ds_read_b64_tr_b16 v[{r+2}:{r+3}], v18 offset:{K1_FT+mat*8192+ks*4096+512}')
    a('s_waitcnt lgkmcnt(0)')
    for mat in range(2):
        for ks in range(2):
            r = 44 + 8 * mat + 4 * ks
            a(f'v_mfma_f32_16x16x32_bf16 v[{28+4*mat}:{31+4*mat}], v[{r}:{r+3}], v[{36+4*ks}:{39+4*ks}], v[{28+4*mat}:{31+4*mat}]')
    a.nop(10)
    a('buffer_store_dwordx4 v[28:31], v20, s[56:59], s83 offen')
    a('s_add_u32 s83, s83, 360448')
    a('buffer_store_dwordx4 v[32:35], v20, s[56:59], s83 offen')
    a.label('K1_EXIT')
    a('s_endpgm')

R0 = 131072
P_QB = R0
P_FS = R0 + 2304
P_HB = P_FS + 4096
P_WD = R0 + 9216
P_P = R0
P_ST = R0 + 8192
D_OT = 0
D_AL = 32768
D_CB = D_AL + 1024
D_OC = D_CB + 8192
D_CX = D_OC + 1280
D_WUV = 46080
D_WO = D_WUV + 16384
D_FA = 81920
F_FS = 90112
F_HB = 94208
F_WD = 97280
KP_LDS = 163840

def gen_kp(a):
    a.label('kp_kernel')
    a('s_cmp_ge_u32 s2, 256')
    a('s_cbranch_scc1 KP_EXIT')
    stamp(a, 0)
    a('s_load_dwordx4 s[4:7], s[0:1], 0')
    a('s_load_dwordx4 s[8:11], s[0:1], 24')
    a('s_load_dwordx2 s[12:13], s[0:1], 40')
    a('s_load_dwordx2 s[14:15], s[0:1], 72')
    a('s_load_dwordx2 s[16:17], s[0:1], 80')
    a('s_load_dwordx2 s[18:19], s[0:1], 96')
    wave_lane(a, 3, 2)
    a('s_waitcnt lgkmcnt(0)')
    srd(a, 24, 6, 33554432)
    a('s_cmp_ge_u32 s3, 4')
    a('s_cbranch_scc1 KP_LOADER')
    lane_decomp(a)
    a('s_lshr_b32 s73, s2, 3')
    a('s_and_b32 s68, s2, 7')
    a('s_lshr_b32 s74, s2, 2')
    a('s_and_b32 s75, s2, 3')
    srd(a, 48, 18, 524288, WS_QPART)
    srd(a, 32, 8, 4194304)
    a('v_lshrrev_b32 v22, 5, v0')
    a('v_and_b32 v23, 31, v0')
    a('v_lshlrev_b32 v19, 9, v22')
    a('v_lshl_add_u32 v19, v23, 4, v19')
    a('v_lshlrev_b32 v12, 13, v3')
    a('v_lshl_add_u32 v12, v4, 4, v12')
    a('v_lshrrev_b32 v8, 3, v2')
    a('s_lshl_b32 s70, s73, 14')
    for m in range(4):
        a(f'buffer_load_dwordx4 v[{36+4*m}:{39+4*m}], v19, s[48:51], s70 offen')
        a('s_add_u32 s70, s70, 4096')
    a('s_lshl_b32 s70, s68, 19')
    a('s_lshl_b32 s71, s3, 17')
    a('s_add_u32 s70, s70, s71')
    a('s_lshl_b32 s71, s73, 8')
    a('s_add_u32 s70, s70, s71')
    for st in range(4):
        a(f'buffer_load_dwordx4 v[{104+4*st}:{107+4*st}], v12, s[32:35], s70 offen offset:{st*64} nt')
    a('v_lshlrev_b32 v13, 1, v4')
    a('v_xor_b32 v13, v13, v3')
    a('v_lshlrev_b32 v13, 4, v13')
    a(f'v_mov_b32 v226, {R0 + 20480}')
    a('v_mov_b32 v227, 1')
    a('v_mov_b32 v228, 0')
    a('ds_write_b32 v226, v228')
    a('ds_write_b32 v226, v228 offset:4')
    a('ds_write_b32 v226, v228 offset:8')
    a('s_waitcnt lgkmcnt(0)')
    a('s_barrier')
    srd(a, 52, 18, 262144, WS_QABS)
    srd(a, 56, 18, 43 * 16384, WS_FFNO)
    srd(a, 60, 18, 65536, WS_STATS)
    srd(a, 64, 18, 8388608, WS_OPART)
    a('s_mov_b32 s70, 288')
    a('v_mul_lo_u32 v20, v22, s70')
    a('v_lshl_add_u32 v20, v23, 3, v20')
    a('v_mul_lo_u32 v16, v5, s70')
    a('v_lshl_add_u32 v16, v4, 4, v16')
    a(f'v_add_u32 v21, {P_QB}, v20')
    a(f'v_add_u32 v24, {P_QB}, v16')
    a('s_lshl_b32 s69, s3, 2')
    tr_base_p256(a, 26, 28, 0, 69)
    a('s_add_u32 s69, s69, 2')
    tr_base_p256(a, 27, 28, 0, 69)
    a('s_waitcnt vmcnt(4)')
    for e in range(4):
        a(f'v_add_f32 v{36+e}, v{36+e}, v{40+e}')
        a(f'v_add_f32 v{44+e}, v{44+e}, v{48+e}')
        a(f'v_add_f32 v{36+e}, v{36+e}, v{44+e}')
    a('v_cvt_pk_bf16_f32 v40, v36, v37')
    a('v_cvt_pk_bf16_f32 v41, v38, v39')
    a('ds_write_b64 v21, v[40:41]')
    wsync(a, 1, 226, 227, 228)
    for st in range(4):
        a(f'ds_read_b128 v[{36+4*st}:{39+4*st}], v24 offset:{st*64}')
    for r in range(56, 60):
        a(f'v_mov_b32 v{r}, 0')
    a('v_lshlrev_b32 v25, 15, v5')
    a('v_lshl_add_u32 v25, v4, 3, v25')
    a('s_lshl_b32 s70, s73, 10')
    a('s_lshl_b32 s71, s68, 7')
    a('s_add_u32 s70, s70, s71')
    a('s_lshl_b32 s71, s3, 5')
    a('s_add_u32 s70, s70, s71')
    a('s_waitcnt vmcnt(0) lgkmcnt(0)')
    for st in range(4):
        a(f'v_mfma_f32_16x16x32_bf16 v[56:59], v[{104+4*st}:{107+4*st}], v[{36+4*st}:{39+4*st}], v[56:59]')
    a.nop(10)
    a('v_cvt_pk_bf16_f32 v60, v56, v57')
    a('v_cvt_pk_bf16_f32 v61, v58, v59')
    a('buffer_store_dwordx2 v[60:61], v25, s[52:55], s70 offen sc1')
    stamp(a, 1)
    a('v_lshlrev_b32 v29, 11, v5')
    a('v_lshl_add_u32 v29, v4, 4, v29')
    wsync(a, 2, 226, 227, 228)
    a('s_mov_b64 exec, 1')
    a('ds_add_u32 v226, v227 offset:4')
    a('s_mov_b64 exec, -1')
    a('v_lshlrev_b32 v30, 4, v2')
    a('s_lshr_b32 s69, s2, 5')
    stamp(a, 2)
    a('v_and_b32 v224, 31, v2')
    a('v_lshrrev_b32 v225, 5, v2')
    a('v_and_b32 v9, 3, v224')
    a('v_lshlrev_b32 v9, 2, v9')
    a('v_lshrrev_b32 v10, 2, v224')
    a('v_and_b32 v10, 3, v10')
    a('v_or_b32 v9, v9, v10')
    a('v_xor_b32 v9, v9, v225')
    a('v_lshlrev_b32 v10, 10, v224')
    a('s_lshl_b32 s70, s3, 15')
    a('v_add_u32 v11, s70, v10')
    a(f'v_add_u32 v12, {R0}, v10')
    for e in range(8):
        a(f'v_xor_b32 v14, {2*e}, v9')
        a(f'v_lshl_add_u32 v{232+e}, v14, 4, v11')
        a(f'v_lshl_add_u32 v{240+e}, v14, 4, v12')
    for r in range(32, 48):
        a(f'v_mov_b32 v{r}, 0')
    for r in range(80, 128):
        a(f'v_mov_b32 v{r}, 0')
    a('v_and_b32 v9, 1, v4')
    a('v_lshrrev_b32 v10, 1, v7')
    a('v_lshl_add_u32 v10, v9, 1, v10')
    a('v_lshl_add_u32 v11, v225, 2, v6')
    a('v_lshlrev_b32 v11, 10, v11')
    a('s_lshl_b32 s70, s3, 8')
    a('v_add_u32 v11, s70, v11')
    a('v_and_b32 v9, 1, v7')
    a('v_lshl_add_u32 v11, v9, 3, v11')
    for sec in range(2):
        a(f'v_add_u32 v9, {2*sec}, v225')
        a('v_xor_b32 v9, v9, v10')
        for t in range(4):
            a(f'v_xor_b32 v14, {t}, v6')
            a('v_lshl_add_u32 v14, v14, 2, v9')
            a(f'v_lshl_add_u32 v{160+2*t+sec}, v14, 4, v11')
            if sec:
                a(f'v_add_u32 v{160+2*t+sec}, 8192, v{160+2*t+sec}')
    a('s_waitcnt lgkmcnt(0)')
    a('s_barrier')
    a('s_lshl_b32 s71, s3, 13')
    a(f's_add_u32 s71, s71, {R0}')
    a('v_add_u32 v9, s71, v30')
    for i in range(8):
        a(f'ds_read_b128 v[{128+4*i}:{131+4*i}], v9 offset:{i*1024}')
    a('s_waitcnt lgkmcnt(0)')
    a('v_max_u32 v22, v128, v129')
    for i in range(130, 160, 2):
        a(f'v_max3_u32 v22, v22, v{i}, v{i+1}')
    a('v_cmp_eq_u32 vcc, -1, v22')
    a('s_nop 3')
    a('s_cmp_eq_u64 vcc, 0')
    a('s_cbranch_scc1 KP_QOK')
    def issue_qabs():
        a('s_lshl_b32 s70, s69, 15')
        a('s_lshl_b32 s71, s3, 13')
        a('s_add_u32 s70, s70, s71')
        for i in range(8):
            a(f'buffer_load_dwordx4 v[{128+4*i}:{131+4*i}], v30, s[52:55], s70 offen sc1')
            a('s_add_u32 s70, s70, 1024')
    poll_loads(a, issue_qabs, range(128, 160), 22)
    a('s_lshl_b32 s71, s3, 13')
    a(f's_add_u32 s71, s71, {R0}')
    a('s_and_b32 s70, s3, 1')
    a('s_lshl_b32 s70, s70, 5')
    for i in range(8):
        a(f'v_xor_b32 v9, {(((i & 3) << 2) | (i >> 2)) << 4}, v30')
        a('v_xor_b32 v9, s70, v9')
        a('v_add_u32 v9, s71, v9')
        a(f'ds_write_b128 v9, v[{128+4*i}:{131+4*i}] offset:{i*1024}')
    a('s_waitcnt lgkmcnt(0)')
    a.label('KP_QOK')
    a('s_barrier')
    stamp(a, 3)
    srd(a, 36, 10, 4194304)
    a('v_lshlrev_b32 v14, 4, v3')
    a('v_lshl_add_u32 v14, v4, 13, v14')
    a('s_lshr_b32 s70, s68, 1')
    a('s_lshl_b32 s70, s70, 7')
    a('s_and_b32 s71, s68, 1')
    a('s_lshl_b32 s71, s71, 2')
    a('s_add_u32 s70, s70, s71')
    a('s_lshl_b32 s71, s3, 5')
    a('s_add_u32 s70, s70, s71')
    a('s_lshl_b32 s70, s70, 13')
    a('s_lshl_b32 s71, s73, 8')
    a('s_add_u32 s70, s70, s71')
    for i in range(4):
        a(f'buffer_load_dwordx4 v[{192+4*i}:{195+4*i}], v14, s[36:39], s70 offen nt')
        a('s_add_u32 s70, s70, 65536')
    srd(a, 44, 12, 4194304)
    a('v_lshlrev_b32 v14, 4, v5')
    a('v_lshl_add_u32 v14, v8, 10, v14')
    a('s_lshl_b32 s70, s73, 17')
    a('s_lshl_b32 s71, s3, 15')
    a('s_add_u32 s70, s70, s71')
    a('s_lshl_b32 s71, s68, 7')
    a('s_add_u32 s70, s70, s71')
    for i in range(4):
        a(f'buffer_load_dwordx4 v[{208+4*i}:{211+4*i}], v14, s[44:47], s70 offen nt')
        a('s_add_u32 s70, s70, 8192')
    def rd(st):
        return [f'ds_read_b128 v[{48+4*(st&3)}:{51+4*(st&3)}], v{232+(st&7)} offset:{(st>>3)*256}',
                f'ds_read_b128 v[{64+4*(st&3)}:{67+4*(st&3)}], v{240+(st&7)} offset:{(st>>3)*256}']
    for st in range(3):
        for s in rd(st): a(s)
    for st in range(32):
        if st + 3 < 32:
            for s in rd(st + 3): a(s)
            a('s_waitcnt lgkmcnt(6)')
        else:
            a(f's_waitcnt lgkmcnt({2*(31-st)})')
        a(f'v_mfma_f32_32x32x16_bf16 v[32:47], v[{48+4*(st&3)}:{51+4*(st&3)}], v[{64+4*(st&3)}:{67+4*(st&3)}], v[32:47]')
    a('s_barrier')
    for r in range(64, 80):
        a(f'v_mov_b32 v{r}, 0')
    srd(a, 40, 18, 0xB0000, WS_FFNP)
    srd(a, 28, 14, 1409024)
    a('s_mov_b32 s70, 5632')
    a('v_mul_lo_u32 v14, v8, s70')
    a('v_lshl_add_u32 v14, v5, 4, v14')
    a('s_and_b32 s70, s3, 1')
    a('s_mul_i32 s70, s70, 360448')
    a('s_lshr_b32 s71, s3, 1')
    a('s_mul_i32 s71, s71, 180224')
    a('s_add_u32 s70, s70, s71')
    a('s_lshl_b32 s71, s74, 7')
    a('s_add_u32 s70, s70, s71')
    a('s_cmp_ge_u32 s2, 172')
    a('s_cselect_b32 s70, 0x40000000, s70')
    for i in range(4):
        a(f'buffer_load_dwordx4 v[{232+4*i}:{235+4*i}], v14, s[40:43], s70 offen')
        a('s_add_u32 s70, s70, 45056')
    a('v_lshlrev_b32 v14, 4, v3')
    a('v_lshl_add_u32 v14, v4, 10, v14')
    a('s_lshl_b32 s70, s74, 15')
    a('s_lshl_b32 s71, s3, 13')
    a('s_add_u32 s70, s70, s71')
    a('s_lshl_b32 s71, s75, 8')
    a('s_add_u32 s70, s70, s71')
    a('s_cmp_ge_u32 s2, 172')
    a('s_cselect_b32 s70, 0x40000000, s70')
    for i in range(2):
        a(f'buffer_load_dwordx4 v[{184+4*i}:{187+4*i}], v14, s[28:31], s70 offen nt')
        a('s_add_u32 s70, s70, 4096')
    a('s_mov_b32 s70, 0x3db504f3')
    for i in range(8):
        bf16_round_pair(a, 32+2*i, 33+2*i, 32+2*i, 33+2*i, 48)
        a(f'v_mul_f32 v{32+2*i}, s70, v{32+2*i}')
        a(f'v_mul_f32 v{33+2*i}, s70, v{33+2*i}')
        bf16_round_pair(a, 32+2*i, 33+2*i, 32+2*i, 33+2*i, 48)
    a('v_max3_f32 v48, v32, v33, v34')
    for i in range(35, 47, 2):
        a(f'v_max3_f32 v48, v48, v{i}, v{i+1}')
    a('v_max_f32 v48, v48, v47')
    a('v_mov_b32 v49, v48')
    a('s_nop 1')
    a('v_permlane32_swap_b32 v48, v49')
    a('v_max_f32 v48, v48, v49')
    a('v_lshlrev_b32 v11, 2, v224')
    a(f'v_add_u32 v11, {P_ST}, v11')
    a('s_lshl_b32 s70, s3, 7')
    a('v_add_u32 v12, s70, v11')
    a('ds_write_b32 v12, v48')
    a('s_waitcnt lgkmcnt(0)')
    a('s_barrier')
    a('ds_read_b32 v48, v11')
    a('ds_read_b32 v49, v11 offset:128')
    a('ds_read_b32 v50, v11 offset:256')
    a('ds_read_b32 v51, v11 offset:384')
    a('s_waitcnt lgkmcnt(0)')
    a('v_max3_f32 v48, v48, v49, v50')
    a('v_max_f32 v48, v48, v51')
    a('s_mov_b32 s70, 0x3fb8aa3b')
    a('v_mul_f32 v49, s70, v48')
    for i in range(16):
        a(f'v_fma_f32 v{32+i}, v{32+i}, s70, -v49')
        a(f'v_exp_f32 v{32+i}, v{32+i}')
    a('s_nop 0')
    a('v_add_f32 v50, v32, v33')
    for i in range(2, 16):
        a(f'v_add_f32 v50, v50, v{32+i}')
    a('v_mov_b32 v51, v50')
    a('s_nop 1')
    a('v_permlane32_swap_b32 v50, v51')
    a('v_add_f32 v50, v50, v51')
    a('ds_write_b32 v12, v50 offset:512')
    for i in range(8):
        a(f'v_cvt_pk_bf16_f32 v{52+i}, v{32+2*i}, v{33+2*i}')
    a('s_lshl_b32 s70, s3, 11')
    a(f's_add_u32 s70, s70, {P_P}')
    a('v_add_u32 v14, s70, v30')
    a('ds_write_b128 v14, v[52:55]')
    a('ds_write_b128 v14, v[56:59] offset:1024')
    a('s_waitcnt lgkmcnt(0)')
    a('s_barrier')
    a('ds_read_b32 v50, v11 offset:512')
    a('ds_read_b32 v51, v11 offset:640')
    a('ds_read_b32 v52, v11 offset:768')
    a('ds_read_b32 v53, v11 offset:896')
    a(f'v_add_u32 v14, {P_P}, v30')
    for u in range(8):
        a(f'ds_read_b128 v[{128+4*u}:{131+4*u}], v14 offset:{u*1024}')
    def trrd(u, t, buf):
        off = (u & 3) * 16384
        return [f'ds_read_b64_tr_b16 v[{buf}:{buf+1}], v{160+2*t} offset:{off}',
                f'ds_read_b64_tr_b16 v[{buf+2}:{buf+3}], v{161+2*t} offset:{off}']
    seq = [(u, t) for u in range(8) for t in range(4)]
    bufs = [168, 172, 176, 180]
    def issue(idx):
        u, t = seq[idx]
        if u == 4 and t == 0:
            for r in range(160, 168):
                a(f'v_add_u32 v{r}, 0x10000, v{r}')
        for s in trrd(u, t, bufs[idx & 3]):
            a(s)
    for idx in range(3):
        issue(idx)
    a('s_waitcnt lgkmcnt(6)')
    a('v_add_f32 v50, v50, v51')
    a('v_add_f32 v52, v52, v53')
    a('v_add_f32 v49, v50, v52')
    a('v_mov_b32 v230, v48')
    a('v_mov_b32 v231, v49')
    for idx in range(32):
        u, t = seq[idx]
        if idx + 3 < 32:
            issue(idx + 3)
            a('s_waitcnt lgkmcnt(6)')
        else:
            a(f's_waitcnt lgkmcnt({2*(31-idx)})')
        b = bufs[idx & 3]
        a(f'v_mfma_f32_32x32x16_bf16 v[{64+16*t}:{79+16*t}], v[{b}:{b+3}], v[{128+4*u}:{131+4*u}], v[{64+16*t}:{79+16*t}]')
    a('s_barrier')
    stamp(a, 4)
    a('v_and_b32 v9, 7, v224')
    a('v_lshlrev_b32 v10, 3, v225')
    a('s_lshl_b32 s70, s3, 4')
    a('v_add_u32 v10, s70, v10')
    a('v_lshlrev_b32 v11, 10, v224')
    a.nop(6)
    for t in range(4):
        for i in range(8):
            a(f'v_cvt_pk_bf16_f32 v{128+8*t+i}, v{64+16*t+2*i}, v{65+16*t+2*i}')
        for i in range(2):
            a(f'v_xor_b32 v14, {2*t+i}, v9')
            a('v_add_u32 v14, v14, v10')
            a('v_lshl_add_u32 v14, v14, 4, v11')
            a(f'ds_write_b128 v14, v[{128+8*t+4*i}:{131+8*t+4*i}]')
    a('s_waitcnt vmcnt(0)')
    a('v_lshl_add_u32 v14, v4, 8, v13')
    a('s_and_b32 s70, s3, 1')
    a('s_lshl_b32 s70, s70, 7')
    a('v_xor_b32 v14, s70, v14')
    a('s_lshl_b32 s70, s3, 11')
    a(f's_add_u32 s70, s70, {F_WD}')
    a('v_add_u32 v14, s70, v14')
    a('ds_write_b128 v14, v[184:187]')
    a('ds_write_b128 v14, v[188:191] offset:1024')
    for e in range(4):
        a(f'v_add_f32 v{232+e}, v{232+e}, v{236+e}')
        a(f'v_add_f32 v{240+e}, v{240+e}, v{244+e}')
        a(f'v_add_f32 v{232+e}, v{232+e}, v{240+e}')
    a('v_lshlrev_b32 v21, 4, v0')
    a(f'v_add_u32 v21, {F_FS}, v21')
    a('ds_write_b128 v21, v[232:235]')
    a('v_lshl_add_u32 v14, v4, 8, v13')
    a('s_lshl_b32 s70, s3, 12')
    a(f's_add_u32 s70, s70, {D_WUV}')
    a('v_add_u32 v14, s70, v14')
    a('v_xor_b32 v15, 128, v14')
    for i in range(4):
        a(f'ds_write_b128 v{14 + ((i >> 1) & 1)}, v[{192+4*i}:{195+4*i}] offset:{i*1024}')
    a('v_lshrrev_b32 v14, 1, v8')
    a('v_and_b32 v14, 1, v14')
    a('v_lshlrev_b32 v14, 1, v14')
    a('v_xor_b32 v14, v14, v5')
    a('v_lshlrev_b32 v14, 4, v14')
    a('v_lshl_add_u32 v14, v8, 7, v14')
    a('s_lshl_b32 s70, s3, 12')
    a(f's_add_u32 s70, s70, {D_WO}')
    a('v_add_u32 v14, s70, v14')
    a('v_xor_b32 v15, 64, v14')
    for i in range(4):
        a(f'ds_write_b128 v{14 + (i & 1)}, v[{208+4*i}:{211+4*i}] offset:{i*1024}')
    a('s_waitcnt lgkmcnt(0)')
    a('s_barrier')
    a('s_lshl_b32 s70, s3, 13')
    a('s_lshl_b32 s71, s2, 15')
    a('s_add_u32 s71, s71, s70')
    for i in range(8):
        a(f'v_xor_b32 v14, {i << 4}, v30')
        a('v_add_u32 v14, s70, v14')
        a(f'ds_read_b128 v[{128+4*i}:{131+4*i}], v14 offset:{i*1024}')
    for i in range(8):
        a(f's_waitcnt lgkmcnt({7-i})')
        a(f'buffer_store_dwordx4 v[{128+4*i}:{131+4*i}], v30, s[64:67], s71 offen sc1')
        a('s_add_u32 s71, s71, 1024')
    a('s_waitcnt vmcnt(0)')
    a('s_barrier')
    a('s_cmp_lg_u32 s3, 0')
    a('s_cbranch_scc1 KP_NOST')
    a('v_lshlrev_b32 v14, 11, v224')
    a('s_lshl_b32 s70, s2, 3')
    a('s_mov_b64 exec, 0xffffffff')
    a('buffer_store_dwordx2 v[230:231], v14, s[60:63], s70 offen sc1')
    a('s_mov_b64 exec, -1')
    a('ds_read_b128 v[96:99], v21')
    a('ds_read_b128 v[100:103], v21 offset:1024')
    a('ds_read_b128 v[104:107], v21 offset:2048')
    a('ds_read_b128 v[108:111], v21 offset:3072')
    a('s_waitcnt lgkmcnt(0)')
    for e in range(4):
        a(f'v_add_f32 v{96+e}, v{96+e}, v{104+e}')
        a(f'v_add_f32 v{100+e}, v{100+e}, v{108+e}')
    bf16_round_pair(a, 96, 97, 96, 97, 23)
    bf16_round_pair(a, 98, 99, 98, 99, 23)
    bf16_round_pair(a, 100, 101, 100, 101, 23)
    bf16_round_pair(a, 102, 103, 102, 103, 23)
    gelu4(a, [96, 97, 98, 99], 23)
    bf16_round_pair(a, 96, 97, 96, 97, 23)
    bf16_round_pair(a, 98, 99, 98, 99, 23)
    for e in range(4):
        a(f'v_mul_f32 v{96+e}, v{96+e}, v{100+e}')
    a('v_cvt_pk_bf16_f32 v104, v96, v97')
    a('v_cvt_pk_bf16_f32 v105, v98, v99')
    a('s_mov_b32 s70, 288')
    a('v_mul_lo_u32 v22, v8, s70')
    a('v_lshl_add_u32 v22, v5, 3, v22')
    a(f'v_add_u32 v22, {F_HB}, v22')
    a('ds_write_b64 v22, v[104:105]')
    a.label('KP_NOST')
    stamp(a, 5)
    a('s_waitcnt lgkmcnt(0)')
    a('s_barrier')
    a(f'v_add_u32 v22, {F_HB}, v16')
    a('ds_read_b128 v[32:35], v22')
    a(f'v_add_u32 v22, {F_WD}, v26')
    a(f'v_add_u32 v23, {F_WD}, v27')
    for tl in range(2):
        r = 64 + 4 * tl
        a(f'ds_read_b64_tr_b16 v[{r}:{r+1}], v{22+tl}')
        a(f'ds_read_b64_tr_b16 v[{r+2}:{r+3}], v{22+tl} offset:1024')
    for r in range(72, 80):
        a(f'v_mov_b32 v{r}, 0')
    a('s_lshl_b32 s70, s74, 14')
    a('s_lshl_b32 s71, s75, 9')
    a('s_add_u32 s70, s70, s71')
    a('s_lshl_b32 s71, s3, 7')
    a('s_add_u32 s70, s70, s71')
    a('s_cmp_ge_u32 s2, 172')
    a('s_cselect_b32 s70, 0x40000000, s70')
    a('s_waitcnt lgkmcnt(0)')
    for tl in range(2):
        r = 64 + 4 * tl
        a(f'v_mfma_f32_16x16x32_bf16 v[{72+4*tl}:{75+4*tl}], v[{r}:{r+3}], v[32:35], v[{72+4*tl}:{75+4*tl}]')
    a.nop(10)
    a('buffer_store_dwordx4 v[72:75], v29, s[56:59], s70 offen sc1')
    a('buffer_store_dwordx4 v[76:79], v29, s[56:59], s70 offen offset:64 sc1')
    srd(a, 48, 18, 1048576, WS_CTXP)
    srd(a, 40, 18, 524288, WS_ATTP)
    a('v_lshlrev_b32 v9, 3, v0')
    a('v_lshlrev_b32 v10, 20, v8')
    a('v_lshl_add_u32 v10, v5, 4, v10')
    def issue_S():
        a('s_lshl_b32 s70, s73, 11')
        a('buffer_load_dwordx2 v[32:33], v9, s[60:63], s70 offen sc1')
    poll_loads(a, issue_S, [32, 33], 22)
    a('s_barrier')
    a('s_lshl_b32 s70, s3, 18')
    a('s_lshl_b32 s71, s73, 10')
    a('s_add_u32 s70, s70, s71')
    a('s_lshl_b32 s71, s68, 7')
    a('s_add_u32 s70, s70, s71')
    for i in range(8):
        a(f'buffer_load_dwordx4 v[{64+4*i}:{67+4*i}], v10, s[64:67], s70 offen sc1')
        a('s_add_u32 s70, s70, 32768')
    stamp(a, 6)
    a('v_mov_b32 v34, v32')
    swz_reduce32(a, 34, 35, 'v_max_f32')
    a('v_sub_f32 v34, v32, v34')
    a('v_mul_f32 v34, 0x3fb8aa3b, v34')
    a('v_exp_f32 v34, v34')
    a('s_nop 0')
    a('v_mul_f32 v36, v34, v33')
    swz_reduce32(a, 36, 35, 'v_add_f32')
    a('v_rcp_f32 v36, v36')
    a('s_nop 0')
    a('v_mul_f32 v34, v34, v36')
    a('v_lshlrev_b32 v35, 2, v0')
    a(f'ds_write_b32 v35, v34 offset:{D_AL}')
    a('s_waitcnt lgkmcnt(0)')
    a('s_barrier')
    a('v_lshlrev_b32 v35, 7, v8')
    a('s_lshl_b32 s70, s3, 5')
    a('v_add_u32 v35, s70, v35')
    a(f'ds_read_b128 v[36:39], v35 offset:{D_AL}')
    a(f'ds_read_b128 v[40:43], v35 offset:{D_AL+16}')
    for r in range(48, 56):
        a(f'v_mov_b32 v{r}, 0')
    a('s_waitcnt lgkmcnt(0)')
    for i in range(8):
        a(f's_waitcnt vmcnt({7-i})')
        for e in range(4):
            a(f'v_lshlrev_b32 v22, 16, v{64+4*i+e}')
            a(f'v_and_b32 v23, 0xffff0000, v{64+4*i+e}')
            a(f'v_fmac_f32 v{48+2*e}, v22, v{36+i}')
            a(f'v_fmac_f32 v{49+2*e}, v23, v{36+i}')
    stamp(a, 10)
    a('v_lshlrev_b32 v35, 5, v0')
    a(f'ds_write_b128 v35, v[48:51] offset:{D_CB}')
    a(f'ds_write_b128 v35, v[52:55] offset:{D_CB+16}')
    a('s_waitcnt lgkmcnt(0)')
    a('s_barrier')
    a('s_cmp_lg_u32 s3, 0')
    a('s_cbranch_scc1 KP_NOSUM')
    for w in range(1, 4):
        a(f'ds_read_b128 v[{56+8*(w-1)}:{59+8*(w-1)}], v35 offset:{D_CB+w*2048}')
        a(f'ds_read_b128 v[{60+8*(w-1)}:{63+8*(w-1)}], v35 offset:{D_CB+w*2048+16}')
    a('s_waitcnt lgkmcnt(0)')
    for e in range(8):
        a(f'v_add_f32 v{48+e}, v{48+e}, v{56+e}')
        a(f'v_add_f32 v{64+e}, v{64+e}, v{72+e}')
        a(f'v_add_f32 v{48+e}, v{48+e}, v{64+e}')
    for e in range(4):
        a(f'v_cvt_pk_bf16_f32 v{56+e}, v{48+2*e}, v{49+2*e}')
    a('s_mov_b32 s70, 160')
    a('v_mul_lo_u32 v35, v8, s70')
    a('v_lshl_add_u32 v35, v5, 4, v35')
    a(f'ds_write_b128 v35, v[56:59] offset:{D_OC}')
    a.label('KP_NOSUM')
    a('s_mov_b32 s70, 160')
    a('v_mul_lo_u32 v24, v5, s70')
    a('v_lshl_add_u32 v24, v4, 4, v24')
    for r in range(96, 104):
        a(f'v_mov_b32 v{r}, 0')
    a('v_lshlrev_b32 v28, 9, v5')
    a('v_lshl_add_u32 v28, v4, 4, v28')
    a('s_lshl_b32 s70, s2, 12')
    a('s_lshl_b32 s71, s3, 7')
    a('s_add_u32 s70, s70, s71')
    a('s_waitcnt lgkmcnt(0)')
    a('s_barrier')
    for ks in range(2):
        a(f'ds_read_b128 v[{32+4*ks}:{35+4*ks}], v24 offset:{D_OC+ks*64}')
        for tl in range(2):
            r = 64 + 8 * ks + 4 * tl
            a(f'ds_read_b64_tr_b16 v[{r}:{r+1}], v{26+tl} offset:{D_WUV+ks*8192}')
            a(f'ds_read_b64_tr_b16 v[{r+2}:{r+3}], v{26+tl} offset:{D_WUV+ks*8192+1024}')
    a('s_waitcnt lgkmcnt(0)')
    for ks in range(2):
        for tl in range(2):
            r = 64 + 8 * ks + 4 * tl
            a(f'v_mfma_f32_16x16x32_bf16 v[{96+4*tl}:{99+4*tl}], v[{r}:{r+3}], v[{32+4*ks}:{35+4*ks}], v[{96+4*tl}:{99+4*tl}]')
    a.nop(10)
    a('buffer_store_dwordx4 v[96:99], v28, s[48:51], s70 offen sc1')
    a('buffer_store_dwordx4 v[100:103], v28, s[48:51], s70 offen offset:64 sc1')
    stamp(a, 11)
    a('s_lshl_b32 s69, s3, 1')
    tr_base_p128(a, 26, 27, D_WO, 69)
    def issue_ctx():
        a('s_lshl_b32 s70, s73, 15')
        for m in range(8):
            a(f'buffer_load_dwordx4 v[{64+4*m}:{67+4*m}], v19, s[48:51], s70 offen sc1')
            a('s_add_u32 s70, s70, 4096')
    poll_loads(a, issue_ctx, range(64, 96), 22)
    stamp(a, 7)
    for e in range(4):
        a(f'v_add_f32 v{64+e}, v{64+e}, v{68+e}')
        a(f'v_add_f32 v{72+e}, v{72+e}, v{76+e}')
        a(f'v_add_f32 v{80+e}, v{80+e}, v{84+e}')
        a(f'v_add_f32 v{88+e}, v{88+e}, v{92+e}')
        a(f'v_add_f32 v{64+e}, v{64+e}, v{72+e}')
        a(f'v_add_f32 v{80+e}, v{80+e}, v{88+e}')
        a(f'v_add_f32 v{64+e}, v{64+e}, v{80+e}')
    a('v_cvt_pk_bf16_f32 v68, v64, v65')
    a('v_cvt_pk_bf16_f32 v69, v66, v67')
    a(f'ds_write_b64 v20, v[68:69] offset:{D_CX}')
    for r in range(56, 60):
        a(f'v_mov_b32 v{r}, 0')
    a('s_lshl_b32 s70, s73, 14')
    a('s_lshl_b32 s71, s68, 8')
    a('s_add_u32 s70, s70, s71')
    a('s_lshl_b32 s71, s3, 6')
    a('s_add_u32 s70, s70, s71')
    a('s_waitcnt lgkmcnt(0)')
    a('s_barrier')
    for ks in range(4):
        a(f'ds_read_b128 v[{32+4*ks}:{35+4*ks}], v16 offset:{D_CX+ks*64}')
        a(f'ds_read_b64_tr_b16 v[{64+4*ks}:{65+4*ks}], v26 offset:{ks*4096}')
        a(f'ds_read_b64_tr_b16 v[{66+4*ks}:{67+4*ks}], v26 offset:{ks*4096+512}')
    for ks in range(4):
        a(f's_waitcnt lgkmcnt({12-3*(ks+1)})')
        a(f'v_mfma_f32_16x16x32_bf16 v[56:59], v[{64+4*ks}:{67+4*ks}], v[{32+4*ks}:{35+4*ks}], v[56:59]')
    a.nop(10)
    a('buffer_store_dwordx4 v[56:59], v29, s[40:43], s70 offen sc1')
    stamp(a, 12)
    srd(a, 20, 4, 8192)
    srd(a, 28, 16, 8192)
    a('v_and_b32 v9, 3, v0')
    a('v_lshrrev_b32 v10, 2, v0')
    a('v_lshlrev_b32 v11, 14, v10')
    a('v_lshl_add_u32 v11, v9, 4, v11')
    a('v_lshlrev_b32 v12, 1, v0')
    a('s_lshl_b32 s69, s2, 5')
    a('buffer_load_ushort v40, v12, s[20:23], s69 offen')
    def issue_fin():
        a('s_lshl_b32 s70, s2, 6')
        a('buffer_load_dwordx4 v[64:67], v11, s[40:43], s70 offen sc1')
        a('buffer_load_dwordx4 v[68:71], v11, s[56:59], s70 offen sc1')
    poll_loads(a, issue_fin, range(64, 72), 22)
    stamp(a, 13)
    a('v_lshlrev_b32 v14, 4, v0')
    a(f'v_add_u32 v14, {D_FA}, v14')
    a('ds_write_b128 v14, v[64:67]')
    a('ds_write_b128 v14, v[68:71] offset:4096')
    a('s_waitcnt lgkmcnt(0)')
    a('s_barrier')
    a('v_cmp_gt_u32 vcc, 16, v0')
    a('s_and_saveexec_b64 s[80:81], vcc')
    a('s_cbranch_execz KP_FIN')
    a('v_lshlrev_b32 v14, 2, v0')
    a(f'v_add_u32 v14, {D_FA}, v14')
    for g in range(32):
        a(f'ds_read_b32 v{64+g}, v14 offset:{g*64}')
    for g in range(43):
        a(f'ds_read_b32 v{128+g}, v14 offset:{4096+g*64}')
    a('s_waitcnt lgkmcnt(0)')
    for step in (16, 8, 4, 2, 1):
        for i in range(step):
            a(f'v_add_f32 v{64+i}, v{64+i}, v{64+i+step}')
    for i in range(11):
        a(f'v_add_f32 v{128+i}, v{128+i}, v{160+i}')
    for step in (16, 8, 4, 2, 1):
        for i in range(step):
            a(f'v_add_f32 v{128+i}, v{128+i}, v{128+i+step}')
    a('v_lshlrev_b32 v40, 16, v40')
    bf16_round_pair(a, 64, 128, 64, 128, 15)
    a('v_add_f32 v64, v64, v40')
    bf16_round_pair(a, 64, 65, 64, 64, 15)
    a('v_add_f32 v64, v64, v128')
    a('v_cvt_pk_bf16_f32 v64, v64, v64')
    a('buffer_store_short v64, v12, s[28:31], s69 offen')
    a.label('KP_FIN')
    a('s_mov_b64 exec, s[80:81]')
    if STAMP:
        stamp(a, 8)
        a('s_cmp_lg_u32 s3, 0')
        a('s_cbranch_scc1 KP_EXIT')
        srd(a, 76, 18, 1 << 20, WS_STAMP)
        a('s_lshl_b32 s80, s2, 7')
        a('v_mov_b32 v250, 0')
        for i in range(9):
            a(f'v_mov_b32 v251, s{84+2*i}')
            a(f'buffer_store_dword v251, v250, s[76:79], s80 offen offset:{4*i}')
    a('s_branch KP_EXIT')

    a.label('KP_LOADER')
    srd(a, 52, 18, 262144, WS_QABS)
    a('s_sub_u32 s69, s3, 4')
    a('v_lshlrev_b32 v3, 4, v2')
    a('s_lshl_b32 s70, s2, 17')
    a('s_lshl_b32 s71, s69, 15')
    a('s_add_u32 s70, s70, s71')
    a('s_barrier')
    for i in range(32):
        a(f'v_xor_b32 v4, {fsw(i & 15) << 4}, v3')
        a('s_mov_b32 m0, s71')
        a('s_add_u32 s71, s71, 1024')
        a('buffer_load_dwordx4 v4, s[24:27], s70 offen nt lds')
        a('s_add_u32 s70, s70, 1024')
        if THROTTLE and i >= THROTTLE:
            a(f's_waitcnt vmcnt({THROTTLE})')
        if i == QPOS - 1:
            a(f'v_mov_b32 v5, {R0 + 20480}')
            a.label('KP_LW')
            a('ds_read_b32 v6, v5 offset:4')
            a('s_waitcnt lgkmcnt(0)')
            a('v_readfirstlane_b32 s72, v6')
            a('s_nop 3')
            a('s_cmp_ge_u32 s72, 4')
            a('s_cbranch_scc0 KP_LW')
            a('v_mov_b32 v6, 1')
            a('s_mov_b64 exec, 1')
            a('ds_add_u32 v5, v6 offset:8')
            a('s_mov_b64 exec, -1')
            a('s_cmp_lg_u32 s69, 2')
            a('s_cbranch_scc1 KP_LW3')
            a.label('KP_LW2')
            a('ds_read_b32 v6, v5 offset:8')
            a('s_waitcnt lgkmcnt(0)')
            a('v_readfirstlane_b32 s72, v6')
            a('s_nop 3')
            a('s_cmp_ge_u32 s72, 4')
            a('s_cbranch_scc0 KP_LW2')
            a.label('KP_LW3')
            a('s_lshr_b32 s72, s2, 5')
            a('s_lshl_b32 s72, s72, 15')
            a('s_lshl_b32 s73, s69, 13')
            a('s_add_u32 s72, s72, s73')
            a(f's_add_u32 s73, s73, {R0}')
            a('s_and_b32 s74, s69, 1')
            a('s_lshl_b32 s74, s74, 5')
            a('v_xor_b32 v5, s74, v3')
            for q in range(8):
                a(f'v_xor_b32 v4, {(((q & 3) << 2) | (q >> 2)) << 4}, v5')
                a('s_mov_b32 m0, s73')
                a('s_add_u32 s73, s73, 1024')
                a('buffer_load_dwordx4 v4, s[52:55], s72 offen sc1 lds')
                a('s_add_u32 s72, s72, 1024')
    a('s_waitcnt vmcnt(0)')
    a('s_barrier')
    a.label('KP_EXIT')
    a('s_endpgm')

def main(out):
    a = Asm()
    a.raw(HDR.rstrip('\n'))
    ks = (('k1_kernel', gen_k1, 256, 256, K1_LDS), ('kp_kernel', gen_kp, 256, 512, KP_LDS))
    for name, g, grid, blk, lds in ks:
        a.raw(f'; @launch kernel={name} grid=({grid},1,1) block=({blk},1,1) lds={lds}')
    a.raw('.amdgcn_target "amdgcn-amd-amdhsa--gfx950"')
    a.raw('.text')
    for name, g, grid, blk, lds in ks:
        a.raw(f'.globl {name}')
        a.raw('.p2align 8')
        a.raw(f'.type {name},@function')
        g(a)
    a.raw('.section .rodata,"a"')
    for name, g, grid, blk, lds in ks:
        a.raw('.p2align 6')
        a.raw(kd(name))
    open(out, 'w').write('\n'.join(a.L) + '\n')

if __name__ == '__main__':
    if 'stamp' in sys.argv[2:]: STAMP = True
    if 'tail' in sys.argv[2:]: SMAP.clear(); SMAP.update({0:0,5:1,6:2,10:3,11:4,7:5,12:6,13:7,8:8})
    for x in sys.argv[2:]:
        if x.startswith('thr'): THROTTLE = int(x[3:])
        if x.startswith('slp'): SLEEP = int(x[3:])
        if x == 'pzsc1': PZ_POL = ' sc1'
        if x == 'nosent': SENT = False
        if x.startswith('qpos'): QPOS = int(x[4:])
    main(sys.argv[1] if len(sys.argv) > 1 else 'parallel_sum__compressed_kv_cla__geglu_ffn__decode.s')
```

```python
import sys, math, struct
sys.path.insert(0, 'work')
from gen1 import Asm, srd, HDR, kd, bf16_round_pair, swz_reduce32, fsw
import gen3
from gen3 import f2u, wave_lane, lane_decomp, tr_base_p128, tr_base_p256, ln_issue, ln_compute, gelu4

WS_QPART = 0x0
WS_FFNP = 0x80000
WS_QABS = 0x130000
WS_STATS = WS_QABS + 0x80000
WS_CTXP = WS_STATS + 0x20000
WS_ATTP = WS_CTXP + 0x100000
WS_FFNO = WS_ATTP + 0x80000
WS_FL = WS_FFNO + 43 * 16384
WS_OPART = 0x800000
WS_STAMP = 0xF000000
POLL_LIMIT = 20000
STAMP = False
THROTTLE = 8
PZ_POL = ''
SLEEP = 4
SENT = True
QPOS = 16
RSW = 0
THR1 = 1
SBSLEEP = 8
LATE = False

SMAP = {0:0,1:1,2:2,3:3,5:4,8:5}
def stamp(a, i):
    if STAMP and i in SMAP:
        j = SMAP[i]
        a(f's_memtime s[{84+2*j}:{85+2*j}]')
        a('s_waitcnt lgkmcnt(0)')

uid = [0]
def poll_loads(a, issue_fn, regs, tmpv):
    uid[0] += 1
    n = uid[0]
    a('s_mov_b32 s72, 0')
    a.label(f'PL{n}')
    issue_fn()
    a('s_waitcnt vmcnt(0)')
    r = list(regs)
    a(f'v_max_u32 v{tmpv}, v{r[0]}, v{r[1]}')
    i = 2
    while i < len(r):
        if i + 1 < len(r):
            a(f'v_max3_u32 v{tmpv}, v{tmpv}, v{r[i]}, v{r[i+1]}')
            i += 2
        else:
            a(f'v_max_u32 v{tmpv}, v{tmpv}, v{r[i]}')
            i += 1
    a(f'v_cmp_eq_u32 vcc, -1, v{tmpv}')
    a('s_nop 3')
    a('s_cmp_eq_u64 vcc, 0')
    a(f's_cbranch_scc1 PD{n}')
    a('s_add_u32 s72, s72, 1')
    a(f's_cmp_lt_u32 s72, {POLL_LIMIT}')
    a(f's_cbranch_scc0 PD{n}')
    a(f's_sleep {SLEEP}')
    a(f's_branch PL{n}')
    a.label(f'PD{n}')

def tag4(a, r):
    for i in range(4):
        a(f'v_bfi_b32 v{r+i}, v248, s{96+i}, v{r+i}')

def tag_check(a, quads, acc, t1, t2):
    a(f'v_mov_b32 v{acc}, 0')
    for base, mask in quads:
        if mask is None:
            for i in (0, 2):
                a(f'v_xor_b32 v{t1}, s{96+i}, v{base+i}')
                a(f'v_xor_b32 v{t2}, s{97+i}, v{base+i+1}')
                a(f'v_or3_b32 v{acc}, v{acc}, v{t1}, v{t2}')
        else:
            a(f'v_xor_b32 v{t1}, s96, v{base}')
            a(f'v_xor_b32 v{t2}, s97, v{base+1}')
            a(f'v_or_b32 v{t1}, v{t1}, v{t2}')
            a(f'v_xor_b32 v{t2}, s98, v{base+2}')
            a(f'v_or_b32 v{t1}, v{t1}, v{t2}')
            a(f'v_xor_b32 v{t2}, s99, v{base+3}')
            a(f'v_or_b32 v{t1}, v{t1}, v{t2}')
            a(f'v_cndmask_b32 v{t1}, 0, v{t1}, s[{mask}:{mask+1}]')
            a(f'v_or_b32 v{acc}, v{acc}, v{t1}')
    a(f'v_and_b32 v{acc}, 0xff, v{acc}')
    a(f'v_cmp_ne_u32 vcc, 0, v{acc}')

def poll_gen(a, issue_fn, check_fn, sleep=None):
    uid[0] += 1
    n = uid[0]
    a('s_mov_b32 s72, 0')
    a.label(f'PL{n}')
    issue_fn()
    a('s_waitcnt vmcnt(0)')
    check_fn()
    a('s_nop 3')
    a('s_cmp_eq_u64 vcc, 0')
    a(f's_cbranch_scc1 PD{n}')
    a('s_add_u32 s72, s72, 1')
    a(f's_cmp_lt_u32 s72, {POLL_LIMIT}')
    a(f's_cbranch_scc0 PD{n}')
    a(f's_sleep {SLEEP if sleep is None else sleep}')
    a(f's_branch PL{n}')
    a.label(f'PD{n}')

def poll_tag(a, issue_fn, quads):
    poll_gen(a, issue_fn, lambda: tag_check(a, quads, 22, 23, 249))

def wsync(a, k, vaddr, vone, vtmp):
    uid[0] += 1
    n = uid[0]
    a('s_waitcnt lgkmcnt(0)')
    a('s_mov_b64 exec, 1')
    a(f'ds_add_u32 v{vaddr}, v{vone}')
    a('s_mov_b64 exec, -1')
    a.label(f'WS{n}')
    a(f'ds_read_b32 v{vtmp}, v{vaddr}')
    a('s_waitcnt lgkmcnt(0)')
    a(f'v_readfirstlane_b32 s71, v{vtmp}')
    a('s_nop 3')
    a(f's_cmp_ge_u32 s71, {4*k}')
    a(f's_cbranch_scc0 WS{n}')

K1_WQT = 0
K1_FT = 16384
K1_XNA = 32768
K1_XNF = K1_XNA + 2304
K1_LDS = K1_XNF + 1280

def gen_k1(a):
    a.label('k1_kernel')
    a('s_cmp_ge_u32 s2, 256')
    a('s_cbranch_scc1 K1_EXIT')
    a('s_load_dwordx2 s[4:5], s[0:1], 0')
    a('s_load_dwordx2 s[8:9], s[0:1], 16')
    a('s_load_dwordx4 s[12:15], s[0:1], 56')
    a('s_load_dwordx2 s[18:19], s[0:1], 96')
    wave_lane(a, 3, 2)
    lane_decomp(a)
    a('s_lshr_b32 s73, s2, 3')
    a('s_lshr_b32 s74, s2, 1')
    a('s_and_b32 s74, s74, 3')
    a('s_and_b32 s75, s2, 1')
    a('s_and_b32 s68, s2, 7')
    a('v_lshrrev_b32 v8, 3, v2')
    a('v_lshrrev_b32 v9, 1, v8')
    a('v_and_b32 v9, 1, v9')
    a('v_lshlrev_b32 v9, 1, v9')
    a('v_xor_b32 v9, v9, v5')
    a('v_lshlrev_b32 v9, 4, v9')
    a('v_lshl_add_u32 v10, v8, 13, v9')
    a('v_xor_b32 v11, 64, v10')
    a('s_mov_b32 s70, 2752')
    a('v_mul_lo_u32 v12, v8, s70')
    a('v_add_u32 v13, v12, v9')
    a('v_xor_b32 v9, 64, v9')
    a('v_add_u32 v12, v12, v9')
    for r in range(200, 204):
        a(f'v_mov_b32 v{r}, -1')
    a('v_lshlrev_b32 v21, 4, v2')
    a('s_waitcnt lgkmcnt(0)')
    srd(a, 20, 4, 8192)
    srd(a, 28, 8, 4194304)
    T = 60
    ln_issue(a, 20, 3, T)
    a('s_lshl_b32 s70, s74, 20')
    a('s_lshl_b32 s71, s3, 18')
    a('s_add_u32 s70, s70, s71')
    a('s_lshl_b32 s71, s73, 8')
    a('s_add_u32 s70, s70, s71')
    a('s_lshl_b32 s71, s75, 7')
    a('s_add_u32 s70, s70, s71')
    a('s_lshl_b32 s71, s3, 12')
    for i in range(4):
        a('s_mov_b32 m0, s71')
        a('s_add_u32 s71, s71, 1024')
        a(f'buffer_load_dwordx4 v{10 + (i & 1)}, s[28:31], s70 offen nt lds')
        a('s_add_u32 s70, s70, 65536')
    a('s_cmp_ge_u32 s3, 2')
    a('s_cselect_b32 s76, s14, s12')
    a('s_cselect_b32 s77, s15, s13')
    a('s_and_b32 s77, s77, 0xffff')
    a('s_mov_b32 s78, 1409024')
    a('s_mov_b32 s79, 0x00020000')
    a('s_and_b32 s70, s3, 1')
    a('s_lshl_b32 s70, s70, 5')
    a('s_lshl_b32 s71, s68, 6')
    a('s_add_u32 s70, s70, s71')
    a('s_mul_i32 s70, s70, 2752')
    a('s_lshl_b32 s71, s73, 7')
    a('s_add_u32 s70, s70, s71')
    a('s_cmp_ge_u32 s2, 176')
    a('s_cselect_b32 s70, 0x40000000, s70')
    a('s_lshl_b32 s71, s3, 12')
    a(f's_add_u32 s71, s71, {K1_FT}')
    for i in range(4):
        a('s_mov_b32 m0, s71')
        a('s_add_u32 s71, s71, 1024')
        a(f'buffer_load_dwordx4 v{13 - (i & 1)}, s[76:79], s70 offen nt lds')
        a('s_add_u32 s70, s70, 22016')
    srd(a, 40, 18, PZ_SIZE, PZ)
    a('s_lshl_b32 s70, s2, 2')
    a('s_add_u32 s70, s70, s3')
    a(f's_mul_i32 s70, s70, {PZ_PER_WAVE*1024}')
    for i in range(PZ_PER_WAVE):
        a(f'buffer_store_dwordx4 v[200:203], v21, s[40:43], s70 offen{PZ_POL}')
        a('s_add_u32 s70, s70, 1024')
    NP = PZ_PER_WAVE
    srd(a, 48, 18, 524288, WS_QPART)
    srd(a, 56, 18, 0xB0000, WS_FFNP)
    ln_compute(a, T, 8 + NP)
    a('s_mov_b32 s70, 288')
    a(f'v_mul_lo_u32 v14, v{T}, s70')
    a(f'v_and_b32 v15, 7, v{T+1}')
    a('v_lshl_add_u32 v14, v15, 5, v14')
    a(f'v_lshrrev_b32 v15, 3, v{T+1}')
    a('v_cmp_eq_u32 vcc, s74, v15')
    a('s_and_saveexec_b64 s[80:81], vcc')
    a(f'ds_write_b128 v14, v[{T+4}:{T+7}] offset:{K1_XNA}')
    a(f'ds_write_b128 v14, v[{T+8}:{T+11}] offset:{K1_XNA+16}')
    a('s_mov_b64 exec, s[80:81]')
    a('s_mov_b32 s70, 160')
    a(f'v_mul_lo_u32 v14, v{T}, s70')
    a(f'v_and_b32 v15, 3, v{T+1}')
    a('v_lshl_add_u32 v14, v15, 5, v14')
    a(f'v_lshrrev_b32 v15, 2, v{T+1}')
    a('v_cmp_eq_u32 vcc, s68, v15')
    a('s_and_saveexec_b64 s[80:81], vcc')
    a(f'ds_write_b128 v14, v[{T+4}:{T+7}] offset:{K1_XNF}')
    a(f'ds_write_b128 v14, v[{T+8}:{T+11}] offset:{K1_XNF+16}')
    a('s_mov_b64 exec, s[80:81]')
    a('s_mov_b32 s70, 288')
    a('v_mul_lo_u32 v15, v5, s70')
    a('v_lshl_add_u32 v15, v4, 4, v15')
    a('s_mov_b32 s70, 160')
    a('v_mul_lo_u32 v17, v5, s70')
    a('v_lshl_add_u32 v17, v4, 4, v17')
    a('s_lshl_b32 s69, s3, 1')
    tr_base_p128(a, 18, 19, 0, 69)
    for r in range(24, 36):
        a(f'v_mov_b32 v{r}, 0')
    a('v_lshlrev_b32 v19, 9, v5')
    a('v_lshl_add_u32 v19, v4, 4, v19')
    a('s_lshl_b32 s82, s73, 14')
    a('s_lshl_b32 s71, s74, 12')
    a('s_add_u32 s82, s82, s71')
    a('s_lshl_b32 s71, s75, 8')
    a('s_add_u32 s82, s82, s71')
    a('s_lshl_b32 s71, s3, 6')
    a('s_add_u32 s82, s82, s71')
    a('s_mov_b32 s70, 5632')
    a('v_mul_lo_u32 v20, v5, s70')
    a('v_lshl_add_u32 v20, v4, 4, v20')
    a('s_mul_i32 s83, s68, 45056')
    a('s_lshl_b32 s71, s73, 8')
    a('s_add_u32 s83, s83, s71')
    a('s_lshl_b32 s71, s3, 6')
    a('s_add_u32 s83, s83, s71')
    a('s_cmp_ge_u32 s2, 176')
    a('s_cselect_b32 s83, 0x40000000, s83')
    a(f's_waitcnt vmcnt({4+NP}) lgkmcnt(0)')
    a('s_barrier')
    for ks in range(4):
        a(f'ds_read_b128 v[{36+8*ks}:{39+8*ks}], v15 offset:{K1_XNA+ks*64}')
        a(f'ds_read_b64_tr_b16 v[{40+8*ks}:{41+8*ks}], v18 offset:{K1_WQT+ks*4096}')
        a(f'ds_read_b64_tr_b16 v[{42+8*ks}:{43+8*ks}], v18 offset:{K1_WQT+ks*4096+512}')
    for ks in range(4):
        a(f's_waitcnt lgkmcnt({12-3*(ks+1)})')
        a(f'v_mfma_f32_16x16x32_bf16 v[24:27], v[{40+8*ks}:{43+8*ks}], v[{36+8*ks}:{39+8*ks}], v[24:27]')
    a(f's_waitcnt vmcnt({NP})')
    a.nop(8)
    a('buffer_store_dwordx4 v[24:27], v19, s[48:51], s82 offen')
    a('s_barrier')
    for ks in range(2):
        a(f'ds_read_b128 v[{36+4*ks}:{39+4*ks}], v17 offset:{K1_XNF+ks*64}')
    for mat in range(2):
        for ks in range(2):
            r = 44 + 8 * mat + 4 * ks
            a(f'ds_read_b64_tr_b16 v[{r}:{r+1}], v18 offset:{K1_FT+mat*8192+ks*4096}')
            a(f'ds_read_b64_tr_b16 v[{r+2}:{r+3}], v18 offset:{K1_FT+mat*8192+ks*4096+512}')
    a('s_waitcnt lgkmcnt(0)')
    for mat in range(2):
        for ks in range(2):
            r = 44 + 8 * mat + 4 * ks
            a(f'v_mfma_f32_16x16x32_bf16 v[{28+4*mat}:{31+4*mat}], v[{r}:{r+3}], v[{36+4*ks}:{39+4*ks}], v[{28+4*mat}:{31+4*mat}]')
    a.nop(10)
    a('buffer_store_dwordx4 v[28:31], v20, s[56:59], s83 offen')
    a('s_add_u32 s83, s83, 360448')
    a('buffer_store_dwordx4 v[32:35], v20, s[56:59], s83 offen')
    a.label('K1_EXIT')
    a('s_endpgm')

R0 = 131072
P_QB = R0
P_FS = R0 + 2304
P_HB = P_FS + 4096
P_WD = R0 + 9216
P_P = R0
P_ST = R0 + 8192
D_OT = 0
D_AL = 32768
D_CB = D_AL + 1024
D_OC = D_CB + 8192
D_CX = D_OC + 1280
D_WUV = 46080
D_WO = D_WUV + 16384
D_FA = 81920
F_FS = 90112
F_HB = 94208
F_WD = 97280
KP_LDS = 163840

A_WQT = R0
A_XNA = R0 + 16384
A_XNF = A_XNA + 2304
A_QB = R0 + 20480
A_CNT = R0 + 23552
KNAME = 'parallel_sum__compressed_kv_cla__geglu_ffn__decode_kernel'
def srd_inplace(a, r, nbytes):
    a(f's_and_b32 s{r+1}, s{r+1}, 0xffff')
    a(f's_mov_b32 s{r+2}, {nbytes}')
    a(f's_mov_b32 s{r+3}, 0x00020000')

def gen_kp(a):
    a.label(KNAME)
    a('s_cmp_ge_u32 s2, 256')
    a('s_cbranch_scc1 KP_EXIT')
    stamp(a, 0)
    a('s_load_dwordx4 s[4:7], s[0:1], 0')
    a('s_load_dwordx2 s[28:29], s[0:1], 16')
    a('s_load_dwordx4 s[8:11], s[0:1], 24')
    a('s_load_dwordx2 s[12:13], s[0:1], 40')
    a('s_load_dwordx2 s[36:37], s[0:1], 56')
    a('s_load_dwordx2 s[40:41], s[0:1], 64')
    a('s_load_dwordx2 s[14:15], s[0:1], 72')
    a('s_load_dwordx2 s[16:17], s[0:1], 80')
    a('s_load_dwordx2 s[44:45], s[0:1], 88')
    a('s_load_dwordx2 s[18:19], s[0:1], 96')
    wave_lane(a, 3, 2)
    a('s_waitcnt lgkmcnt(0)')
    srd(a, 24, 6, 33554432)
    a('s_cmp_ge_u32 s3, 4')
    a('s_cbranch_scc1 KP_LOADER')
    a('v_lshlrev_b32 v30, 4, v2')
    a('v_mov_b32 v248, 0xff')
    srd_inplace(a, 44, 256)
    a('s_or_b32 s70, s2, s3')
    a('s_cmp_lg_u32 s70, 0')
    a('s_cbranch_scc1 KP_NONON')
    a('s_memrealtime s[70:71]')
    a('s_waitcnt lgkmcnt(0)')
    a('s_or_b32 s70, s70, 1')
    a('v_mov_b32 v22, s70')
    a('v_mov_b32 v23, 0')
    a('s_mov_b64 exec, 1')
    a('buffer_store_dword v22, v23, s[44:47], 0 offen sc1')
    a('s_mov_b64 exec, -1')
    a.label('KP_NONON')
    srd(a, 20, 4, 8192)
    T = 60
    ln_issue(a, 20, 3, T)
    lane_decomp(a)
    a('s_lshr_b32 s73, s2, 3')
    a('s_and_b32 s68, s2, 7')
    a('s_lshr_b32 s74, s2, 1')
    a('s_and_b32 s74, s74, 3')
    a('s_and_b32 s75, s2, 1')
    a('v_lshrrev_b32 v8, 3, v2')
    srd_inplace(a, 28, 4194304)
    a('v_lshrrev_b32 v9, 1, v8')
    a('v_and_b32 v9, 1, v9')
    a('v_lshlrev_b32 v9, 1, v9')
    a('v_xor_b32 v9, v9, v5')
    a('v_lshlrev_b32 v9, 4, v9')
    a('v_lshl_add_u32 v10, v8, 13, v9')
    a('v_xor_b32 v11, 64, v10')
    a('s_lshl_b32 s70, s74, 20')
    a('s_lshl_b32 s71, s3, 18')
    a('s_add_u32 s70, s70, s71')
    a('s_lshl_b32 s71, s73, 8')
    a('s_add_u32 s70, s70, s71')
    a('s_lshl_b32 s71, s75, 7')
    a('s_add_u32 s70, s70, s71')
    a('s_lshl_b32 s71, s3, 12')
    a(f's_add_u32 s71, s71, {A_WQT}')
    for i in range(4):
        a('s_mov_b32 m0, s71')
        a('s_add_u32 s71, s71, 1024')
        a(f'buffer_load_dwordx4 v{10 + (i & 1)}, s[28:31], s70 offen nt lds')
        a('s_add_u32 s70, s70, 65536')
    srd(a, 32, 8, 4194304)
    a('v_lshlrev_b32 v12, 13, v3')
    a('v_lshl_add_u32 v12, v4, 4, v12')
    a('s_lshl_b32 s70, s68, 19')
    a('s_lshl_b32 s71, s3, 17')
    a('s_add_u32 s70, s70, s71')
    a('s_lshl_b32 s71, s73, 8')
    a('s_add_u32 s70, s70, s71')
    for st in range(4):
        a(f'buffer_load_dwordx4 v[{104+4*st}:{107+4*st}], v12, s[32:35], s70 offen offset:{st*64} nt')
    a('s_cmp_ge_u32 s3, 2')
    a('s_cselect_b32 s76, s40, s36')
    a('s_cselect_b32 s77, s41, s37')
    srd_inplace(a, 76, 1409024)
    a('s_mov_b32 s70, 2752')
    a('v_mul_lo_u32 v14, v8, s70')
    a('v_lshl_add_u32 v14, v5, 4, v14')
    a('s_and_b32 s70, s3, 1')
    a('s_lshl_b32 s70, s70, 5')
    a('s_lshl_b32 s71, s68, 6')
    a('s_add_u32 s70, s70, s71')
    a('s_mul_i32 s70, s70, 2752')
    a('s_lshl_b32 s71, s73, 7')
    a('s_add_u32 s70, s70, s71')
    a('s_cmp_ge_u32 s2, 176')
    a('s_cselect_b32 s70, 0x40000000, s70')
    for i in range(4):
        a(f'buffer_load_dwordx4 v[{120+4*i}:{123+4*i}], v14, s[76:79], s70 offen nt')
        a('s_add_u32 s70, s70, 22016')
    a(f'v_mov_b32 v226, {A_CNT}')
    a('v_mov_b32 v227, 1')
    a('v_mov_b32 v228, 0')
    a('ds_write_b32 v226, v228')
    a('ds_write_b32 v226, v228 offset:4')
    a('ds_write_b32 v226, v228 offset:8')
    a('ds_write_b32 v226, v228 offset:12')
    a('s_waitcnt lgkmcnt(0)')
    a('s_barrier')
    a('v_lshlrev_b32 v13, 1, v4')
    a('v_xor_b32 v13, v13, v3')
    a('v_lshlrev_b32 v13, 4, v13')
    a('v_lshrrev_b32 v22, 5, v0')
    a('v_and_b32 v23, 31, v0')
    a('v_lshlrev_b32 v19, 9, v22')
    a('v_lshl_add_u32 v19, v23, 4, v19')
    a('s_mov_b32 s70, 288')
    a('v_mul_lo_u32 v20, v22, s70')
    a('v_lshl_add_u32 v20, v23, 3, v20')
    a('v_mul_lo_u32 v16, v5, s70')
    a('v_lshl_add_u32 v16, v4, 4, v16')
    a('v_lshlrev_b32 v29, 11, v5')
    a('v_lshl_add_u32 v29, v4, 4, v29')
    ln_compute(a, T, 12)
    a('s_mov_b32 s70, 288')
    a(f'v_mul_lo_u32 v14, v{T}, s70')
    a(f'v_and_b32 v15, 7, v{T+1}')
    a('v_lshl_add_u32 v14, v15, 5, v14')
    a(f'v_add_u32 v14, {A_XNA}, v14')
    a(f'v_lshrrev_b32 v15, 3, v{T+1}')
    a('v_cmp_eq_u32 vcc, s74, v15')
    a('s_and_saveexec_b64 s[80:81], vcc')
    a(f'ds_write_b128 v14, v[{T+4}:{T+7}]')
    a(f'ds_write_b128 v14, v[{T+8}:{T+11}] offset:16')
    a('s_mov_b64 exec, s[80:81]')
    a('s_mov_b32 s70, 160')
    a(f'v_mul_lo_u32 v14, v{T}, s70')
    a(f'v_and_b32 v15, 3, v{T+1}')
    a('v_lshl_add_u32 v14, v15, 5, v14')
    a(f'v_add_u32 v14, {A_XNF}, v14')
    a(f'v_lshrrev_b32 v15, 2, v{T+1}')
    a('v_cmp_eq_u32 vcc, s68, v15')
    a('s_and_saveexec_b64 s[80:81], vcc')
    a(f'ds_write_b128 v14, v[{T+4}:{T+7}]')
    a(f'ds_write_b128 v14, v[{T+8}:{T+11}] offset:16')
    a('s_mov_b64 exec, s[80:81]')
    a(f'v_add_u32 v15, {A_XNA}, v16')
    a('s_mov_b32 s70, 160')
    a('v_mul_lo_u32 v17, v5, s70')
    a('v_lshl_add_u32 v17, v4, 4, v17')
    a(f'v_add_u32 v17, {A_XNF}, v17')
    a('s_lshl_b32 s69, s3, 1')
    tr_base_p128(a, 18, 14, A_WQT, 69)
    for r in range(136, 148):
        a(f'v_mov_b32 v{r}, 0')
    a('s_waitcnt vmcnt(8)')
    wsync(a, 1, 226, 227, 228)
    stamp(a, 21)
    for ks in range(4):
        a(f'ds_read_b128 v[{36+8*ks}:{39+8*ks}], v15 offset:{ks*64}')
        a(f'ds_read_b64_tr_b16 v[{40+8*ks}:{41+8*ks}], v18 offset:{ks*4096}')
        a(f'ds_read_b64_tr_b16 v[{42+8*ks}:{43+8*ks}], v18 offset:{ks*4096+512}')
    for ks in range(4):
        a(f's_waitcnt lgkmcnt({12-3*(ks+1)})')
        a(f'v_mfma_f32_16x16x32_bf16 v[136:139], v[{40+8*ks}:{43+8*ks}], v[{36+8*ks}:{39+8*ks}], v[136:139]')
    wsync(a, 2, 226, 227, 228)
    a('v_lshl_add_u32 v22, v8, 7, v9')
    a('s_lshl_b32 s70, s3, 12')
    a(f's_add_u32 s70, s70, {A_WQT}')
    a('v_add_u32 v22, s70, v22')
    a('v_xor_b32 v23, 64, v22')
    a('s_waitcnt vmcnt(0)')
    for i in range(4):
        a(f'ds_write_b128 v{22 + (i & 1)}, v[{120+4*i}:{123+4*i}] offset:{i*1024}')
    wsync(a, 3, 226, 227, 228)
    for ks in range(2):
        a(f'ds_read_b128 v[{36+4*ks}:{39+4*ks}], v17 offset:{ks*64}')
    for mat in range(2):
        for ks in range(2):
            r = 44 + 8 * mat + 4 * ks
            a(f'ds_read_b64_tr_b16 v[{r}:{r+1}], v18 offset:{mat*8192+ks*4096}')
            a(f'ds_read_b64_tr_b16 v[{r+2}:{r+3}], v18 offset:{mat*8192+ks*4096+512}')
    a('s_waitcnt lgkmcnt(0)')
    for mat in range(2):
        for ks in range(2):
            r = 44 + 8 * mat + 4 * ks
            a(f'v_mfma_f32_16x16x32_bf16 v[{140+4*mat}:{143+4*mat}], v[{r}:{r+3}], v[{36+4*ks}:{39+4*ks}], v[{140+4*mat}:{143+4*mat}]')
    stamp(a, 22)
    a.label('KP_NL')
    a('ds_read_b32 v23, v226 offset:12')
    a('s_waitcnt lgkmcnt(0)')
    a('v_readfirstlane_b32 s100, v23')
    a('s_nop 3')
    a('s_cmp_eq_u32 s100, 0')
    a('s_cbranch_scc1 KP_NL')
    a('s_and_b32 s96, s100, 0xff')
    a('s_lshr_b32 s97, s100, 8')
    a('s_and_b32 s97, s97, 0xff')
    a('s_lshr_b32 s98, s100, 16')
    a('s_and_b32 s98, s98, 0xff')
    a('s_lshr_b32 s99, s100, 24')
    tag4(a, 136); tag4(a, 140); tag4(a, 144)
    stamp(a, 1)
    srd(a, 48, 18, 524288, WS_QPART)
    srd(a, 40, 18, 0xB0000, WS_FFNP)
    a('v_lshlrev_b32 v14, 9, v5')
    a('v_lshl_add_u32 v14, v4, 4, v14')
    a('s_lshl_b32 s70, s73, 14')
    a('s_lshl_b32 s71, s74, 12')
    a('s_add_u32 s70, s70, s71')
    a('s_lshl_b32 s71, s75, 8')
    a('s_add_u32 s70, s70, s71')
    a('s_lshl_b32 s71, s3, 6')
    a('s_add_u32 s70, s70, s71')
    a('buffer_store_dwordx4 v[136:139], v14, s[48:51], s70 offen sc1')
    a('s_mov_b32 s70, 5632')
    a('v_mul_lo_u32 v14, v5, s70')
    a('v_lshl_add_u32 v14, v4, 4, v14')
    a('s_mul_i32 s70, s68, 45056')
    a('s_lshl_b32 s71, s73, 8')
    a('s_add_u32 s70, s70, s71')
    a('s_lshl_b32 s71, s3, 6')
    a('s_add_u32 s70, s70, s71')
    a('s_cmp_ge_u32 s2, 176')
    a('s_cselect_b32 s70, 0x40000000, s70')
    a('buffer_store_dwordx4 v[140:143], v14, s[40:43], s70 offen sc1')
    a('s_add_u32 s70, s70, 360448')
    a('buffer_store_dwordx4 v[144:147], v14, s[40:43], s70 offen sc1')
    srd(a, 52, 18, 524288, WS_QABS)
    srd(a, 56, 18, 43 * 16384, WS_FFNO)
    srd(a, 60, 18, 131072, WS_STATS)
    srd(a, 64, 18, 8388608, WS_OPART)
    a('s_lshr_b32 s74, s2, 2')
    a('s_and_b32 s75, s2, 3')
    a(f'v_add_u32 v21, {A_QB}, v20')
    a(f'v_add_u32 v24, {A_QB}, v16')
    a('s_lshl_b32 s69, s3, 2')
    tr_base_p256(a, 26, 28, 0, 69)
    a('s_add_u32 s69, s69, 2')
    tr_base_p256(a, 27, 28, 0, 69)
    def issue_qp():
        a('s_lshl_b32 s70, s73, 14')
        for m in range(4):
            a(f'buffer_load_dwordx4 v[{36+4*m}:{39+4*m}], v19, s[48:51], s70 offen sc1')
            a('s_add_u32 s70, s70, 4096')
    poll_tag(a, issue_qp, [(36,None),(40,None),(44,None),(48,None)])
    stamp(a, 30)
    for e in range(4):
        a(f'v_add_f32 v{36+e}, v{36+e}, v{40+e}')
        a(f'v_add_f32 v{44+e}, v{44+e}, v{48+e}')
        a(f'v_add_f32 v{36+e}, v{36+e}, v{44+e}')
    a('v_cvt_pk_bf16_f32 v40, v36, v37')
    a('v_cvt_pk_bf16_f32 v41, v38, v39')
    a('ds_write_b64 v21, v[40:41]')
    wsync(a, 4, 226, 227, 228)
    for st in range(4):
        a(f'ds_read_b128 v[{36+4*st}:{39+4*st}], v24 offset:{st*64}')
    for r in range(56, 60):
        a(f'v_mov_b32 v{r}, 0')
    a('v_lshlrev_b32 v25, 16, v5')
    a('v_lshl_add_u32 v25, v4, 4, v25')
    a('s_lshl_b32 s70, s73, 11')
    a('s_lshl_b32 s71, s68, 8')
    a('s_add_u32 s70, s70, s71')
    a('s_lshl_b32 s71, s3, 6')
    a('s_add_u32 s70, s70, s71')
    a('s_waitcnt lgkmcnt(0)')
    for st in range(4):
        a(f'v_mfma_f32_16x16x32_bf16 v[56:59], v[{104+4*st}:{107+4*st}], v[{36+4*st}:{39+4*st}], v[56:59]')
    a.nop(10)
    tag4(a, 56)
    a('buffer_store_dwordx4 v[56:59], v25, s[52:55], s70 offen sc1')
    wsync(a, 5, 226, 227, 228)
    stamp(a, 31)
    a('s_mov_b64 exec, 1')
    a('ds_add_u32 v226, v227 offset:4')
    a('s_mov_b64 exec, -1')
    a('s_lshr_b32 s69, s2, 5')
    def issue_sent():
        a('s_lshl_b32 s70, s69, 16')
        a('s_lshl_b32 s71, s3, 14')
        a('s_add_u32 s70, s70, s71')
        a('buffer_load_dwordx4 v[128:131], v30, s[52:55], s70 offen sc1')
        a('buffer_load_dwordx4 v[132:135], v30, s[52:55], s70 offen offset:1024 sc1')
    poll_tag(a, issue_sent, [(128,None),(132,None)])
    def issue_qabs():
        a('s_lshl_b32 s70, s69, 16')
        a('s_lshl_b32 s71, s3, 14')
        a('s_add_u32 s70, s70, s71')
        a('s_add_u32 s70, s70, 2048')
        for i in range(2, 16):
            a(f'buffer_load_dwordx4 v[{128+4*i}:{131+4*i}], v30, s[52:55], s70 offen sc1')
            a('s_add_u32 s70, s70, 1024')
    poll_tag(a, issue_qabs, [(128+4*i,None) for i in range(2, 16)])
    a('s_cmp_lg_u32 s3, 2')
    a('s_cbranch_scc1 KP_NOW2')
    a.label('KP_W2L')
    a('ds_read_b32 v228, v226 offset:4')
    a('s_waitcnt lgkmcnt(0)')
    a('v_readfirstlane_b32 s71, v228')
    a('s_nop 3')
    a('s_cmp_ge_u32 s71, 4')
    a('s_cbranch_scc0 KP_W2L')
    a.label('KP_NOW2')
    a('v_lshrrev_b32 v14, 1, v2')
    a('v_lshlrev_b32 v14, 4, v14')
    a('s_and_b32 s70, s3, 1')
    a('s_lshl_b32 s70, s70, 5')
    a('v_xor_b32 v14, s70, v14')
    a('v_and_b32 v15, 1, v2')
    a('v_lshlrev_b32 v15, 3, v15')
    a('s_lshl_b32 s71, s3, 13')
    a(f's_add_u32 s71, s71, {R0}')
    a('v_add_u32 v15, s71, v15')
    for i in range(8):
        a(f'v_xor_b32 v9, {(((i & 3) << 2) | (i >> 2)) << 4}, v14')
        a('v_add_u32 v9, v9, v15')
        for p in range(2):
            r = 128 + 4 * (2 * i + p)
            a(f'v_cvt_pk_bf16_f32 v{r}, v{r}, v{r+1}')
            a(f'v_cvt_pk_bf16_f32 v{r+1}, v{r+2}, v{r+3}')
            a(f'ds_write_b64 v9, v[{r}:{r+1}] offset:{i*1024+p*512}')
    a('v_lshlrev_b32 v30, 4, v2')
    a('s_lshr_b32 s69, s2, 5')
    stamp(a, 2)
    a('v_and_b32 v224, 31, v2')
    a('v_lshrrev_b32 v225, 5, v2')
    a('v_and_b32 v9, 3, v224')
    a('v_lshlrev_b32 v9, 2, v9')
    a('v_lshrrev_b32 v10, 2, v224')
    a('v_and_b32 v10, 3, v10')
    a('v_or_b32 v9, v9, v10')
    a('v_xor_b32 v9, v9, v225')
    a('v_lshlrev_b32 v10, 10, v224')
    a('s_lshl_b32 s70, s3, 15')
    a('v_add_u32 v11, s70, v10')
    a(f'v_add_u32 v12, {R0}, v10')
    for e in range(8):
        a(f'v_xor_b32 v14, {2*e}, v9')
        a(f'v_lshl_add_u32 v{232+e}, v14, 4, v11')
        a(f'v_lshl_add_u32 v{240+e}, v14, 4, v12')
    for r in range(32, 48):
        a(f'v_mov_b32 v{r}, 0')
    for r in range(80, 128):
        a(f'v_mov_b32 v{r}, 0')
    a('v_and_b32 v9, 1, v4')
    a('v_lshrrev_b32 v10, 1, v7')
    a('v_lshl_add_u32 v10, v9, 1, v10')
    a('v_lshl_add_u32 v11, v225, 2, v6')
    a('v_lshlrev_b32 v11, 10, v11')
    a('s_lshl_b32 s70, s3, 8')
    a('v_add_u32 v11, s70, v11')
    a('v_and_b32 v9, 1, v7')
    a('v_lshl_add_u32 v11, v9, 3, v11')
    for sec in range(2):
        a(f'v_add_u32 v9, {2*sec}, v225')
        a('v_xor_b32 v9, v9, v10')
        for t in range(4):
            a(f'v_xor_b32 v14, {t}, v6')
            a('v_lshl_add_u32 v14, v14, 2, v9')
            a(f'v_lshl_add_u32 v{160+2*t+sec}, v14, 4, v11')
            if sec:
                a(f'v_add_u32 v{160+2*t+sec}, 8192, v{160+2*t+sec}')
    a('s_waitcnt lgkmcnt(0)')
    a('s_barrier')
    stamp(a, 3)
    srd(a, 36, 10, 4194304)
    a('v_lshlrev_b32 v14, 4, v3')
    a('v_lshl_add_u32 v14, v4, 13, v14')
    a('s_lshr_b32 s70, s68, 1')
    a('s_lshl_b32 s70, s70, 7')
    a('s_and_b32 s71, s68, 1')
    a('s_lshl_b32 s71, s71, 2')
    a('s_add_u32 s70, s70, s71')
    a('s_lshl_b32 s71, s3, 5')
    a('s_add_u32 s70, s70, s71')
    a('s_lshl_b32 s70, s70, 13')
    a('s_lshl_b32 s71, s73, 8')
    a('s_add_u32 s70, s70, s71')
    for i in range(4):
        a(f'buffer_load_dwordx4 v[{192+4*i}:{195+4*i}], v14, s[36:39], s70 offen nt')
        a('s_add_u32 s70, s70, 65536')
    srd(a, 44, 12, 4194304)
    a('v_lshlrev_b32 v14, 4, v5')
    a('v_lshl_add_u32 v14, v8, 10, v14')
    a('s_lshl_b32 s70, s73, 17')
    a('s_lshl_b32 s71, s3, 15')
    a('s_add_u32 s70, s70, s71')
    a('s_lshl_b32 s71, s68, 7')
    a('s_add_u32 s70, s70, s71')
    for i in range(4):
        a(f'buffer_load_dwordx4 v[{208+4*i}:{211+4*i}], v14, s[44:47], s70 offen nt')
        a('s_add_u32 s70, s70, 8192')
    def rd(st):
        return [f'ds_read_b128 v[{48+4*(st&3)}:{51+4*(st&3)}], v{232+(st&7)} offset:{(st>>3)*256}',
                f'ds_read_b128 v[{64+4*(st&3)}:{67+4*(st&3)}], v{240+(st&7)} offset:{(st>>3)*256}']
    for st in range(3):
        for s in rd(st): a(s)
    for st in range(32):
        if st + 3 < 32:
            for s in rd(st + 3): a(s)
            a('s_waitcnt lgkmcnt(6)')
        else:
            a(f's_waitcnt lgkmcnt({2*(31-st)})')
        a(f'v_mfma_f32_32x32x16_bf16 v[32:47], v[{48+4*(st&3)}:{51+4*(st&3)}], v[{64+4*(st&3)}:{67+4*(st&3)}], v[32:47]')
    a('s_barrier')
    for r in range(64, 80):
        a(f'v_mov_b32 v{r}, 0')
    srd(a, 40, 18, 0xB0000, WS_FFNP)
    srd(a, 28, 14, 1409024)
    a('s_mov_b32 s70, 5632')
    a('v_mul_lo_u32 v14, v8, s70')
    a('v_lshl_add_u32 v14, v5, 4, v14')
    a('s_and_b32 s70, s3, 1')
    a('s_mul_i32 s70, s70, 360448')
    a('s_lshr_b32 s71, s3, 1')
    a('s_mul_i32 s71, s71, 180224')
    a('s_add_u32 s70, s70, s71')
    a('s_lshl_b32 s71, s74, 7')
    a('s_add_u32 s70, s70, s71')
    a('s_cmp_ge_u32 s2, 172')
    a('s_cselect_b32 s70, 0x40000000, s70')
    a('v_mov_b32 v229, v14')
    a('s_mov_b32 s82, s70')
    for i in range(4):
        a(f'buffer_load_dwordx4 v[{232+4*i}:{235+4*i}], v14, s[40:43], s70 offen sc1')
        a('s_add_u32 s70, s70, 45056')
    a('v_lshlrev_b32 v14, 4, v3')
    a('v_lshl_add_u32 v14, v4, 10, v14')
    a('s_lshl_b32 s70, s74, 15')
    a('s_lshl_b32 s71, s3, 13')
    a('s_add_u32 s70, s70, s71')
    a('s_lshl_b32 s71, s75, 8')
    a('s_add_u32 s70, s70, s71')
    a('s_cmp_ge_u32 s2, 172')
    a('s_cselect_b32 s70, 0x40000000, s70')
    for i in range(2):
        a(f'buffer_load_dwordx4 v[{184+4*i}:{187+4*i}], v14, s[28:31], s70 offen nt')
        a('s_add_u32 s70, s70, 4096')
    a('s_mov_b32 s70, 0x3db504f3')
    for i in range(8):
        bf16_round_pair(a, 32+2*i, 33+2*i, 32+2*i, 33+2*i, 48)
        a(f'v_mul_f32 v{32+2*i}, s70, v{32+2*i}')
        a(f'v_mul_f32 v{33+2*i}, s70, v{33+2*i}')
        bf16_round_pair(a, 32+2*i, 33+2*i, 32+2*i, 33+2*i, 48)
    a('v_max3_f32 v48, v32, v33, v34')
    for i in range(35, 47, 2):
        a(f'v_max3_f32 v48, v48, v{i}, v{i+1}')
    a('v_max_f32 v48, v48, v47')
    a('v_mov_b32 v49, v48')
    a('s_nop 1')
    a('v_permlane32_swap_b32 v48, v49')
    a('v_max_f32 v48, v48, v49')
    a('v_lshlrev_b32 v11, 2, v224')
    a(f'v_add_u32 v11, {P_ST}, v11')
    a('s_lshl_b32 s70, s3, 7')
    a('v_add_u32 v12, s70, v11')
    a('ds_write_b32 v12, v48')
    a('s_waitcnt lgkmcnt(0)')
    a('s_barrier')
    a('ds_read_b32 v48, v11')
    a('ds_read_b32 v49, v11 offset:128')
    a('ds_read_b32 v50, v11 offset:256')
    a('ds_read_b32 v51, v11 offset:384')
    a('s_waitcnt lgkmcnt(0)')
    a('v_max3_f32 v48, v48, v49, v50')
    a('v_max_f32 v48, v48, v51')
    a('s_mov_b32 s70, 0x3fb8aa3b')
    a('v_mul_f32 v49, s70, v48')
    for i in range(16):
        a(f'v_fma_f32 v{32+i}, v{32+i}, s70, -v49')
        a(f'v_exp_f32 v{32+i}, v{32+i}')
    a('s_nop 0')
    a('v_add_f32 v50, v32, v33')
    for i in range(2, 16):
        a(f'v_add_f32 v50, v50, v{32+i}')
    a('v_mov_b32 v51, v50')
    a('s_nop 1')
    a('v_permlane32_swap_b32 v50, v51')
    a('v_add_f32 v50, v50, v51')
    a('ds_write_b32 v12, v50 offset:512')
    for i in range(8):
        a(f'v_cvt_pk_bf16_f32 v{52+i}, v{32+2*i}, v{33+2*i}')
    a('s_lshl_b32 s70, s3, 11')
    a(f's_add_u32 s70, s70, {P_P}')
    a('v_add_u32 v14, s70, v30')
    a('ds_write_b128 v14, v[52:55]')
    a('ds_write_b128 v14, v[56:59] offset:1024')
    a('s_waitcnt lgkmcnt(0)')
    a('s_barrier')
    a('ds_read_b32 v50, v11 offset:512')
    a('ds_read_b32 v51, v11 offset:640')
    a('ds_read_b32 v52, v11 offset:768')
    a('ds_read_b32 v53, v11 offset:896')
    a(f'v_add_u32 v14, {P_P}, v30')
    for u in range(8):
        a(f'ds_read_b128 v[{128+4*u}:{131+4*u}], v14 offset:{u*1024}')
    def trrd(u, t, buf):
        off = (u & 3) * 16384
        return [f'ds_read_b64_tr_b16 v[{buf}:{buf+1}], v{160+2*t} offset:{off}',
                f'ds_read_b64_tr_b16 v[{buf+2}:{buf+3}], v{161+2*t} offset:{off}']
    seq = [(u, t) for u in range(8) for t in range(4)]
    bufs = [168, 172, 176, 180]
    def issue(idx):
        u, t = seq[idx]
        if u == 4 and t == 0:
            for r in range(160, 168):
                a(f'v_add_u32 v{r}, 0x10000, v{r}')
        for s in trrd(u, t, bufs[idx & 3]):
            a(s)
    for idx in range(3):
        issue(idx)
    a('s_waitcnt lgkmcnt(6)')
    a('v_add_f32 v50, v50, v51')
    a('v_add_f32 v52, v52, v53')
    a('v_add_f32 v49, v50, v52')
    a('v_mov_b32 v230, v48')
    a('v_mov_b32 v231, v49')
    for idx in range(32):
        u, t = seq[idx]
        if idx + 3 < 32:
            issue(idx + 3)
            a('s_waitcnt lgkmcnt(6)')
        else:
            a(f's_waitcnt lgkmcnt({2*(31-idx)})')
        b = bufs[idx & 3]
        a(f'v_mfma_f32_32x32x16_bf16 v[{64+16*t}:{79+16*t}], v[{b}:{b+3}], v[{128+4*u}:{131+4*u}], v[{64+16*t}:{79+16*t}]')
    a('s_barrier')
    stamp(a, 4)
    a('v_and_b32 v9, 7, v224')
    a('v_lshlrev_b32 v10, 3, v225')
    a('s_lshl_b32 s70, s3, 4')
    a('v_add_u32 v10, s70, v10')
    a('v_lshlrev_b32 v11, 10, v224')
    a.nop(6)
    for t in range(4):
        for i in range(8):
            a(f'v_cvt_pk_bf16_f32 v{128+8*t+i}, v{64+16*t+2*i}, v{65+16*t+2*i}')
        for i in range(2):
            a(f'v_xor_b32 v14, {2*t+i}, v9')
            a('v_add_u32 v14, v14, v10')
            a('v_lshl_add_u32 v14, v14, 4, v11')
            a(f'ds_write_b128 v14, v[{128+8*t+4*i}:{131+8*t+4*i}]')
    a('s_waitcnt vmcnt(0)')
    a('s_cmp_ge_u32 s2, 172')
    a('s_cbranch_scc1 KP_FPOK')
    tag_check(a, [(232,None),(236,None),(240,None),(244,None)], 22, 23, 249)
    a('s_nop 3')
    a('s_cmp_eq_u64 vcc, 0')
    a('s_cbranch_scc1 KP_FPOK')
    def issue_fp():
        a('s_mov_b32 s70, s82')
        for i in range(4):
            a(f'buffer_load_dwordx4 v[{232+4*i}:{235+4*i}], v229, s[40:43], s70 offen sc1')
            a('s_add_u32 s70, s70, 45056')
    poll_tag(a, issue_fp, [(232,None),(236,None),(240,None),(244,None)])
    a.label('KP_FPOK')
    a('v_lshl_add_u32 v14, v4, 8, v13')
    a('s_and_b32 s70, s3, 1')
    a('s_lshl_b32 s70, s70, 7')
    a('v_xor_b32 v14, s70, v14')
    a('s_lshl_b32 s70, s3, 11')
    a(f's_add_u32 s70, s70, {F_WD}')
    a('v_add_u32 v14, s70, v14')
    a('ds_write_b128 v14, v[184:187]')
    a('ds_write_b128 v14, v[188:191] offset:1024')
    for e in range(4):
        a(f'v_add_f32 v{232+e}, v{232+e}, v{236+e}')
        a(f'v_add_f32 v{240+e}, v{240+e}, v{244+e}')
        a(f'v_add_f32 v{232+e}, v{232+e}, v{240+e}')
    a('v_lshlrev_b32 v21, 4, v0')
    a(f'v_add_u32 v21, {F_FS}, v21')
    a('ds_write_b128 v21, v[232:235]')
    a('v_lshl_add_u32 v14, v4, 8, v13')
    a('s_lshl_b32 s70, s3, 12')
    a(f's_add_u32 s70, s70, {D_WUV}')
    a('v_add_u32 v14, s70, v14')
    a('v_xor_b32 v15, 128, v14')
    for i in range(4):
        a(f'ds_write_b128 v{14 + ((i >> 1) & 1)}, v[{192+4*i}:{195+4*i}] offset:{i*1024}')
    a('v_lshrrev_b32 v14, 1, v8')
    a('v_and_b32 v14, 1, v14')
    a('v_lshlrev_b32 v14, 1, v14')
    a('v_xor_b32 v14, v14, v5')
    a('v_lshlrev_b32 v14, 4, v14')
    a('v_lshl_add_u32 v14, v8, 7, v14')
    a('s_lshl_b32 s70, s3, 12')
    a(f's_add_u32 s70, s70, {D_WO}')
    a('v_add_u32 v14, s70, v14')
    a('v_xor_b32 v15, 64, v14')
    for i in range(4):
        a(f'ds_write_b128 v{14 + (i & 1)}, v[{208+4*i}:{211+4*i}] offset:{i*1024}')
    a('s_waitcnt lgkmcnt(0)')
    a('s_barrier')
    a('s_lshl_b32 s70, s3, 13')
    a('s_lshl_b32 s71, s2, 15')
    a('s_add_u32 s71, s71, s70')
    for i in range(8):
        a(f'v_xor_b32 v14, {i << 4}, v30')
        a('v_add_u32 v14, s70, v14')
        a(f'ds_read_b128 v[{128+4*i}:{131+4*i}], v14 offset:{i*1024}')
    for i in range(8):
        a(f's_waitcnt lgkmcnt({7-i})')
        a(f'buffer_store_dwordx4 v[{128+4*i}:{131+4*i}], v30, s[64:67], s71 offen sc1')
        a('s_add_u32 s71, s71, 1024')
    a('s_waitcnt vmcnt(0)')
    a('s_barrier')
    a('s_cmp_lg_u32 s3, 0')
    a('s_cbranch_scc1 KP_NOST')
    a('v_lshlrev_b32 v14, 12, v224')
    a('s_lshl_b32 s70, s2, 4')
    a('v_mov_b32 v232, s100')
    a('v_mov_b32 v233, s100')
    a('s_mov_b64 exec, 0xffffffff')
    a('buffer_store_dwordx4 v[230:233], v14, s[60:63], s70 offen sc1')
    a('s_mov_b64 exec, -1')
    a('ds_read_b128 v[96:99], v21')
    a('ds_read_b128 v[100:103], v21 offset:1024')
    a('ds_read_b128 v[104:107], v21 offset:2048')
    a('ds_read_b128 v[108:111], v21 offset:3072')
    a('s_waitcnt lgkmcnt(0)')
    for e in range(4):
        a(f'v_add_f32 v{96+e}, v{96+e}, v{104+e}')
        a(f'v_add_f32 v{100+e}, v{100+e}, v{108+e}')
    bf16_round_pair(a, 96, 97, 96, 97, 23)
    bf16_round_pair(a, 98, 99, 98, 99, 23)
    bf16_round_pair(a, 100, 101, 100, 101, 23)
    bf16_round_pair(a, 102, 103, 102, 103, 23)
    gelu4(a, [96, 97, 98, 99], 23)
    bf16_round_pair(a, 96, 97, 96, 97, 23)
    bf16_round_pair(a, 98, 99, 98, 99, 23)
    for e in range(4):
        a(f'v_mul_f32 v{96+e}, v{96+e}, v{100+e}')
    a('v_cvt_pk_bf16_f32 v104, v96, v97')
    a('v_cvt_pk_bf16_f32 v105, v98, v99')
    a('s_mov_b32 s70, 288')
    a('v_mul_lo_u32 v22, v8, s70')
    a('v_lshl_add_u32 v22, v5, 3, v22')
    a(f'v_add_u32 v22, {F_HB}, v22')
    a('ds_write_b64 v22, v[104:105]')
    a.label('KP_NOST')
    stamp(a, 5)
    a('s_waitcnt lgkmcnt(0)')
    a('s_barrier')
    a(f'v_add_u32 v22, {F_HB}, v16')
    a('ds_read_b128 v[32:35], v22')
    a(f'v_add_u32 v22, {F_WD}, v26')
    a(f'v_add_u32 v23, {F_WD}, v27')
    for tl in range(2):
        r = 64 + 4 * tl
        a(f'ds_read_b64_tr_b16 v[{r}:{r+1}], v{22+tl}')
        a(f'ds_read_b64_tr_b16 v[{r+2}:{r+3}], v{22+tl} offset:1024')
    for r in range(72, 80):
        a(f'v_mov_b32 v{r}, 0')
    a('s_lshl_b32 s70, s74, 14')
    a('s_lshl_b32 s71, s75, 9')
    a('s_add_u32 s70, s70, s71')
    a('s_lshl_b32 s71, s3, 7')
    a('s_add_u32 s70, s70, s71')
    a('s_cmp_ge_u32 s2, 172')
    a('s_cselect_b32 s70, 0x40000000, s70')
    a('s_waitcnt lgkmcnt(0)')
    for tl in range(2):
        r = 64 + 4 * tl
        a(f'v_mfma_f32_16x16x32_bf16 v[{72+4*tl}:{75+4*tl}], v[{r}:{r+3}], v[32:35], v[{72+4*tl}:{75+4*tl}]')
    a.nop(10)
    tag4(a, 72); tag4(a, 76)
    a('buffer_store_dwordx4 v[72:75], v29, s[56:59], s70 offen sc1')
    a('buffer_store_dwordx4 v[76:79], v29, s[56:59], s70 offen offset:64 sc1')
    srd(a, 48, 18, 1048576, WS_CTXP)
    srd(a, 40, 18, 524288, WS_ATTP)
    a('v_lshlrev_b32 v9, 4, v0')
    a('v_lshlrev_b32 v10, 20, v8')
    a('v_lshl_add_u32 v10, v5, 4, v10')
    def issue_S():
        a('s_lshl_b32 s70, s73, 12')
        a('buffer_load_dwordx4 v[32:35], v9, s[60:63], s70 offen sc1')
    poll_gen(a, issue_S, lambda: a('v_cmp_ne_u32 vcc, s100, v34'))
    a('s_barrier')
    a('s_lshl_b32 s70, s3, 18')
    a('s_lshl_b32 s71, s73, 10')
    a('s_add_u32 s70, s70, s71')
    a('s_lshl_b32 s71, s68, 7')
    a('s_add_u32 s70, s70, s71')
    for i in range(8):
        a(f'buffer_load_dwordx4 v[{64+4*i}:{67+4*i}], v10, s[64:67], s70 offen sc1')
        a('s_add_u32 s70, s70, 32768')
    stamp(a, 6)
    a('v_mov_b32 v34, v32')
    swz_reduce32(a, 34, 35, 'v_max_f32')
    a('v_sub_f32 v34, v32, v34')
    a('v_mul_f32 v34, 0x3fb8aa3b, v34')
    a('v_exp_f32 v34, v34')
    a('s_nop 0')
    a('v_mul_f32 v36, v34, v33')
    swz_reduce32(a, 36, 35, 'v_add_f32')
    a('v_rcp_f32 v36, v36')
    a('s_nop 0')
    a('v_mul_f32 v34, v34, v36')
    a('v_lshlrev_b32 v35, 2, v0')
    a(f'ds_write_b32 v35, v34 offset:{D_AL}')
    a('s_waitcnt lgkmcnt(0)')
    a('s_barrier')
    a('v_lshlrev_b32 v35, 7, v8')
    a('s_lshl_b32 s70, s3, 5')
    a('v_add_u32 v35, s70, v35')
    a(f'ds_read_b128 v[36:39], v35 offset:{D_AL}')
    a(f'ds_read_b128 v[40:43], v35 offset:{D_AL+16}')
    for r in range(48, 56):
        a(f'v_mov_b32 v{r}, 0')
    a('s_waitcnt lgkmcnt(0)')
    for i in range(8):
        a(f's_waitcnt vmcnt({7-i})')
        for e in range(4):
            a(f'v_lshlrev_b32 v22, 16, v{64+4*i+e}')
            a(f'v_and_b32 v23, 0xffff0000, v{64+4*i+e}')
            a(f'v_fmac_f32 v{48+2*e}, v22, v{36+i}')
            a(f'v_fmac_f32 v{49+2*e}, v23, v{36+i}')
    stamp(a, 10)
    a('v_lshlrev_b32 v35, 5, v0')
    a(f'ds_write_b128 v35, v[48:51] offset:{D_CB}')
    a(f'ds_write_b128 v35, v[52:55] offset:{D_CB+16}')
    a('s_waitcnt lgkmcnt(0)')
    a('s_barrier')
    a('s_cmp_lg_u32 s3, 0')
    a('s_cbranch_scc1 KP_NOSUM')
    for w in range(1, 4):
        a(f'ds_read_b128 v[{56+8*(w-1)}:{59+8*(w-1)}], v35 offset:{D_CB+w*2048}')
        a(f'ds_read_b128 v[{60+8*(w-1)}:{63+8*(w-1)}], v35 offset:{D_CB+w*2048+16}')
    a('s_waitcnt lgkmcnt(0)')
    for e in range(8):
        a(f'v_add_f32 v{48+e}, v{48+e}, v{56+e}')
        a(f'v_add_f32 v{64+e}, v{64+e}, v{72+e}')
        a(f'v_add_f32 v{48+e}, v{48+e}, v{64+e}')
    for e in range(4):
        a(f'v_cvt_pk_bf16_f32 v{56+e}, v{48+2*e}, v{49+2*e}')
    a('s_mov_b32 s70, 160')
    a('v_mul_lo_u32 v35, v8, s70')
    a('v_lshl_add_u32 v35, v5, 4, v35')
    a(f'ds_write_b128 v35, v[56:59] offset:{D_OC}')
    a.label('KP_NOSUM')
    a('s_mov_b32 s70, 160')
    a('v_mul_lo_u32 v24, v5, s70')
    a('v_lshl_add_u32 v24, v4, 4, v24')
    for r in range(96, 104):
        a(f'v_mov_b32 v{r}, 0')
    a('v_lshlrev_b32 v28, 9, v5')
    a('v_lshl_add_u32 v28, v4, 4, v28')
    a('s_lshl_b32 s70, s2, 12')
    a('s_lshl_b32 s71, s3, 7')
    a('s_add_u32 s70, s70, s71')
    a('s_waitcnt lgkmcnt(0)')
    a('s_barrier')
    for ks in range(2):
        a(f'ds_read_b128 v[{32+4*ks}:{35+4*ks}], v24 offset:{D_OC+ks*64}')
        for tl in range(2):
            r = 64 + 8 * ks + 4 * tl
            a(f'ds_read_b64_tr_b16 v[{r}:{r+1}], v{26+tl} offset:{D_WUV+ks*8192}')
            a(f'ds_read_b64_tr_b16 v[{r+2}:{r+3}], v{26+tl} offset:{D_WUV+ks*8192+1024}')
    a('s_waitcnt lgkmcnt(0)')
    for ks in range(2):
        for tl in range(2):
            r = 64 + 8 * ks + 4 * tl
            a(f'v_mfma_f32_16x16x32_bf16 v[{96+4*tl}:{99+4*tl}], v[{r}:{r+3}], v[{32+4*ks}:{35+4*ks}], v[{96+4*tl}:{99+4*tl}]')
    a.nop(10)
    tag4(a, 96); tag4(a, 100)
    a('buffer_store_dwordx4 v[96:99], v28, s[48:51], s70 offen sc1')
    a('buffer_store_dwordx4 v[100:103], v28, s[48:51], s70 offen offset:64 sc1')
    stamp(a, 11)
    a('s_lshl_b32 s69, s3, 1')
    tr_base_p128(a, 26, 27, D_WO, 69)
    def issue_ctx():
        a('s_lshl_b32 s70, s73, 15')
        for m in range(8):
            a(f'buffer_load_dwordx4 v[{64+4*m}:{67+4*m}], v19, s[48:51], s70 offen sc1')
            a('s_add_u32 s70, s70, 4096')
    poll_tag(a, issue_ctx, [(64+4*m,None) for m in range(8)])
    stamp(a, 7)
    for e in range(4):
        a(f'v_add_f32 v{64+e}, v{64+e}, v{68+e}')
        a(f'v_add_f32 v{72+e}, v{72+e}, v{76+e}')
        a(f'v_add_f32 v{80+e}, v{80+e}, v{84+e}')
        a(f'v_add_f32 v{88+e}, v{88+e}, v{92+e}')
        a(f'v_add_f32 v{64+e}, v{64+e}, v{72+e}')
        a(f'v_add_f32 v{80+e}, v{80+e}, v{88+e}')
        a(f'v_add_f32 v{64+e}, v{64+e}, v{80+e}')
    a('v_cvt_pk_bf16_f32 v68, v64, v65')
    a('v_cvt_pk_bf16_f32 v69, v66, v67')
    a(f'ds_write_b64 v20, v[68:69] offset:{D_CX}')
    for r in range(56, 60):
        a(f'v_mov_b32 v{r}, 0')
    a('s_lshl_b32 s70, s73, 14')
    a('s_lshl_b32 s71, s68, 8')
    a('s_add_u32 s70, s70, s71')
    a('s_lshl_b32 s71, s3, 6')
    a('s_add_u32 s70, s70, s71')
    a('s_waitcnt lgkmcnt(0)')
    a('s_barrier')
    for ks in range(4):
        a(f'ds_read_b128 v[{32+4*ks}:{35+4*ks}], v16 offset:{D_CX+ks*64}')
        a(f'ds_read_b64_tr_b16 v[{64+4*ks}:{65+4*ks}], v26 offset:{ks*4096}')
        a(f'ds_read_b64_tr_b16 v[{66+4*ks}:{67+4*ks}], v26 offset:{ks*4096+512}')
    for ks in range(4):
        a(f's_waitcnt lgkmcnt({12-3*(ks+1)})')
        a(f'v_mfma_f32_16x16x32_bf16 v[56:59], v[{64+4*ks}:{67+4*ks}], v[{32+4*ks}:{35+4*ks}], v[56:59]')
    a.nop(10)
    tag4(a, 56)
    a('buffer_store_dwordx4 v[56:59], v29, s[40:43], s70 offen sc1')
    stamp(a, 12)
    srd(a, 20, 4, 8192)
    srd(a, 28, 16, 8192)
    a('v_and_b32 v9, 3, v0')
    a('v_lshrrev_b32 v10, 2, v0')
    a('v_lshlrev_b32 v11, 14, v10')
    a('v_lshl_add_u32 v11, v9, 4, v11')
    a('v_lshlrev_b32 v12, 1, v0')
    a('s_lshl_b32 s69, s2, 5')
    a('buffer_load_ushort v40, v12, s[20:23], s69 offen')
    def issue_fin():
        a('s_lshl_b32 s70, s2, 6')
        a('buffer_load_dwordx4 v[64:67], v11, s[40:43], s70 offen sc1')
        a('buffer_load_dwordx4 v[68:71], v11, s[56:59], s70 offen sc1')
    a('v_cmp_gt_u32 s[76:77], 32, v10')
    a('v_cmp_gt_u32 s[78:79], 43, v10')
    a('s_nop 1')
    poll_tag(a, issue_fin, [(64,76),(68,78)])
    stamp(a, 13)
    a('v_lshlrev_b32 v14, 4, v0')
    a(f'v_add_u32 v14, {D_FA}, v14')
    a('ds_write_b128 v14, v[64:67]')
    a('ds_write_b128 v14, v[68:71] offset:4096')
    a('s_waitcnt lgkmcnt(0)')
    a('s_barrier')
    a('v_cmp_gt_u32 vcc, 16, v0')
    a('s_and_saveexec_b64 s[80:81], vcc')
    a('s_cbranch_execz KP_FIN')
    a('v_lshlrev_b32 v14, 2, v0')
    a(f'v_add_u32 v14, {D_FA}, v14')
    for g in range(32):
        a(f'ds_read_b32 v{64+g}, v14 offset:{g*64}')
    for g in range(43):
        a(f'ds_read_b32 v{128+g}, v14 offset:{4096+g*64}')
    a('s_waitcnt lgkmcnt(0)')
    for step in (16, 8, 4, 2, 1):
        for i in range(step):
            a(f'v_add_f32 v{64+i}, v{64+i}, v{64+i+step}')
    for i in range(11):
        a(f'v_add_f32 v{128+i}, v{128+i}, v{160+i}')
    for step in (16, 8, 4, 2, 1):
        for i in range(step):
            a(f'v_add_f32 v{128+i}, v{128+i}, v{128+i+step}')
    a('v_lshlrev_b32 v40, 16, v40')
    bf16_round_pair(a, 64, 128, 64, 128, 15)
    a('v_add_f32 v64, v64, v40')
    bf16_round_pair(a, 64, 65, 64, 64, 15)
    a('v_add_f32 v64, v64, v128')
    a('v_cvt_pk_bf16_f32 v64, v64, v64')
    a('buffer_store_short v64, v12, s[28:31], s69 offen')
    a.label('KP_FIN')
    a('s_mov_b64 exec, s[80:81]')
    if STAMP:
        stamp(a, 8)
        a('s_cmp_lg_u32 s3, 0')
        a('s_cbranch_scc1 KP_EXIT')
        srd(a, 76, 18, 1 << 20, WS_STAMP)
        a('s_lshl_b32 s80, s2, 7')
        a('v_mov_b32 v250, 0')
        for i in range(6):
            a(f'v_mov_b32 v251, s{84+2*i}')
            a(f'buffer_store_dword v251, v250, s[76:79], s80 offen offset:{4*i}')
    a('s_branch KP_EXIT')

    a.label('KP_LOADER')
    srd_inplace(a, 44, 256)
    a('s_sub_u32 s69, s3, 4')
    a('v_lshlrev_b32 v3, 4, v2')
    a('s_lshl_b32 s70, s2, 17')
    a('s_lshl_b32 s71, s69, 15')
    a('s_add_u32 s70, s70, s71')
    a(f'v_mov_b32 v5, {A_CNT}')
    a('s_mov_b32 s76, 0')
    a('s_barrier')
    a('s_cmp_lg_u32 s69, 3')
    a('s_cbranch_scc1 KP_LROW')
    a('v_mov_b32 v7, 0')
    def issue_n():
        a('buffer_load_dword v6, v7, s[44:47], 0 offen sc1')
    poll_gen(a, issue_n, lambda: a('v_cmp_eq_u32 vcc, 0, v6'), SBSLEEP)
    a('v_or_b32 v6, 1, v6')
    a('ds_write_b32 v5, v6 offset:12')
    a.label('KP_LROW')
    a('s_and_b32 s77, s76, 3')
    a('s_lshl_b32 s77, s77, 2')
    a('s_lshr_b32 s78, s76, 2')
    a('s_and_b32 s78, s78, 3')
    a('s_or_b32 s77, s77, s78')
    a('s_lshl_b32 s77, s77, 4')
    a('v_xor_b32 v4, s77, v3')
    a('s_mov_b32 m0, s71')
    a('s_add_u32 s71, s71, 1024')
    a('buffer_load_dwordx4 v4, s[24:27], s70 offen nt lds')
    a('s_add_u32 s70, s70, 1024')
    a(f's_cmp_ge_u32 s76, {RSW}')
    a('s_cbranch_scc1 KP_LT2')
    a(f's_waitcnt vmcnt({THR1})')
    a.label('KP_LT2')
    a(f's_waitcnt vmcnt({THROTTLE})')
    a('s_add_u32 s76, s76, 1')
    a('s_cmp_lt_u32 s76, 32')
    a('s_cbranch_scc1 KP_LROW')
    a('s_waitcnt vmcnt(0)')
    a('s_barrier')
    a.label('KP_EXIT')
    a('s_endpgm')

def main(out):
    a = Asm()
    a.raw(HDR.rstrip('\n'))
    a.raw(f'; @launch grid=(256,1,1) block=(512,1,1) lds={KP_LDS}')
    a.raw('.amdgcn_target "amdgcn-amd-amdhsa--gfx950"')
    a.raw('.text')
    a.raw(f'.globl {KNAME}')
    a.raw('.p2align 8')
    a.raw(f'.type {KNAME},@function')
    gen_kp(a)
    a.raw('.section .rodata,"a"')
    a.raw('.p2align 6')
    a.raw(kd(KNAME))
    open(out, 'w').write('\n'.join(a.L) + '\n')

if __name__ == '__main__':
    if 'stamp' in sys.argv[2:]: STAMP = True
    if 'head' in sys.argv[2:]: SMAP.clear(); SMAP.update({0:0,21:1,22:2,1:3,2:4,3:5})
    if 'chain' in sys.argv[2:]: SMAP.clear(); SMAP.update({0:0,1:1,30:2,31:3,2:4,3:5})
    if 'tail' in sys.argv[2:]: SMAP.clear(); SMAP.update({0:0,5:1,6:2,7:3,13:4,8:5})
    for x in sys.argv[2:]:
        if x.startswith('thr'): THROTTLE = int(x[3:])
        if x.startswith('slp'): SLEEP = int(x[3:])
        if x == 'pzsc1': PZ_POL = ' sc1'
        if x == 'nosent': SENT = False
        if x.startswith('qpos'): QPOS = int(x[4:])
        if x.startswith('rsw'): RSW = int(x[3:])
        if x.startswith('tha'): THR1 = int(x[3:])
        if x.startswith('sbs'): SBSLEEP = int(x[3:])
        if x == 'late': LATE = True
    main(sys.argv[1] if len(sys.argv) > 1 else 'parallel_sum__compressed_kv_cla__geglu_ffn__decode.s')
```

```python
import sys, math, struct
sys.path.insert(0, 'work')
from gen1 import Asm, srd, HDR, kd, bf16_round_pair, swz_reduce32, fsw
import gen3
from gen3 import f2u, wave_lane, lane_decomp, tr_base_p128, tr_base_p256, ln_issue, ln_compute, gelu4

WS_QPART = 0x0
WS_FFNP = 0x80000
WS_QABS = 0x130000
WS_STATS = WS_QABS + 0x80000
WS_CTXP = WS_STATS + 0x20000
WS_ATTP = WS_CTXP + 0x100000
WS_FFNO = WS_ATTP + 0x80000
WS_FL = WS_FFNO + 43 * 16384
WS_OPART = 0x800000
WS_STAMP = 0xF000000
POLL_LIMIT = 20000
STAMP = False
THROTTLE = 8
PZ_POL = ''
SLEEP = 4
SENT = True
QPOS = 16
RSW = 0
THR1 = 1
SBSLEEP = 8
LATE = False

SMAP = {0:0,1:1,2:2,3:3,5:4,8:5}
def stamp(a, i):
    if STAMP and i in SMAP:
        j = SMAP[i]
        a(f's_memtime s[{84+2*j}:{85+2*j}]')
        a('s_waitcnt lgkmcnt(0)')

uid = [0]
def poll_loads(a, issue_fn, regs, tmpv):
    uid[0] += 1
    n = uid[0]
    a('s_mov_b32 s72, 0')
    a.label(f'PL{n}')
    issue_fn()
    a('s_waitcnt vmcnt(0)')
    r = list(regs)
    a(f'v_max_u32 v{tmpv}, v{r[0]}, v{r[1]}')
    i = 2
    while i < len(r):
        if i + 1 < len(r):
            a(f'v_max3_u32 v{tmpv}, v{tmpv}, v{r[i]}, v{r[i+1]}')
            i += 2
        else:
            a(f'v_max_u32 v{tmpv}, v{tmpv}, v{r[i]}')
            i += 1
    a(f'v_cmp_eq_u32 vcc, -1, v{tmpv}')
    a('s_nop 3')
    a('s_cmp_eq_u64 vcc, 0')
    a(f's_cbranch_scc1 PD{n}')
    a('s_add_u32 s72, s72, 1')
    a(f's_cmp_lt_u32 s72, {POLL_LIMIT}')
    a(f's_cbranch_scc0 PD{n}')
    a(f's_sleep {SLEEP}')
    a(f's_branch PL{n}')
    a.label(f'PD{n}')

def tag4(a, r):
    for i in range(4):
        a(f'v_bfi_b32 v{r+i}, v248, s{96+i}, v{r+i}')

def tag_check(a, quads, acc, t1, t2):
    a(f'v_mov_b32 v{acc}, 0')
    for base, mask in quads:
        if mask is None:
            for i in (0, 2):
                a(f'v_xor_b32 v{t1}, s{96+i}, v{base+i}')
                a(f'v_xor_b32 v{t2}, s{97+i}, v{base+i+1}')
                a(f'v_or3_b32 v{acc}, v{acc}, v{t1}, v{t2}')
        else:
            a(f'v_xor_b32 v{t1}, s96, v{base}')
            a(f'v_xor_b32 v{t2}, s97, v{base+1}')
            a(f'v_or_b32 v{t1}, v{t1}, v{t2}')
            a(f'v_xor_b32 v{t2}, s98, v{base+2}')
            a(f'v_or_b32 v{t1}, v{t1}, v{t2}')
            a(f'v_xor_b32 v{t2}, s99, v{base+3}')
            a(f'v_or_b32 v{t1}, v{t1}, v{t2}')
            a(f'v_cndmask_b32 v{t1}, 0, v{t1}, s[{mask}:{mask+1}]')
            a(f'v_or_b32 v{acc}, v{acc}, v{t1}')
    a(f'v_and_b32 v{acc}, 0xff, v{acc}')
    a(f'v_cmp_ne_u32 vcc, 0, v{acc}')

def poll_gen(a, issue_fn, check_fn, sleep=None):
    uid[0] += 1
    n = uid[0]
    a('s_mov_b32 s72, 0')
    a.label(f'PL{n}')
    issue_fn()
    a('s_waitcnt vmcnt(0)')
    check_fn()
    a('s_nop 3')
    a('s_cmp_eq_u64 vcc, 0')
    a(f's_cbranch_scc1 PD{n}')
    a('s_add_u32 s72, s72, 1')
    a(f's_cmp_lt_u32 s72, {POLL_LIMIT}')
    a(f's_cbranch_scc0 PD{n}')
    a(f's_sleep {SLEEP if sleep is None else sleep}')
    a(f's_branch PL{n}')
    a.label(f'PD{n}')

def poll_tag(a, issue_fn, quads):
    poll_gen(a, issue_fn, lambda: tag_check(a, quads, 22, 23, 249))

def wsync(a, k, vaddr, vone, vtmp):
    uid[0] += 1
    n = uid[0]
    a('s_waitcnt lgkmcnt(0)')
    a('s_mov_b64 exec, 1')
    a(f'ds_add_u32 v{vaddr}, v{vone}')
    a('s_mov_b64 exec, -1')
    a.label(f'WS{n}')
    a(f'ds_read_b32 v{vtmp}, v{vaddr}')
    a('s_waitcnt lgkmcnt(0)')
    a(f'v_readfirstlane_b32 s71, v{vtmp}')
    a('s_nop 3')
    a(f's_cmp_ge_u32 s71, {4*k}')
    a(f's_cbranch_scc0 WS{n}')

K1_WQT = 0
K1_FT = 16384
K1_XNA = 32768
K1_XNF = K1_XNA + 2304
K1_LDS = K1_XNF + 1280

def gen_k1(a):
    a.label('k1_kernel')
    a('s_cmp_ge_u32 s2, 256')
    a('s_cbranch_scc1 K1_EXIT')
    a('s_load_dwordx2 s[4:5], s[0:1], 0')
    a('s_load_dwordx2 s[8:9], s[0:1], 16')
    a('s_load_dwordx4 s[12:15], s[0:1], 56')
    a('s_load_dwordx2 s[18:19], s[0:1], 96')
    wave_lane(a, 3, 2)
    lane_decomp(a)
    a('s_lshr_b32 s73, s2, 3')
    a('s_lshr_b32 s74, s2, 1')
    a('s_and_b32 s74, s74, 3')
    a('s_and_b32 s75, s2, 1')
    a('s_and_b32 s68, s2, 7')
    a('v_lshrrev_b32 v8, 3, v2')
    a('v_lshrrev_b32 v9, 1, v8')
    a('v_and_b32 v9, 1, v9')
    a('v_lshlrev_b32 v9, 1, v9')
    a('v_xor_b32 v9, v9, v5')
    a('v_lshlrev_b32 v9, 4, v9')
    a('v_lshl_add_u32 v10, v8, 13, v9')
    a('v_xor_b32 v11, 64, v10')
    a('s_mov_b32 s70, 2752')
    a('v_mul_lo_u32 v12, v8, s70')
    a('v_add_u32 v13, v12, v9')
    a('v_xor_b32 v9, 64, v9')
    a('v_add_u32 v12, v12, v9')
    for r in range(200, 204):
        a(f'v_mov_b32 v{r}, -1')
    a('v_lshlrev_b32 v21, 4, v2')
    a('s_waitcnt lgkmcnt(0)')
    srd(a, 20, 4, 8192)
    srd(a, 28, 8, 4194304)
    T = 60
    ln_issue(a, 20, 3, T)
    a('s_lshl_b32 s70, s74, 20')
    a('s_lshl_b32 s71, s3, 18')
    a('s_add_u32 s70, s70, s71')
    a('s_lshl_b32 s71, s73, 8')
    a('s_add_u32 s70, s70, s71')
    a('s_lshl_b32 s71, s75, 7')
    a('s_add_u32 s70, s70, s71')
    a('s_lshl_b32 s71, s3, 12')
    for i in range(4):
        a('s_mov_b32 m0, s71')
        a('s_add_u32 s71, s71, 1024')
        a(f'buffer_load_dwordx4 v{10 + (i & 1)}, s[28:31], s70 offen nt lds')
        a('s_add_u32 s70, s70, 65536')
    a('s_cmp_ge_u32 s3, 2')
    a('s_cselect_b32 s76, s14, s12')
    a('s_cselect_b32 s77, s15, s13')
    a('s_and_b32 s77, s77, 0xffff')
    a('s_mov_b32 s78, 1409024')
    a('s_mov_b32 s79, 0x00020000')
    a('s_and_b32 s70, s3, 1')
    a('s_lshl_b32 s70, s70, 5')
    a('s_lshl_b32 s71, s68, 6')
    a('s_add_u32 s70, s70, s71')
    a('s_mul_i32 s70, s70, 2752')
    a('s_lshl_b32 s71, s73, 7')
    a('s_add_u32 s70, s70, s71')
    a('s_cmp_ge_u32 s2, 176')
    a('s_cselect_b32 s70, 0x40000000, s70')
    a('s_lshl_b32 s71, s3, 12')
    a(f's_add_u32 s71, s71, {K1_FT}')
    for i in range(4):
        a('s_mov_b32 m0, s71')
        a('s_add_u32 s71, s71, 1024')
        a(f'buffer_load_dwordx4 v{13 - (i & 1)}, s[76:79], s70 offen nt lds')
        a('s_add_u32 s70, s70, 22016')
    srd(a, 40, 18, PZ_SIZE, PZ)
    a('s_lshl_b32 s70, s2, 2')
    a('s_add_u32 s70, s70, s3')
    a(f's_mul_i32 s70, s70, {PZ_PER_WAVE*1024}')
    for i in range(PZ_PER_WAVE):
        a(f'buffer_store_dwordx4 v[200:203], v21, s[40:43], s70 offen{PZ_POL}')
        a('s_add_u32 s70, s70, 1024')
    NP = PZ_PER_WAVE
    srd(a, 48, 18, 524288, WS_QPART)
    srd(a, 56, 18, 0xB0000, WS_FFNP)
    ln_compute(a, T, 8 + NP)
    a('s_mov_b32 s70, 288')
    a(f'v_mul_lo_u32 v14, v{T}, s70')
    a(f'v_and_b32 v15, 7, v{T+1}')
    a('v_lshl_add_u32 v14, v15, 5, v14')
    a(f'v_lshrrev_b32 v15, 3, v{T+1}')
    a('v_cmp_eq_u32 vcc, s74, v15')
    a('s_and_saveexec_b64 s[80:81], vcc')
    a(f'ds_write_b128 v14, v[{T+4}:{T+7}] offset:{K1_XNA}')
    a(f'ds_write_b128 v14, v[{T+8}:{T+11}] offset:{K1_XNA+16}')
    a('s_mov_b64 exec, s[80:81]')
    a('s_mov_b32 s70, 160')
    a(f'v_mul_lo_u32 v14, v{T}, s70')
    a(f'v_and_b32 v15, 3, v{T+1}')
    a('v_lshl_add_u32 v14, v15, 5, v14')
    a(f'v_lshrrev_b32 v15, 2, v{T+1}')
    a('v_cmp_eq_u32 vcc, s68, v15')
    a('s_and_saveexec_b64 s[80:81], vcc')
    a(f'ds_write_b128 v14, v[{T+4}:{T+7}] offset:{K1_XNF}')
    a(f'ds_write_b128 v14, v[{T+8}:{T+11}] offset:{K1_XNF+16}')
    a('s_mov_b64 exec, s[80:81]')
    a('s_mov_b32 s70, 288')
    a('v_mul_lo_u32 v15, v5, s70')
    a('v_lshl_add_u32 v15, v4, 4, v15')
    a('s_mov_b32 s70, 160')
    a('v_mul_lo_u32 v17, v5, s70')
    a('v_lshl_add_u32 v17, v4, 4, v17')
    a('s_lshl_b32 s69, s3, 1')
    tr_base_p128(a, 18, 19, 0, 69)
    for r in range(24, 36):
        a(f'v_mov_b32 v{r}, 0')
    a('v_lshlrev_b32 v19, 9, v5')
    a('v_lshl_add_u32 v19, v4, 4, v19')
    a('s_lshl_b32 s82, s73, 14')
    a('s_lshl_b32 s71, s74, 12')
    a('s_add_u32 s82, s82, s71')
    a('s_lshl_b32 s71, s75, 8')
    a('s_add_u32 s82, s82, s71')
    a('s_lshl_b32 s71, s3, 6')
    a('s_add_u32 s82, s82, s71')
    a('s_mov_b32 s70, 5632')
    a('v_mul_lo_u32 v20, v5, s70')
    a('v_lshl_add_u32 v20, v4, 4, v20')
    a('s_mul_i32 s83, s68, 45056')
    a('s_lshl_b32 s71, s73, 8')
    a('s_add_u32 s83, s83, s71')
    a('s_lshl_b32 s71, s3, 6')
    a('s_add_u32 s83, s83, s71')
    a('s_cmp_ge_u32 s2, 176')
    a('s_cselect_b32 s83, 0x40000000, s83')
    a(f's_waitcnt vmcnt({4+NP}) lgkmcnt(0)')
    a('s_barrier')
    for ks in range(4):
        a(f'ds_read_b128 v[{36+8*ks}:{39+8*ks}], v15 offset:{K1_XNA+ks*64}')
        a(f'ds_read_b64_tr_b16 v[{40+8*ks}:{41+8*ks}], v18 offset:{K1_WQT+ks*4096}')
        a(f'ds_read_b64_tr_b16 v[{42+8*ks}:{43+8*ks}], v18 offset:{K1_WQT+ks*4096+512}')
    for ks in range(4):
        a(f's_waitcnt lgkmcnt({12-3*(ks+1)})')
        a(f'v_mfma_f32_16x16x32_bf16 v[24:27], v[{40+8*ks}:{43+8*ks}], v[{36+8*ks}:{39+8*ks}], v[24:27]')
    a(f's_waitcnt vmcnt({NP})')
    a.nop(8)
    a('buffer_store_dwordx4 v[24:27], v19, s[48:51], s82 offen')
    a('s_barrier')
    for ks in range(2):
        a(f'ds_read_b128 v[{36+4*ks}:{39+4*ks}], v17 offset:{K1_XNF+ks*64}')
    for mat in range(2):
        for ks in range(2):
            r = 44 + 8 * mat + 4 * ks
            a(f'ds_read_b64_tr_b16 v[{r}:{r+1}], v18 offset:{K1_FT+mat*8192+ks*4096}')
            a(f'ds_read_b64_tr_b16 v[{r+2}:{r+3}], v18 offset:{K1_FT+mat*8192+ks*4096+512}')
    a('s_waitcnt lgkmcnt(0)')
    for mat in range(2):
        for ks in range(2):
            r = 44 + 8 * mat + 4 * ks
            a(f'v_mfma_f32_16x16x32_bf16 v[{28+4*mat}:{31+4*mat}], v[{r}:{r+3}], v[{36+4*ks}:{39+4*ks}], v[{28+4*mat}:{31+4*mat}]')
    a.nop(10)
    a('buffer_store_dwordx4 v[28:31], v20, s[56:59], s83 offen')
    a('s_add_u32 s83, s83, 360448')
    a('buffer_store_dwordx4 v[32:35], v20, s[56:59], s83 offen')
    a.label('K1_EXIT')
    a('s_endpgm')

R0 = 131072
P_QB = R0
P_FS = R0 + 2304
P_HB = P_FS + 4096
P_WD = R0 + 9216
P_P = R0
P_ST = R0 + 8192
D_OT = 0
D_AL = 32768
D_CB = D_AL + 1024
D_OC = D_CB + 8192
D_CX = D_OC + 1280
D_WUV = 46080
D_WO = D_WUV + 16384
D_FA = 81920
F_FS = 90112
F_HB = 94208
F_WD = 97280
KP_LDS = 163840

A_WQT = R0
A_XNA = R0 + 16384
A_XNF = A_XNA + 2304
A_QB = R0 + 20480
A_CNT = R0 + 23552
KNAME = 'parallel_sum__compressed_kv_cla__geglu_ffn__decode_kernel'
def srd_inplace(a, r, nbytes):
    a(f's_and_b32 s{r+1}, s{r+1}, 0xffff')
    a(f's_mov_b32 s{r+2}, {nbytes}')
    a(f's_mov_b32 s{r+3}, 0x00020000')

def gen_kp(a):
    a.label(KNAME)
    a('s_cmp_ge_u32 s2, 256')
    a('s_cbranch_scc1 KP_EXIT')
    stamp(a, 0)
    a('s_load_dwordx4 s[4:7], s[0:1], 0')
    a('s_load_dwordx2 s[28:29], s[0:1], 16')
    a('s_load_dwordx4 s[8:11], s[0:1], 24')
    a('s_load_dwordx2 s[12:13], s[0:1], 40')
    a('s_load_dwordx2 s[36:37], s[0:1], 56')
    a('s_load_dwordx2 s[40:41], s[0:1], 64')
    a('s_load_dwordx2 s[14:15], s[0:1], 72')
    a('s_load_dwordx2 s[16:17], s[0:1], 80')
    a('s_load_dwordx2 s[44:45], s[0:1], 88')
    a('s_load_dwordx2 s[18:19], s[0:1], 96')
    wave_lane(a, 3, 2)
    a('s_waitcnt lgkmcnt(0)')
    srd(a, 24, 6, 33554432)
    a('s_cmp_ge_u32 s3, 4')
    a('s_cbranch_scc1 KP_LOADER')
    a('v_lshlrev_b32 v30, 4, v2')
    a('v_mov_b32 v248, 0xff')
    srd_inplace(a, 44, 256)
    a('s_or_b32 s70, s2, s3')
    a('s_cmp_lg_u32 s70, 0')
    a('s_cbranch_scc1 KP_NONON')
    a('s_memrealtime s[70:71]')
    a('s_waitcnt lgkmcnt(0)')
    a('s_or_b32 s70, s70, 1')
    a('v_mov_b32 v22, s70')
    a('v_mov_b32 v23, 0')
    a('s_mov_b64 exec, 1')
    a('buffer_store_dword v22, v23, s[44:47], 0 offen sc1')
    a('s_mov_b64 exec, -1')
    a.label('KP_NONON')
    srd(a, 20, 4, 8192)
    T = 60
    ln_issue(a, 20, 3, T)
    lane_decomp(a)
    a('s_lshr_b32 s73, s2, 3')
    a('s_and_b32 s68, s2, 7')
    a('s_lshr_b32 s74, s2, 1')
    a('s_and_b32 s74, s74, 3')
    a('s_and_b32 s75, s2, 1')
    a('v_lshrrev_b32 v8, 3, v2')
    srd_inplace(a, 28, 4194304)
    a('v_lshrrev_b32 v9, 1, v8')
    a('v_and_b32 v9, 1, v9')
    a('v_lshlrev_b32 v9, 1, v9')
    a('v_xor_b32 v9, v9, v5')
    a('v_lshlrev_b32 v9, 4, v9')
    a('v_lshl_add_u32 v10, v8, 13, v9')
    a('v_xor_b32 v11, 64, v10')
    a('s_lshl_b32 s70, s74, 20')
    a('s_lshl_b32 s71, s3, 18')
    a('s_add_u32 s70, s70, s71')
    a('s_lshl_b32 s71, s73, 8')
    a('s_add_u32 s70, s70, s71')
    a('s_lshl_b32 s71, s75, 7')
    a('s_add_u32 s70, s70, s71')
    a('s_lshl_b32 s71, s3, 12')
    a(f's_add_u32 s71, s71, {A_WQT}')
    for i in range(4):
        a('s_mov_b32 m0, s71')
        a('s_add_u32 s71, s71, 1024')
        a(f'buffer_load_dwordx4 v{10 + (i & 1)}, s[28:31], s70 offen nt lds')
        a('s_add_u32 s70, s70, 65536')
    srd(a, 32, 8, 4194304)
    a('v_lshlrev_b32 v12, 13, v3')
    a('v_lshl_add_u32 v12, v4, 4, v12')
    a('s_lshl_b32 s70, s68, 19')
    a('s_lshl_b32 s71, s3, 17')
    a('s_add_u32 s70, s70, s71')
    a('s_lshl_b32 s71, s73, 8')
    a('s_add_u32 s70, s70, s71')
    for st in range(4):
        a(f'buffer_load_dwordx4 v[{104+4*st}:{107+4*st}], v12, s[32:35], s70 offen offset:{st*64} nt')
    a('s_cmp_ge_u32 s3, 2')
    a('s_cselect_b32 s76, s40, s36')
    a('s_cselect_b32 s77, s41, s37')
    srd_inplace(a, 76, 1409024)
    a('s_mov_b32 s70, 2752')
    a('v_mul_lo_u32 v14, v8, s70')
    a('v_lshl_add_u32 v14, v5, 4, v14')
    a('s_and_b32 s70, s3, 1')
    a('s_lshl_b32 s70, s70, 5')
    a('s_lshl_b32 s71, s68, 6')
    a('s_add_u32 s70, s70, s71')
    a('s_mul_i32 s70, s70, 2752')
    a('s_lshl_b32 s71, s73, 7')
    a('s_add_u32 s70, s70, s71')
    a('s_cmp_ge_u32 s2, 176')
    a('s_cselect_b32 s70, 0x40000000, s70')
    for i in range(4):
        a(f'buffer_load_dwordx4 v[{120+4*i}:{123+4*i}], v14, s[76:79], s70 offen nt')
        a('s_add_u32 s70, s70, 22016')
    a(f'v_mov_b32 v226, {A_CNT}')
    a('v_mov_b32 v227, 1')
    a('v_mov_b32 v228, 0')
    a('ds_write_b32 v226, v228')
    a('ds_write_b32 v226, v228 offset:4')
    a('ds_write_b32 v226, v228 offset:8')
    a('ds_write_b32 v226, v228 offset:12')
    a('s_waitcnt lgkmcnt(0)')
    a('s_barrier')
    a('v_lshlrev_b32 v13, 1, v4')
    a('v_xor_b32 v13, v13, v3')
    a('v_lshlrev_b32 v13, 4, v13')
    a('v_lshrrev_b32 v22, 5, v0')
    a('v_and_b32 v23, 31, v0')
    a('v_lshlrev_b32 v19, 9, v22')
    a('v_lshl_add_u32 v19, v23, 4, v19')
    a('s_mov_b32 s70, 288')
    a('v_mul_lo_u32 v20, v22, s70')
    a('v_lshl_add_u32 v20, v23, 3, v20')
    a('v_mul_lo_u32 v16, v5, s70')
    a('v_lshl_add_u32 v16, v4, 4, v16')
    a('v_lshlrev_b32 v29, 11, v5')
    a('v_lshl_add_u32 v29, v4, 4, v29')
    ln_compute(a, T, 12)
    a('s_mov_b32 s70, 288')
    a(f'v_mul_lo_u32 v14, v{T}, s70')
    a(f'v_and_b32 v15, 7, v{T+1}')
    a('v_lshl_add_u32 v14, v15, 5, v14')
    a(f'v_add_u32 v14, {A_XNA}, v14')
    a(f'v_lshrrev_b32 v15, 3, v{T+1}')
    a('v_cmp_eq_u32 vcc, s74, v15')
    a('s_and_saveexec_b64 s[80:81], vcc')
    a(f'ds_write_b128 v14, v[{T+4}:{T+7}]')
    a(f'ds_write_b128 v14, v[{T+8}:{T+11}] offset:16')
    a('s_mov_b64 exec, s[80:81]')
    a('s_mov_b32 s70, 160')
    a(f'v_mul_lo_u32 v14, v{T}, s70')
    a(f'v_and_b32 v15, 3, v{T+1}')
    a('v_lshl_add_u32 v14, v15, 5, v14')
    a(f'v_add_u32 v14, {A_XNF}, v14')
    a(f'v_lshrrev_b32 v15, 2, v{T+1}')
    a('v_cmp_eq_u32 vcc, s68, v15')
    a('s_and_saveexec_b64 s[80:81], vcc')
    a(f'ds_write_b128 v14, v[{T+4}:{T+7}]')
    a(f'ds_write_b128 v14, v[{T+8}:{T+11}] offset:16')
    a('s_mov_b64 exec, s[80:81]')
    a(f'v_add_u32 v15, {A_XNA}, v16')
    a('s_mov_b32 s70, 160')
    a('v_mul_lo_u32 v17, v5, s70')
    a('v_lshl_add_u32 v17, v4, 4, v17')
    a(f'v_add_u32 v17, {A_XNF}, v17')
    a('s_lshl_b32 s69, s3, 1')
    tr_base_p128(a, 18, 14, A_WQT, 69)
    for r in range(136, 148):
        a(f'v_mov_b32 v{r}, 0')
    a('s_waitcnt vmcnt(8)')
    wsync(a, 1, 226, 227, 228)
    stamp(a, 21)
    for ks in range(4):
        a(f'ds_read_b128 v[{36+8*ks}:{39+8*ks}], v15 offset:{ks*64}')
        a(f'ds_read_b64_tr_b16 v[{40+8*ks}:{41+8*ks}], v18 offset:{ks*4096}')
        a(f'ds_read_b64_tr_b16 v[{42+8*ks}:{43+8*ks}], v18 offset:{ks*4096+512}')
    for ks in range(4):
        a(f's_waitcnt lgkmcnt({12-3*(ks+1)})')
        a(f'v_mfma_f32_16x16x32_bf16 v[136:139], v[{40+8*ks}:{43+8*ks}], v[{36+8*ks}:{39+8*ks}], v[136:139]')
    a.label('KP_NL')
    a('ds_read_b32 v23, v226 offset:12')
    a('s_waitcnt lgkmcnt(0)')
    a('v_readfirstlane_b32 s100, v23')
    a('s_nop 3')
    a('s_cmp_eq_u32 s100, 0')
    a('s_cbranch_scc1 KP_NL')
    a('s_and_b32 s96, s100, 0xff')
    a('s_lshr_b32 s97, s100, 8')
    a('s_and_b32 s97, s97, 0xff')
    a('s_lshr_b32 s98, s100, 16')
    a('s_and_b32 s98, s98, 0xff')
    a('s_lshr_b32 s99, s100, 24')
    tag4(a, 136)
    stamp(a, 1)
    srd(a, 48, 18, 524288, WS_QPART)
    srd(a, 40, 18, 0xB0000, WS_FFNP)
    a('v_lshlrev_b32 v14, 9, v5')
    a('v_lshl_add_u32 v14, v4, 4, v14')
    a('s_lshl_b32 s70, s73, 14')
    a('s_lshl_b32 s71, s74, 12')
    a('s_add_u32 s70, s70, s71')
    a('s_lshl_b32 s71, s75, 8')
    a('s_add_u32 s70, s70, s71')
    a('s_lshl_b32 s71, s3, 6')
    a('s_add_u32 s70, s70, s71')
    a('buffer_store_dwordx4 v[136:139], v14, s[48:51], s70 offen sc1')
    wsync(a, 2, 226, 227, 228)
    a('v_lshl_add_u32 v22, v8, 7, v9')
    a('s_lshl_b32 s70, s3, 12')
    a(f's_add_u32 s70, s70, {A_WQT}')
    a('v_add_u32 v22, s70, v22')
    a('v_xor_b32 v23, 64, v22')
    a('s_waitcnt vmcnt(1)')
    for i in range(4):
        a(f'ds_write_b128 v{22 + (i & 1)}, v[{120+4*i}:{123+4*i}] offset:{i*1024}')
    wsync(a, 3, 226, 227, 228)
    for ks in range(2):
        a(f'ds_read_b128 v[{36+4*ks}:{39+4*ks}], v17 offset:{ks*64}')
    for mat in range(2):
        for ks in range(2):
            r = 44 + 8 * mat + 4 * ks
            a(f'ds_read_b64_tr_b16 v[{r}:{r+1}], v18 offset:{mat*8192+ks*4096}')
            a(f'ds_read_b64_tr_b16 v[{r+2}:{r+3}], v18 offset:{mat*8192+ks*4096+512}')
    a('s_waitcnt lgkmcnt(0)')
    for mat in range(2):
        for ks in range(2):
            r = 44 + 8 * mat + 4 * ks
            a(f'v_mfma_f32_16x16x32_bf16 v[{140+4*mat}:{143+4*mat}], v[{r}:{r+3}], v[{36+4*ks}:{39+4*ks}], v[{140+4*mat}:{143+4*mat}]')
    stamp(a, 22)
    a.nop(8)
    tag4(a, 140); tag4(a, 144)
    a('s_mov_b32 s70, 5632')
    a('v_mul_lo_u32 v14, v5, s70')
    a('v_lshl_add_u32 v14, v4, 4, v14')
    a('s_mul_i32 s70, s68, 45056')
    a('s_lshl_b32 s71, s73, 8')
    a('s_add_u32 s70, s70, s71')
    a('s_lshl_b32 s71, s3, 6')
    a('s_add_u32 s70, s70, s71')
    a('s_cmp_ge_u32 s2, 176')
    a('s_cselect_b32 s70, 0x40000000, s70')
    a('buffer_store_dwordx4 v[140:143], v14, s[40:43], s70 offen sc1')
    a('s_add_u32 s70, s70, 360448')
    a('buffer_store_dwordx4 v[144:147], v14, s[40:43], s70 offen sc1')
    srd(a, 52, 18, 524288, WS_QABS)
    srd(a, 56, 18, 43 * 16384, WS_FFNO)
    srd(a, 60, 18, 131072, WS_STATS)
    srd(a, 64, 18, 8388608, WS_OPART)
    a('s_lshr_b32 s74, s2, 2')
    a('s_and_b32 s75, s2, 3')
    a(f'v_add_u32 v21, {A_QB}, v20')
    a(f'v_add_u32 v24, {A_QB}, v16')
    a('s_lshl_b32 s69, s3, 2')
    tr_base_p256(a, 26, 28, 0, 69)
    a('s_add_u32 s69, s69, 2')
    tr_base_p256(a, 27, 28, 0, 69)
    def issue_qp():
        a('s_lshl_b32 s70, s73, 14')
        for m in range(4):
            a(f'buffer_load_dwordx4 v[{36+4*m}:{39+4*m}], v19, s[48:51], s70 offen sc1')
            a('s_add_u32 s70, s70, 4096')
    poll_tag(a, issue_qp, [(36,None),(40,None),(44,None),(48,None)])
    stamp(a, 30)
    for e in range(4):
        a(f'v_add_f32 v{36+e}, v{36+e}, v{40+e}')
        a(f'v_add_f32 v{44+e}, v{44+e}, v{48+e}')
        a(f'v_add_f32 v{36+e}, v{36+e}, v{44+e}')
    a('v_cvt_pk_bf16_f32 v40, v36, v37')
    a('v_cvt_pk_bf16_f32 v41, v38, v39')
    a('ds_write_b64 v21, v[40:41]')
    wsync(a, 4, 226, 227, 228)
    for st in range(4):
        a(f'ds_read_b128 v[{36+4*st}:{39+4*st}], v24 offset:{st*64}')
    for r in range(56, 60):
        a(f'v_mov_b32 v{r}, 0')
    a('v_lshlrev_b32 v25, 16, v5')
    a('v_lshl_add_u32 v25, v4, 4, v25')
    a('s_lshl_b32 s70, s73, 11')
    a('s_lshl_b32 s71, s68, 8')
    a('s_add_u32 s70, s70, s71')
    a('s_lshl_b32 s71, s3, 6')
    a('s_add_u32 s70, s70, s71')
    a('s_waitcnt lgkmcnt(0)')
    for st in range(4):
        a(f'v_mfma_f32_16x16x32_bf16 v[56:59], v[{104+4*st}:{107+4*st}], v[{36+4*st}:{39+4*st}], v[56:59]')
    a.nop(10)
    tag4(a, 56)
    a('buffer_store_dwordx4 v[56:59], v25, s[52:55], s70 offen sc1')
    wsync(a, 5, 226, 227, 228)
    stamp(a, 31)
    a('s_mov_b64 exec, 1')
    a('ds_add_u32 v226, v227 offset:4')
    a('s_mov_b64 exec, -1')
    a('s_lshr_b32 s69, s2, 5')
    def issue_sent():
        a('s_lshl_b32 s70, s69, 16')
        a('s_lshl_b32 s71, s3, 14')
        a('s_add_u32 s70, s70, s71')
        a('buffer_load_dwordx4 v[128:131], v30, s[52:55], s70 offen sc1')
        a('buffer_load_dwordx4 v[132:135], v30, s[52:55], s70 offen offset:1024 sc1')
    poll_tag(a, issue_sent, [(128,None),(132,None)])
    def issue_qabs():
        a('s_lshl_b32 s70, s69, 16')
        a('s_lshl_b32 s71, s3, 14')
        a('s_add_u32 s70, s70, s71')
        a('s_add_u32 s70, s70, 2048')
        for i in range(2, 16):
            a(f'buffer_load_dwordx4 v[{128+4*i}:{131+4*i}], v30, s[52:55], s70 offen sc1')
            a('s_add_u32 s70, s70, 1024')
    poll_tag(a, issue_qabs, [(128+4*i,None) for i in range(2, 16)])
    a('s_cmp_lg_u32 s3, 2')
    a('s_cbranch_scc1 KP_NOW2')
    a.label('KP_W2L')
    a('ds_read_b32 v228, v226 offset:4')
    a('s_waitcnt lgkmcnt(0)')
    a('v_readfirstlane_b32 s71, v228')
    a('s_nop 3')
    a('s_cmp_ge_u32 s71, 4')
    a('s_cbranch_scc0 KP_W2L')
    a.label('KP_NOW2')
    a('v_lshrrev_b32 v14, 1, v2')
    a('v_lshlrev_b32 v14, 4, v14')
    a('s_and_b32 s70, s3, 1')
    a('s_lshl_b32 s70, s70, 5')
    a('v_xor_b32 v14, s70, v14')
    a('v_and_b32 v15, 1, v2')
    a('v_lshlrev_b32 v15, 3, v15')
    a('s_lshl_b32 s71, s3, 13')
    a(f's_add_u32 s71, s71, {R0}')
    a('v_add_u32 v15, s71, v15')
    for i in range(8):
        a(f'v_xor_b32 v9, {(((i & 3) << 2) | (i >> 2)) << 4}, v14')
        a('v_add_u32 v9, v9, v15')
        for p in range(2):
            r = 128 + 4 * (2 * i + p)
            a(f'v_cvt_pk_bf16_f32 v{r}, v{r}, v{r+1}')
            a(f'v_cvt_pk_bf16_f32 v{r+1}, v{r+2}, v{r+3}')
            a(f'ds_write_b64 v9, v[{r}:{r+1}] offset:{i*1024+p*512}')
    a('v_lshlrev_b32 v30, 4, v2')
    a('s_lshr_b32 s69, s2, 5')
    stamp(a, 2)
    a('v_and_b32 v224, 31, v2')
    a('v_lshrrev_b32 v225, 5, v2')
    a('v_and_b32 v9, 3, v224')
    a('v_lshlrev_b32 v9, 2, v9')
    a('v_lshrrev_b32 v10, 2, v224')
    a('v_and_b32 v10, 3, v10')
    a('v_or_b32 v9, v9, v10')
    a('v_xor_b32 v9, v9, v225')
    a('v_lshlrev_b32 v10, 10, v224')
    a('s_lshl_b32 s70, s3, 15')
    a('v_add_u32 v11, s70, v10')
    a(f'v_add_u32 v12, {R0}, v10')
    for e in range(8):
        a(f'v_xor_b32 v14, {2*e}, v9')
        a(f'v_lshl_add_u32 v{232+e}, v14, 4, v11')
        a(f'v_lshl_add_u32 v{240+e}, v14, 4, v12')
    for r in range(32, 48):
        a(f'v_mov_b32 v{r}, 0')
    for r in range(80, 128):
        a(f'v_mov_b32 v{r}, 0')
    a('v_and_b32 v9, 1, v4')
    a('v_lshrrev_b32 v10, 1, v7')
    a('v_lshl_add_u32 v10, v9, 1, v10')
    a('v_lshl_add_u32 v11, v225, 2, v6')
    a('v_lshlrev_b32 v11, 10, v11')
    a('s_lshl_b32 s70, s3, 8')
    a('v_add_u32 v11, s70, v11')
    a('v_and_b32 v9, 1, v7')
    a('v_lshl_add_u32 v11, v9, 3, v11')
    for sec in range(2):
        a(f'v_add_u32 v9, {2*sec}, v225')
        a('v_xor_b32 v9, v9, v10')
        for t in range(4):
            a(f'v_xor_b32 v14, {t}, v6')
            a('v_lshl_add_u32 v14, v14, 2, v9')
            a(f'v_lshl_add_u32 v{160+2*t+sec}, v14, 4, v11')
            if sec:
                a(f'v_add_u32 v{160+2*t+sec}, 8192, v{160+2*t+sec}')
    a('s_waitcnt lgkmcnt(0)')
    a('s_barrier')
    stamp(a, 3)
    srd(a, 36, 10, 4194304)
    a('v_lshlrev_b32 v14, 4, v3')
    a('v_lshl_add_u32 v14, v4, 13, v14')
    a('s_lshr_b32 s70, s68, 1')
    a('s_lshl_b32 s70, s70, 7')
    a('s_and_b32 s71, s68, 1')
    a('s_lshl_b32 s71, s71, 2')
    a('s_add_u32 s70, s70, s71')
    a('s_lshl_b32 s71, s3, 5')
    a('s_add_u32 s70, s70, s71')
    a('s_lshl_b32 s70, s70, 13')
    a('s_lshl_b32 s71, s73, 8')
    a('s_add_u32 s70, s70, s71')
    for i in range(4):
        a(f'buffer_load_dwordx4 v[{192+4*i}:{195+4*i}], v14, s[36:39], s70 offen nt')
        a('s_add_u32 s70, s70, 65536')
    srd(a, 44, 12, 4194304)
    a('v_lshlrev_b32 v14, 4, v5')
    a('v_lshl_add_u32 v14, v8, 10, v14')
    a('s_lshl_b32 s70, s73, 17')
    a('s_lshl_b32 s71, s3, 15')
    a('s_add_u32 s70, s70, s71')
    a('s_lshl_b32 s71, s68, 7')
    a('s_add_u32 s70, s70, s71')
    for i in range(4):
        a(f'buffer_load_dwordx4 v[{208+4*i}:{211+4*i}], v14, s[44:47], s70 offen nt')
        a('s_add_u32 s70, s70, 8192')
    def rd(st):
        return [f'ds_read_b128 v[{48+4*(st&3)}:{51+4*(st&3)}], v{232+(st&7)} offset:{(st>>3)*256}',
                f'ds_read_b128 v[{64+4*(st&3)}:{67+4*(st&3)}], v{240+(st&7)} offset:{(st>>3)*256}']
    for st in range(3):
        for s in rd(st): a(s)
    for st in range(32):
        if st + 3 < 32:
            for s in rd(st + 3): a(s)
            a('s_waitcnt lgkmcnt(6)')
        else:
            a(f's_waitcnt lgkmcnt({2*(31-st)})')
        a(f'v_mfma_f32_32x32x16_bf16 v[32:47], v[{48+4*(st&3)}:{51+4*(st&3)}], v[{64+4*(st&3)}:{67+4*(st&3)}], v[32:47]')
    a('s_barrier')
    for r in range(64, 80):
        a(f'v_mov_b32 v{r}, 0')
    srd(a, 40, 18, 0xB0000, WS_FFNP)
    srd(a, 28, 14, 1409024)
    a('s_mov_b32 s70, 5632')
    a('v_mul_lo_u32 v14, v8, s70')
    a('v_lshl_add_u32 v14, v5, 4, v14')
    a('s_and_b32 s70, s3, 1')
    a('s_mul_i32 s70, s70, 360448')
    a('s_lshr_b32 s71, s3, 1')
    a('s_mul_i32 s71, s71, 180224')
    a('s_add_u32 s70, s70, s71')
    a('s_lshl_b32 s71, s74, 7')
    a('s_add_u32 s70, s70, s71')
    a('s_cmp_ge_u32 s2, 172')
    a('s_cselect_b32 s70, 0x40000000, s70')
    a('v_mov_b32 v229, v14')
    a('s_mov_b32 s82, s70')
    for i in range(4):
        a(f'buffer_load_dwordx4 v[{232+4*i}:{235+4*i}], v14, s[40:43], s70 offen sc1')
        a('s_add_u32 s70, s70, 45056')
    a('v_lshlrev_b32 v14, 4, v3')
    a('v_lshl_add_u32 v14, v4, 10, v14')
    a('s_lshl_b32 s70, s74, 15')
    a('s_lshl_b32 s71, s3, 13')
    a('s_add_u32 s70, s70, s71')
    a('s_lshl_b32 s71, s75, 8')
    a('s_add_u32 s70, s70, s71')
    a('s_cmp_ge_u32 s2, 172')
    a('s_cselect_b32 s70, 0x40000000, s70')
    for i in range(2):
        a(f'buffer_load_dwordx4 v[{184+4*i}:{187+4*i}], v14, s[28:31], s70 offen nt')
        a('s_add_u32 s70, s70, 4096')
    a('s_mov_b32 s70, 0x3db504f3')
    for i in range(8):
        bf16_round_pair(a, 32+2*i, 33+2*i, 32+2*i, 33+2*i, 48)
        a(f'v_mul_f32 v{32+2*i}, s70, v{32+2*i}')
        a(f'v_mul_f32 v{33+2*i}, s70, v{33+2*i}')
        bf16_round_pair(a, 32+2*i, 33+2*i, 32+2*i, 33+2*i, 48)
    a('v_max3_f32 v48, v32, v33, v34')
    for i in range(35, 47, 2):
        a(f'v_max3_f32 v48, v48, v{i}, v{i+1}')
    a('v_max_f32 v48, v48, v47')
    a('v_mov_b32 v49, v48')
    a('s_nop 1')
    a('v_permlane32_swap_b32 v48, v49')
    a('v_max_f32 v48, v48, v49')
    a('v_lshlrev_b32 v11, 2, v224')
    a(f'v_add_u32 v11, {P_ST}, v11')
    a('s_lshl_b32 s70, s3, 7')
    a('v_add_u32 v12, s70, v11')
    a('ds_write_b32 v12, v48')
    a('s_waitcnt lgkmcnt(0)')
    a('s_barrier')
    a('ds_read_b32 v48, v11')
    a('ds_read_b32 v49, v11 offset:128')
    a('ds_read_b32 v50, v11 offset:256')
    a('ds_read_b32 v51, v11 offset:384')
    a('s_waitcnt lgkmcnt(0)')
    a('v_max3_f32 v48, v48, v49, v50')
    a('v_max_f32 v48, v48, v51')
    a('s_mov_b32 s70, 0x3fb8aa3b')
    a('v_mul_f32 v49, s70, v48')
    for i in range(16):
        a(f'v_fma_f32 v{32+i}, v{32+i}, s70, -v49')
        a(f'v_exp_f32 v{32+i}, v{32+i}')
    a('s_nop 0')
    a('v_add_f32 v50, v32, v33')
    for i in range(2, 16):
        a(f'v_add_f32 v50, v50, v{32+i}')
    a('v_mov_b32 v51, v50')
    a('s_nop 1')
    a('v_permlane32_swap_b32 v50, v51')
    a('v_add_f32 v50, v50, v51')
    a('ds_write_b32 v12, v50 offset:512')
    for i in range(8):
        a(f'v_cvt_pk_bf16_f32 v{52+i}, v{32+2*i}, v{33+2*i}')
    a('s_lshl_b32 s70, s3, 11')
    a(f's_add_u32 s70, s70, {P_P}')
    a('v_add_u32 v14, s70, v30')
    a('ds_write_b128 v14, v[52:55]')
    a('ds_write_b128 v14, v[56:59] offset:1024')
    a('s_waitcnt lgkmcnt(0)')
    a('s_barrier')
    a('ds_read_b32 v50, v11 offset:512')
    a('ds_read_b32 v51, v11 offset:640')
    a('ds_read_b32 v52, v11 offset:768')
    a('ds_read_b32 v53, v11 offset:896')
    a(f'v_add_u32 v14, {P_P}, v30')
    for u in range(8):
        a(f'ds_read_b128 v[{128+4*u}:{131+4*u}], v14 offset:{u*1024}')
    def trrd(u, t, buf):
        off = (u & 3) * 16384
        return [f'ds_read_b64_tr_b16 v[{buf}:{buf+1}], v{160+2*t} offset:{off}',
                f'ds_read_b64_tr_b16 v[{buf+2}:{buf+3}], v{161+2*t} offset:{off}']
    seq = [(u, t) for u in range(8) for t in range(4)]
    bufs = [168, 172, 176, 180]
    def issue(idx):
        u, t = seq[idx]
        if u == 4 and t == 0:
            for r in range(160, 168):
                a(f'v_add_u32 v{r}, 0x10000, v{r}')
        for s in trrd(u, t, bufs[idx & 3]):
            a(s)
    for idx in range(3):
        issue(idx)
    a('s_waitcnt lgkmcnt(6)')
    a('v_add_f32 v50, v50, v51')
    a('v_add_f32 v52, v52, v53')
    a('v_add_f32 v49, v50, v52')
    a('v_mov_b32 v230, v48')
    a('v_mov_b32 v231, v49')
    for idx in range(32):
        u, t = seq[idx]
        if idx + 3 < 32:
            issue(idx + 3)
            a('s_waitcnt lgkmcnt(6)')
        else:
            a(f's_waitcnt lgkmcnt({2*(31-idx)})')
        b = bufs[idx & 3]
        a(f'v_mfma_f32_32x32x16_bf16 v[{64+16*t}:{79+16*t}], v[{b}:{b+3}], v[{128+4*u}:{131+4*u}], v[{64+16*t}:{79+16*t}]')
    a('s_barrier')
    stamp(a, 4)
    a('v_and_b32 v9, 7, v224')
    a('v_lshlrev_b32 v10, 3, v225')
    a('s_lshl_b32 s70, s3, 4')
    a('v_add_u32 v10, s70, v10')
    a('v_lshlrev_b32 v11, 10, v224')
    a.nop(6)
    for t in range(4):
        for i in range(8):
            a(f'v_cvt_pk_bf16_f32 v{128+8*t+i}, v{64+16*t+2*i}, v{65+16*t+2*i}')
        for i in range(2):
            a(f'v_xor_b32 v14, {2*t+i}, v9')
            a('v_add_u32 v14, v14, v10')
            a('v_lshl_add_u32 v14, v14, 4, v11')
            a(f'ds_write_b128 v14, v[{128+8*t+4*i}:{131+8*t+4*i}]')
    a('s_waitcnt vmcnt(0)')
    a('s_cmp_ge_u32 s2, 172')
    a('s_cbranch_scc1 KP_FPOK')
    tag_check(a, [(232,None),(236,None),(240,None),(244,None)], 22, 23, 249)
    a('s_nop 3')
    a('s_cmp_eq_u64 vcc, 0')
    a('s_cbranch_scc1 KP_FPOK')
    def issue_fp():
        a('s_mov_b32 s70, s82')
        for i in range(4):
            a(f'buffer_load_dwordx4 v[{232+4*i}:{235+4*i}], v229, s[40:43], s70 offen sc1')
            a('s_add_u32 s70, s70, 45056')
    poll_tag(a, issue_fp, [(232,None),(236,None),(240,None),(244,None)])
    a.label('KP_FPOK')
    a('v_lshl_add_u32 v14, v4, 8, v13')
    a('s_and_b32 s70, s3, 1')
    a('s_lshl_b32 s70, s70, 7')
    a('v_xor_b32 v14, s70, v14')
    a('s_lshl_b32 s70, s3, 11')
    a(f's_add_u32 s70, s70, {F_WD}')
    a('v_add_u32 v14, s70, v14')
    a('ds_write_b128 v14, v[184:187]')
    a('ds_write_b128 v14, v[188:191] offset:1024')
    for e in range(4):
        a(f'v_add_f32 v{232+e}, v{232+e}, v{236+e}')
        a(f'v_add_f32 v{240+e}, v{240+e}, v{244+e}')
        a(f'v_add_f32 v{232+e}, v{232+e}, v{240+e}')
    a('v_lshlrev_b32 v21, 4, v0')
    a(f'v_add_u32 v21, {F_FS}, v21')
    a('ds_write_b128 v21, v[232:235]')
    a('v_lshl_add_u32 v14, v4, 8, v13')
    a('s_lshl_b32 s70, s3, 12')
    a(f's_add_u32 s70, s70, {D_WUV}')
    a('v_add_u32 v14, s70, v14')
    a('v_xor_b32 v15, 128, v14')
    for i in range(4):
        a(f'ds_write_b128 v{14 + ((i >> 1) & 1)}, v[{192+4*i}:{195+4*i}] offset:{i*1024}')
    a('v_lshrrev_b32 v14, 1, v8')
    a('v_and_b32 v14, 1, v14')
    a('v_lshlrev_b32 v14, 1, v14')
    a('v_xor_b32 v14, v14, v5')
    a('v_lshlrev_b32 v14, 4, v14')
    a('v_lshl_add_u32 v14, v8, 7, v14')
    a('s_lshl_b32 s70, s3, 12')
    a(f's_add_u32 s70, s70, {D_WO}')
    a('v_add_u32 v14, s70, v14')
    a('v_xor_b32 v15, 64, v14')
    for i in range(4):
        a(f'ds_write_b128 v{14 + (i & 1)}, v[{208+4*i}:{211+4*i}] offset:{i*1024}')
    a('s_waitcnt lgkmcnt(0)')
    a('s_barrier')
    a('s_lshl_b32 s70, s3, 13')
    a('s_lshl_b32 s71, s2, 15')
    a('s_add_u32 s71, s71, s70')
    for i in range(8):
        a(f'v_xor_b32 v14, {i << 4}, v30')
        a('v_add_u32 v14, s70, v14')
        a(f'ds_read_b128 v[{128+4*i}:{131+4*i}], v14 offset:{i*1024}')
    for i in range(8):
        a(f's_waitcnt lgkmcnt({7-i})')
        a(f'buffer_store_dwordx4 v[{128+4*i}:{131+4*i}], v30, s[64:67], s71 offen sc1')
        a('s_add_u32 s71, s71, 1024')
    a('s_waitcnt vmcnt(0)')
    a('s_barrier')
    a('s_cmp_lg_u32 s3, 0')
    a('s_cbranch_scc1 KP_NOST')
    a('v_lshlrev_b32 v14, 12, v224')
    a('s_lshl_b32 s70, s2, 4')
    a('v_mov_b32 v232, s100')
    a('v_mov_b32 v233, s100')
    a('s_mov_b64 exec, 0xffffffff')
    a('buffer_store_dwordx4 v[230:233], v14, s[60:63], s70 offen sc1')
    a('s_mov_b64 exec, -1')
    a('ds_read_b128 v[96:99], v21')
    a('ds_read_b128 v[100:103], v21 offset:1024')
    a('ds_read_b128 v[104:107], v21 offset:2048')
    a('ds_read_b128 v[108:111], v21 offset:3072')
    a('s_waitcnt lgkmcnt(0)')
    for e in range(4):
        a(f'v_add_f32 v{96+e}, v{96+e}, v{104+e}')
        a(f'v_add_f32 v{100+e}, v{100+e}, v{108+e}')
    bf16_round_pair(a, 96, 97, 96, 97, 23)
    bf16_round_pair(a, 98, 99, 98, 99, 23)
    bf16_round_pair(a, 100, 101, 100, 101, 23)
    bf16_round_pair(a, 102, 103, 102, 103, 23)
    gelu4(a, [96, 97, 98, 99], 23)
    bf16_round_pair(a, 96, 97, 96, 97, 23)
    bf16_round_pair(a, 98, 99, 98, 99, 23)
    for e in range(4):
        a(f'v_mul_f32 v{96+e}, v{96+e}, v{100+e}')
    a('v_cvt_pk_bf16_f32 v104, v96, v97')
    a('v_cvt_pk_bf16_f32 v105, v98, v99')
    a('s_mov_b32 s70, 288')
    a('v_mul_lo_u32 v22, v8, s70')
    a('v_lshl_add_u32 v22, v5, 3, v22')
    a(f'v_add_u32 v22, {F_HB}, v22')
    a('ds_write_b64 v22, v[104:105]')
    a.label('KP_NOST')
    stamp(a, 5)
    a('s_waitcnt lgkmcnt(0)')
    a('s_barrier')
    a(f'v_add_u32 v22, {F_HB}, v16')
    a('ds_read_b128 v[32:35], v22')
    a(f'v_add_u32 v22, {F_WD}, v26')
    a(f'v_add_u32 v23, {F_WD}, v27')
    for tl in range(2):
        r = 64 + 4 * tl
        a(f'ds_read_b64_tr_b16 v[{r}:{r+1}], v{22+tl}')
        a(f'ds_read_b64_tr_b16 v[{r+2}:{r+3}], v{22+tl} offset:1024')
    for r in range(72, 80):
        a(f'v_mov_b32 v{r}, 0')
    a('s_lshl_b32 s70, s74, 14')
    a('s_lshl_b32 s71, s75, 9')
    a('s_add_u32 s70, s70, s71')
    a('s_lshl_b32 s71, s3, 7')
    a('s_add_u32 s70, s70, s71')
    a('s_cmp_ge_u32 s2, 172')
    a('s_cselect_b32 s70, 0x40000000, s70')
    a('s_waitcnt lgkmcnt(0)')
    for tl in range(2):
        r = 64 + 4 * tl
        a(f'v_mfma_f32_16x16x32_bf16 v[{72+4*tl}:{75+4*tl}], v[{r}:{r+3}], v[32:35], v[{72+4*tl}:{75+4*tl}]')
    a.nop(10)
    tag4(a, 72); tag4(a, 76)
    a('buffer_store_dwordx4 v[72:75], v29, s[56:59], s70 offen sc1')
    a('buffer_store_dwordx4 v[76:79], v29, s[56:59], s70 offen offset:64 sc1')
    srd(a, 48, 18, 1048576, WS_CTXP)
    srd(a, 40, 18, 524288, WS_ATTP)
    a('v_lshlrev_b32 v9, 4, v0')
    a('v_lshlrev_b32 v10, 20, v8')
    a('v_lshl_add_u32 v10, v5, 4, v10')
    def issue_S():
        a('s_lshl_b32 s70, s73, 12')
        a('buffer_load_dwordx4 v[32:35], v9, s[60:63], s70 offen sc1')
    poll_gen(a, issue_S, lambda: a('v_cmp_ne_u32 vcc, s100, v34'))
    a('s_barrier')
    a('s_lshl_b32 s70, s3, 18')
    a('s_lshl_b32 s71, s73, 10')
    a('s_add_u32 s70, s70, s71')
    a('s_lshl_b32 s71, s68, 7')
    a('s_add_u32 s70, s70, s71')
    for i in range(8):
        a(f'buffer_load_dwordx4 v[{64+4*i}:{67+4*i}], v10, s[64:67], s70 offen sc1')
        a('s_add_u32 s70, s70, 32768')
    stamp(a, 6)
    a('v_mov_b32 v34, v32')
    swz_reduce32(a, 34, 35, 'v_max_f32')
    a('v_sub_f32 v34, v32, v34')
    a('v_mul_f32 v34, 0x3fb8aa3b, v34')
    a('v_exp_f32 v34, v34')
    a('s_nop 0')
    a('v_mul_f32 v36, v34, v33')
    swz_reduce32(a, 36, 35, 'v_add_f32')
    a('v_rcp_f32 v36, v36')
    a('s_nop 0')
    a('v_mul_f32 v34, v34, v36')
    a('v_lshlrev_b32 v35, 2, v0')
    a(f'ds_write_b32 v35, v34 offset:{D_AL}')
    a('s_waitcnt lgkmcnt(0)')
    a('s_barrier')
    a('v_lshlrev_b32 v35, 7, v8')
    a('s_lshl_b32 s70, s3, 5')
    a('v_add_u32 v35, s70, v35')
    a(f'ds_read_b128 v[36:39], v35 offset:{D_AL}')
    a(f'ds_read_b128 v[40:43], v35 offset:{D_AL+16}')
    for r in range(48, 56):
        a(f'v_mov_b32 v{r}, 0')
    a('s_waitcnt lgkmcnt(0)')
    for i in range(8):
        a(f's_waitcnt vmcnt({7-i})')
        for e in range(4):
            a(f'v_lshlrev_b32 v22, 16, v{64+4*i+e}')
            a(f'v_and_b32 v23, 0xffff0000, v{64+4*i+e}')
            a(f'v_fmac_f32 v{48+2*e}, v22, v{36+i}')
            a(f'v_fmac_f32 v{49+2*e}, v23, v{36+i}')
    stamp(a, 10)
    a('v_lshlrev_b32 v35, 5, v0')
    a(f'ds_write_b128 v35, v[48:51] offset:{D_CB}')
    a(f'ds_write_b128 v35, v[52:55] offset:{D_CB+16}')
    a('s_waitcnt lgkmcnt(0)')
    a('s_barrier')
    a('s_cmp_lg_u32 s3, 0')
    a('s_cbranch_scc1 KP_NOSUM')
    for w in range(1, 4):
        a(f'ds_read_b128 v[{56+8*(w-1)}:{59+8*(w-1)}], v35 offset:{D_CB+w*2048}')
        a(f'ds_read_b128 v[{60+8*(w-1)}:{63+8*(w-1)}], v35 offset:{D_CB+w*2048+16}')
    a('s_waitcnt lgkmcnt(0)')
    for e in range(8):
        a(f'v_add_f32 v{48+e}, v{48+e}, v{56+e}')
        a(f'v_add_f32 v{64+e}, v{64+e}, v{72+e}')
        a(f'v_add_f32 v{48+e}, v{48+e}, v{64+e}')
    for e in range(4):
        a(f'v_cvt_pk_bf16_f32 v{56+e}, v{48+2*e}, v{49+2*e}')
    a('s_mov_b32 s70, 160')
    a('v_mul_lo_u32 v35, v8, s70')
    a('v_lshl_add_u32 v35, v5, 4, v35')
    a(f'ds_write_b128 v35, v[56:59] offset:{D_OC}')
    a.label('KP_NOSUM')
    a('s_mov_b32 s70, 160')
    a('v_mul_lo_u32 v24, v5, s70')
    a('v_lshl_add_u32 v24, v4, 4, v24')
    for r in range(96, 104):
        a(f'v_mov_b32 v{r}, 0')
    a('v_lshlrev_b32 v28, 9, v5')
    a('v_lshl_add_u32 v28, v4, 4, v28')
    a('s_lshl_b32 s70, s2, 12')
    a('s_lshl_b32 s71, s3, 7')
    a('s_add_u32 s70, s70, s71')
    a('s_waitcnt lgkmcnt(0)')
    a('s_barrier')
    for ks in range(2):
        a(f'ds_read_b128 v[{32+4*ks}:{35+4*ks}], v24 offset:{D_OC+ks*64}')
        for tl in range(2):
            r = 64 + 8 * ks + 4 * tl
            a(f'ds_read_b64_tr_b16 v[{r}:{r+1}], v{26+tl} offset:{D_WUV+ks*8192}')
            a(f'ds_read_b64_tr_b16 v[{r+2}:{r+3}], v{26+tl} offset:{D_WUV+ks*8192+1024}')
    a('s_waitcnt lgkmcnt(0)')
    for ks in range(2):
        for tl in range(2):
            r = 64 + 8 * ks + 4 * tl
            a(f'v_mfma_f32_16x16x32_bf16 v[{96+4*tl}:{99+4*tl}], v[{r}:{r+3}], v[{32+4*ks}:{35+4*ks}], v[{96+4*tl}:{99+4*tl}]')
    a.nop(10)
    tag4(a, 96); tag4(a, 100)
    a('buffer_store_dwordx4 v[96:99], v28, s[48:51], s70 offen sc1')
    a('buffer_store_dwordx4 v[100:103], v28, s[48:51], s70 offen offset:64 sc1')
    stamp(a, 11)
    a('s_lshl_b32 s69, s3, 1')
    tr_base_p128(a, 26, 27, D_WO, 69)
    def issue_ctx():
        a('s_lshl_b32 s70, s73, 15')
        for m in range(8):
            a(f'buffer_load_dwordx4 v[{64+4*m}:{67+4*m}], v19, s[48:51], s70 offen sc1')
            a('s_add_u32 s70, s70, 4096')
    poll_tag(a, issue_ctx, [(64+4*m,None) for m in range(8)])
    stamp(a, 7)
    for e in range(4):
        a(f'v_add_f32 v{64+e}, v{64+e}, v{68+e}')
        a(f'v_add_f32 v{72+e}, v{72+e}, v{76+e}')
        a(f'v_add_f32 v{80+e}, v{80+e}, v{84+e}')
        a(f'v_add_f32 v{88+e}, v{88+e}, v{92+e}')
        a(f'v_add_f32 v{64+e}, v{64+e}, v{72+e}')
        a(f'v_add_f32 v{80+e}, v{80+e}, v{88+e}')
        a(f'v_add_f32 v{64+e}, v{64+e}, v{80+e}')
    a('v_cvt_pk_bf16_f32 v68, v64, v65')
    a('v_cvt_pk_bf16_f32 v69, v66, v67')
    a(f'ds_write_b64 v20, v[68:69] offset:{D_CX}')
    for r in range(56, 60):
        a(f'v_mov_b32 v{r}, 0')
    a('s_lshl_b32 s70, s73, 14')
    a('s_lshl_b32 s71, s68, 8')
    a('s_add_u32 s70, s70, s71')
    a('s_lshl_b32 s71, s3, 6')
    a('s_add_u32 s70, s70, s71')
    a('s_waitcnt lgkmcnt(0)')
    a('s_barrier')
    for ks in range(4):
        a(f'ds_read_b128 v[{32+4*ks}:{35+4*ks}], v16 offset:{D_CX+ks*64}')
        a(f'ds_read_b64_tr_b16 v[{64+4*ks}:{65+4*ks}], v26 offset:{ks*4096}')
        a(f'ds_read_b64_tr_b16 v[{66+4*ks}:{67+4*ks}], v26 offset:{ks*4096+512}')
    for ks in range(4):
        a(f's_waitcnt lgkmcnt({12-3*(ks+1)})')
        a(f'v_mfma_f32_16x16x32_bf16 v[56:59], v[{64+4*ks}:{67+4*ks}], v[{32+4*ks}:{35+4*ks}], v[56:59]')
    a.nop(10)
    tag4(a, 56)
    a('buffer_store_dwordx4 v[56:59], v29, s[40:43], s70 offen sc1')
    stamp(a, 12)
    srd(a, 20, 4, 8192)
    srd(a, 28, 16, 8192)
    a('v_and_b32 v9, 3, v0')
    a('v_lshrrev_b32 v10, 2, v0')
    a('v_lshlrev_b32 v11, 14, v10')
    a('v_lshl_add_u32 v11, v9, 4, v11')
    a('v_lshlrev_b32 v12, 1, v0')
    a('s_lshl_b32 s69, s2, 5')
    a('buffer_load_ushort v40, v12, s[20:23], s69 offen')
    def issue_fin():
        a('s_lshl_b32 s70, s2, 6')
        a('buffer_load_dwordx4 v[64:67], v11, s[40:43], s70 offen sc1')
        a('buffer_load_dwordx4 v[68:71], v11, s[56:59], s70 offen sc1')
    a('v_cmp_gt_u32 s[76:77], 32, v10')
    a('v_cmp_gt_u32 s[78:79], 43, v10')
    a('s_nop 1')
    poll_tag(a, issue_fin, [(64,76),(68,78)])
    stamp(a, 13)
    a('v_lshlrev_b32 v14, 4, v0')
    a(f'v_add_u32 v14, {D_FA}, v14')
    a('ds_write_b128 v14, v[64:67]')
    a('ds_write_b128 v14, v[68:71] offset:4096')
    a('s_waitcnt lgkmcnt(0)')
    a('s_barrier')
    a('v_cmp_gt_u32 vcc, 16, v0')
    a('s_and_saveexec_b64 s[80:81], vcc')
    a('s_cbranch_execz KP_FIN')
    a('v_lshlrev_b32 v14, 2, v0')
    a(f'v_add_u32 v14, {D_FA}, v14')
    for g in range(32):
        a(f'ds_read_b32 v{64+g}, v14 offset:{g*64}')
    for g in range(43):
        a(f'ds_read_b32 v{128+g}, v14 offset:{4096+g*64}')
    a('s_waitcnt lgkmcnt(0)')
    for step in (16, 8, 4, 2, 1):
        for i in range(step):
            a(f'v_add_f32 v{64+i}, v{64+i}, v{64+i+step}')
    for i in range(11):
        a(f'v_add_f32 v{128+i}, v{128+i}, v{160+i}')
    for step in (16, 8, 4, 2, 1):
        for i in range(step):
            a(f'v_add_f32 v{128+i}, v{128+i}, v{128+i+step}')
    a('v_lshlrev_b32 v40, 16, v40')
    bf16_round_pair(a, 64, 128, 64, 128, 15)
    a('v_add_f32 v64, v64, v40')
    bf16_round_pair(a, 64, 65, 64, 64, 15)
    a('v_add_f32 v64, v64, v128')
    a('v_cvt_pk_bf16_f32 v64, v64, v64')
    a('buffer_store_short v64, v12, s[28:31], s69 offen')
    a.label('KP_FIN')
    a('s_mov_b64 exec, s[80:81]')
    if STAMP:
        stamp(a, 8)
        a('s_cmp_lg_u32 s3, 0')
        a('s_cbranch_scc1 KP_EXIT')
        srd(a, 76, 18, 1 << 20, WS_STAMP)
        a('s_lshl_b32 s80, s2, 7')
        a('v_mov_b32 v250, 0')
        for i in range(6):
            a(f'v_mov_b32 v251, s{84+2*i}')
            a(f'buffer_store_dword v251, v250, s[76:79], s80 offen offset:{4*i}')
    a('s_branch KP_EXIT')

    a.label('KP_LOADER')
    srd_inplace(a, 44, 256)
    a('s_sub_u32 s69, s3, 4')
    a('v_lshlrev_b32 v3, 4, v2')
    a('s_lshl_b32 s70, s2, 17')
    a('s_lshl_b32 s71, s69, 15')
    a('s_add_u32 s70, s70, s71')
    a(f'v_mov_b32 v5, {A_CNT}')
    a('s_mov_b32 s76, 0')
    a('s_barrier')
    a('s_cmp_lg_u32 s69, 3')
    a('s_cbranch_scc1 KP_LROW')
    a('v_mov_b32 v7, 0')
    def issue_n():
        a('buffer_load_dword v6, v7, s[44:47], 0 offen sc1')
    poll_gen(a, issue_n, lambda: a('v_cmp_eq_u32 vcc, 0, v6'), SBSLEEP)
    a('v_or_b32 v6, 1, v6')
    a('ds_write_b32 v5, v6 offset:12')
    a.label('KP_LROW')
    a('s_and_b32 s77, s76, 3')
    a('s_lshl_b32 s77, s77, 2')
    a('s_lshr_b32 s78, s76, 2')
    a('s_and_b32 s78, s78, 3')
    a('s_or_b32 s77, s77, s78')
    a('s_lshl_b32 s77, s77, 4')
    a('v_xor_b32 v4, s77, v3')
    a('s_mov_b32 m0, s71')
    a('s_add_u32 s71, s71, 1024')
    a('buffer_load_dwordx4 v4, s[24:27], s70 offen nt lds')
    a('s_add_u32 s70, s70, 1024')
    a(f's_cmp_ge_u32 s76, {RSW}')
    a('s_cbranch_scc1 KP_LT2')
    a(f's_waitcnt vmcnt({THR1})')
    a.label('KP_LT2')
    a(f's_waitcnt vmcnt({THROTTLE})')
    a('s_add_u32 s76, s76, 1')
    a('s_cmp_lt_u32 s76, 32')
    a('s_cbranch_scc1 KP_LROW')
    a('s_waitcnt vmcnt(0)')
    a('s_barrier')
    a.label('KP_EXIT')
    a('s_endpgm')

def main(out):
    a = Asm()
    a.raw(HDR.rstrip('\n'))
    a.raw(f'; @launch grid=(256,1,1) block=(512,1,1) lds={KP_LDS}')
    a.raw('.amdgcn_target "amdgcn-amd-amdhsa--gfx950"')
    a.raw('.text')
    a.raw(f'.globl {KNAME}')
    a.raw('.p2align 8')
    a.raw(f'.type {KNAME},@function')
    gen_kp(a)
    a.raw('.section .rodata,"a"')
    a.raw('.p2align 6')
    a.raw(kd(KNAME))
    open(out, 'w').write('\n'.join(a.L) + '\n')

if __name__ == '__main__':
    if 'stamp' in sys.argv[2:]: STAMP = True
    if 'head' in sys.argv[2:]: SMAP.clear(); SMAP.update({0:0,21:1,22:2,1:3,2:4,3:5})
    if 'chain' in sys.argv[2:]: SMAP.clear(); SMAP.update({0:0,1:1,30:2,31:3,2:4,3:5})
    if 'tail' in sys.argv[2:]: SMAP.clear(); SMAP.update({0:0,5:1,6:2,7:3,13:4,8:5})
    for x in sys.argv[2:]:
        if x.startswith('thr'): THROTTLE = int(x[3:])
        if x.startswith('slp'): SLEEP = int(x[3:])
        if x == 'pzsc1': PZ_POL = ' sc1'
        if x == 'nosent': SENT = False
        if x.startswith('qpos'): QPOS = int(x[4:])
        if x.startswith('rsw'): RSW = int(x[3:])
        if x.startswith('tha'): THR1 = int(x[3:])
        if x.startswith('sbs'): SBSLEEP = int(x[3:])
        if x == 'late': LATE = True
    main(sys.argv[1] if len(sys.argv) > 1 else 'parallel_sum__compressed_kv_cla__geglu_ffn__decode.s')
```

```python
import sys, math, struct
sys.path.insert(0, 'work')
from gen1 import Asm, srd, HDR, kd, bf16_round_pair, swz_reduce32, fsw
import gen3
from gen3 import f2u, wave_lane, lane_decomp, tr_base_p128, tr_base_p256, ln_issue, ln_compute, gelu4

WS_QPART = 0x0
WS_FFNP = 0x80000
WS_QABS = 0x130000
WS_STATS = WS_QABS + 0x80000
WS_CTXP = WS_STATS + 0x20000
WS_ATTP = WS_CTXP + 0x100000
WS_FFNO = WS_ATTP + 0x80000
WS_FL = WS_FFNO + 43 * 16384
WS_OPART = 0x800000
WS_STAMP = 0xF000000
POLL_LIMIT = 20000
STAMP = False
THROTTLE = 8
PZ_POL = ''
SLEEP = 4
SENT = True
QPOS = 16
RSW = 0
THR1 = 1
SBSLEEP = 8
LATE = False

SMAP = {0:0,1:1,2:2,3:3,5:4,8:5}
def stamp(a, i):
    if STAMP and i in SMAP:
        j = SMAP[i]
        a(f's_memtime s[{84+2*j}:{85+2*j}]')
        a('s_waitcnt lgkmcnt(0)')

uid = [0]
def poll_loads(a, issue_fn, regs, tmpv):
    uid[0] += 1
    n = uid[0]
    a('s_mov_b32 s72, 0')
    a.label(f'PL{n}')
    issue_fn()
    a('s_waitcnt vmcnt(0)')
    r = list(regs)
    a(f'v_max_u32 v{tmpv}, v{r[0]}, v{r[1]}')
    i = 2
    while i < len(r):
        if i + 1 < len(r):
            a(f'v_max3_u32 v{tmpv}, v{tmpv}, v{r[i]}, v{r[i+1]}')
            i += 2
        else:
            a(f'v_max_u32 v{tmpv}, v{tmpv}, v{r[i]}')
            i += 1
    a(f'v_cmp_eq_u32 vcc, -1, v{tmpv}')
    a('s_nop 3')
    a('s_cmp_eq_u64 vcc, 0')
    a(f's_cbranch_scc1 PD{n}')
    a('s_add_u32 s72, s72, 1')
    a(f's_cmp_lt_u32 s72, {POLL_LIMIT}')
    a(f's_cbranch_scc0 PD{n}')
    a(f's_sleep {SLEEP}')
    a(f's_branch PL{n}')
    a.label(f'PD{n}')

def tag4(a, r):
    for i in range(4):
        a(f'v_bfi_b32 v{r+i}, v248, s{96+i}, v{r+i}')

def tag_check(a, quads, acc, t1, t2):
    a(f'v_mov_b32 v{acc}, 0')
    for base, mask in quads:
        if mask is None:
            for i in (0, 2):
                a(f'v_xor_b32 v{t1}, s{96+i}, v{base+i}')
                a(f'v_xor_b32 v{t2}, s{97+i}, v{base+i+1}')
                a(f'v_or3_b32 v{acc}, v{acc}, v{t1}, v{t2}')
        else:
            a(f'v_xor_b32 v{t1}, s96, v{base}')
            a(f'v_xor_b32 v{t2}, s97, v{base+1}')
            a(f'v_or_b32 v{t1}, v{t1}, v{t2}')
            a(f'v_xor_b32 v{t2}, s98, v{base+2}')
            a(f'v_or_b32 v{t1}, v{t1}, v{t2}')
            a(f'v_xor_b32 v{t2}, s99, v{base+3}')
            a(f'v_or_b32 v{t1}, v{t1}, v{t2}')
            a(f'v_cndmask_b32 v{t1}, 0, v{t1}, s[{mask}:{mask+1}]')
            a(f'v_or_b32 v{acc}, v{acc}, v{t1}')
    a(f'v_and_b32 v{acc}, 0xff, v{acc}')
    a(f'v_cmp_ne_u32 vcc, 0, v{acc}')

def poll_gen(a, issue_fn, check_fn, sleep=None):
    uid[0] += 1
    n = uid[0]
    a('s_mov_b32 s72, 0')
    a.label(f'PL{n}')
    issue_fn()
    a('s_waitcnt vmcnt(0)')
    check_fn()
    a('s_nop 3')
    a('s_cmp_eq_u64 vcc, 0')
    a(f's_cbranch_scc1 PD{n}')
    a('s_add_u32 s72, s72, 1')
    a(f's_cmp_lt_u32 s72, {POLL_LIMIT}')
    a(f's_cbranch_scc0 PD{n}')
    a(f's_sleep {SLEEP if sleep is None else sleep}')
    a(f's_branch PL{n}')
    a.label(f'PD{n}')

def untag(a, quads):
    for base, mask in quads:
        for i in range(4):
            a(f'v_and_b32 v{base+i}, 0xffffff00, v{base+i}')

def poll_tag(a, issue_fn, quads, clean=True):
    poll_gen(a, issue_fn, lambda: tag_check(a, quads, 22, 23, 249))
    if clean:
        untag(a, quads)

def wsync(a, k, vaddr, vone, vtmp):
    uid[0] += 1
    n = uid[0]
    a('s_waitcnt lgkmcnt(0)')
    a('s_mov_b64 exec, 1')
    a(f'ds_add_u32 v{vaddr}, v{vone}')
    a('s_mov_b64 exec, -1')
    a.label(f'WS{n}')
    a(f'ds_read_b32 v{vtmp}, v{vaddr}')
    a('s_waitcnt lgkmcnt(0)')
    a(f'v_readfirstlane_b32 s71, v{vtmp}')
    a('s_nop 3')
    a(f's_cmp_ge_u32 s71, {4*k}')
    a(f's_cbranch_scc0 WS{n}')

K1_WQT = 0
K1_FT = 16384
K1_XNA = 32768
K1_XNF = K1_XNA + 2304
K1_LDS = K1_XNF + 1280

def gen_k1(a):
    a.label('k1_kernel')
    a('s_cmp_ge_u32 s2, 256')
    a('s_cbranch_scc1 K1_EXIT')
    a('s_load_dwordx2 s[4:5], s[0:1], 0')
    a('s_load_dwordx2 s[8:9], s[0:1], 16')
    a('s_load_dwordx4 s[12:15], s[0:1], 56')
    a('s_load_dwordx2 s[18:19], s[0:1], 96')
    wave_lane(a, 3, 2)
    lane_decomp(a)
    a('s_lshr_b32 s73, s2, 3')
    a('s_lshr_b32 s74, s2, 1')
    a('s_and_b32 s74, s74, 3')
    a('s_and_b32 s75, s2, 1')
    a('s_and_b32 s68, s2, 7')
    a('v_lshrrev_b32 v8, 3, v2')
    a('v_lshrrev_b32 v9, 1, v8')
    a('v_and_b32 v9, 1, v9')
    a('v_lshlrev_b32 v9, 1, v9')
    a('v_xor_b32 v9, v9, v5')
    a('v_lshlrev_b32 v9, 4, v9')
    a('v_lshl_add_u32 v10, v8, 13, v9')
    a('v_xor_b32 v11, 64, v10')
    a('s_mov_b32 s70, 2752')
    a('v_mul_lo_u32 v12, v8, s70')
    a('v_add_u32 v13, v12, v9')
    a('v_xor_b32 v9, 64, v9')
    a('v_add_u32 v12, v12, v9')
    for r in range(200, 204):
        a(f'v_mov_b32 v{r}, -1')
    a('v_lshlrev_b32 v21, 4, v2')
    a('s_waitcnt lgkmcnt(0)')
    srd(a, 20, 4, 8192)
    srd(a, 28, 8, 4194304)
    T = 60
    ln_issue(a, 20, 3, T)
    a('s_lshl_b32 s70, s74, 20')
    a('s_lshl_b32 s71, s3, 18')
    a('s_add_u32 s70, s70, s71')
    a('s_lshl_b32 s71, s73, 8')
    a('s_add_u32 s70, s70, s71')
    a('s_lshl_b32 s71, s75, 7')
    a('s_add_u32 s70, s70, s71')
    a('s_lshl_b32 s71, s3, 12')
    for i in range(4):
        a('s_mov_b32 m0, s71')
        a('s_add_u32 s71, s71, 1024')
        a(f'buffer_load_dwordx4 v{10 + (i & 1)}, s[28:31], s70 offen nt lds')
        a('s_add_u32 s70, s70, 65536')
    a('s_cmp_ge_u32 s3, 2')
    a('s_cselect_b32 s76, s14, s12')
    a('s_cselect_b32 s77, s15, s13')
    a('s_and_b32 s77, s77, 0xffff')
    a('s_mov_b32 s78, 1409024')
    a('s_mov_b32 s79, 0x00020000')
    a('s_and_b32 s70, s3, 1')
    a('s_lshl_b32 s70, s70, 5')
    a('s_lshl_b32 s71, s68, 6')
    a('s_add_u32 s70, s70, s71')
    a('s_mul_i32 s70, s70, 2752')
    a('s_lshl_b32 s71, s73, 7')
    a('s_add_u32 s70, s70, s71')
    a('s_cmp_ge_u32 s2, 176')
    a('s_cselect_b32 s70, 0x40000000, s70')
    a('s_lshl_b32 s71, s3, 12')
    a(f's_add_u32 s71, s71, {K1_FT}')
    for i in range(4):
        a('s_mov_b32 m0, s71')
        a('s_add_u32 s71, s71, 1024')
        a(f'buffer_load_dwordx4 v{13 - (i & 1)}, s[76:79], s70 offen nt lds')
        a('s_add_u32 s70, s70, 22016')
    srd(a, 40, 18, PZ_SIZE, PZ)
    a('s_lshl_b32 s70, s2, 2')
    a('s_add_u32 s70, s70, s3')
    a(f's_mul_i32 s70, s70, {PZ_PER_WAVE*1024}')
    for i in range(PZ_PER_WAVE):
        a(f'buffer_store_dwordx4 v[200:203], v21, s[40:43], s70 offen{PZ_POL}')
        a('s_add_u32 s70, s70, 1024')
    NP = PZ_PER_WAVE
    srd(a, 48, 18, 524288, WS_QPART)
    srd(a, 56, 18, 0xB0000, WS_FFNP)
    ln_compute(a, T, 8 + NP)
    a('s_mov_b32 s70, 288')
    a(f'v_mul_lo_u32 v14, v{T}, s70')
    a(f'v_and_b32 v15, 7, v{T+1}')
    a('v_lshl_add_u32 v14, v15, 5, v14')
    a(f'v_lshrrev_b32 v15, 3, v{T+1}')
    a('v_cmp_eq_u32 vcc, s74, v15')
    a('s_and_saveexec_b64 s[80:81], vcc')
    a(f'ds_write_b128 v14, v[{T+4}:{T+7}] offset:{K1_XNA}')
    a(f'ds_write_b128 v14, v[{T+8}:{T+11}] offset:{K1_XNA+16}')
    a('s_mov_b64 exec, s[80:81]')
    a('s_mov_b32 s70, 160')
    a(f'v_mul_lo_u32 v14, v{T}, s70')
    a(f'v_and_b32 v15, 3, v{T+1}')
    a('v_lshl_add_u32 v14, v15, 5, v14')
    a(f'v_lshrrev_b32 v15, 2, v{T+1}')
    a('v_cmp_eq_u32 vcc, s68, v15')
    a('s_and_saveexec_b64 s[80:81], vcc')
    a(f'ds_write_b128 v14, v[{T+4}:{T+7}] offset:{K1_XNF}')
    a(f'ds_write_b128 v14, v[{T+8}:{T+11}] offset:{K1_XNF+16}')
    a('s_mov_b64 exec, s[80:81]')
    a('s_mov_b32 s70, 288')
    a('v_mul_lo_u32 v15, v5, s70')
    a('v_lshl_add_u32 v15, v4, 4, v15')
    a('s_mov_b32 s70, 160')
    a('v_mul_lo_u32 v17, v5, s70')
    a('v_lshl_add_u32 v17, v4, 4, v17')
    a('s_lshl_b32 s69, s3, 1')
    tr_base_p128(a, 18, 19, 0, 69)
    for r in range(24, 36):
        a(f'v_mov_b32 v{r}, 0')
    a('v_lshlrev_b32 v19, 9, v5')
    a('v_lshl_add_u32 v19, v4, 4, v19')
    a('s_lshl_b32 s82, s73, 14')
    a('s_lshl_b32 s71, s74, 12')
    a('s_add_u32 s82, s82, s71')
    a('s_lshl_b32 s71, s75, 8')
    a('s_add_u32 s82, s82, s71')
    a('s_lshl_b32 s71, s3, 6')
    a('s_add_u32 s82, s82, s71')
    a('s_mov_b32 s70, 5632')
    a('v_mul_lo_u32 v20, v5, s70')
    a('v_lshl_add_u32 v20, v4, 4, v20')
    a('s_mul_i32 s83, s68, 45056')
    a('s_lshl_b32 s71, s73, 8')
    a('s_add_u32 s83, s83, s71')
    a('s_lshl_b32 s71, s3, 6')
    a('s_add_u32 s83, s83, s71')
    a('s_cmp_ge_u32 s2, 176')
    a('s_cselect_b32 s83, 0x40000000, s83')
    a(f's_waitcnt vmcnt({4+NP}) lgkmcnt(0)')
    a('s_barrier')
    for ks in range(4):
        a(f'ds_read_b128 v[{36+8*ks}:{39+8*ks}], v15 offset:{K1_XNA+ks*64}')
        a(f'ds_read_b64_tr_b16 v[{40+8*ks}:{41+8*ks}], v18 offset:{K1_WQT+ks*4096}')
        a(f'ds_read_b64_tr_b16 v[{42+8*ks}:{43+8*ks}], v18 offset:{K1_WQT+ks*4096+512}')
    for ks in range(4):
        a(f's_waitcnt lgkmcnt({12-3*(ks+1)})')
        a(f'v_mfma_f32_16x16x32_bf16 v[24:27], v[{40+8*ks}:{43+8*ks}], v[{36+8*ks}:{39+8*ks}], v[24:27]')
    a(f's_waitcnt vmcnt({NP})')
    a.nop(8)
    a('buffer_store_dwordx4 v[24:27], v19, s[48:51], s82 offen')
    a('s_barrier')
    for ks in range(2):
        a(f'ds_read_b128 v[{36+4*ks}:{39+4*ks}], v17 offset:{K1_XNF+ks*64}')
    for mat in range(2):
        for ks in range(2):
            r = 44 + 8 * mat + 4 * ks
            a(f'ds_read_b64_tr_b16 v[{r}:{r+1}], v18 offset:{K1_FT+mat*8192+ks*4096}')
            a(f'ds_read_b64_tr_b16 v[{r+2}:{r+3}], v18 offset:{K1_FT+mat*8192+ks*4096+512}')
    a('s_waitcnt lgkmcnt(0)')
    for mat in range(2):
        for ks in range(2):
            r = 44 + 8 * mat + 4 * ks
            a(f'v_mfma_f32_16x16x32_bf16 v[{28+4*mat}:{31+4*mat}], v[{r}:{r+3}], v[{36+4*ks}:{39+4*ks}], v[{28+4*mat}:{31+4*mat}]')
    a.nop(10)
    a('buffer_store_dwordx4 v[28:31], v20, s[56:59], s83 offen')
    a('s_add_u32 s83, s83, 360448')
    a('buffer_store_dwordx4 v[32:35], v20, s[56:59], s83 offen')
    a.label('K1_EXIT')
    a('s_endpgm')

R0 = 131072
P_QB = R0
P_FS = R0 + 2304
P_HB = P_FS + 4096
P_WD = R0 + 9216
P_P = R0
P_ST = R0 + 8192
D_OT = 0
D_AL = 32768
D_CB = D_AL + 1024
D_OC = D_CB + 8192
D_CX = D_OC + 1280
D_WUV = 46080
D_WO = D_WUV + 16384
D_FA = 81920
F_FS = 90112
F_HB = 94208
F_WD = 97280
KP_LDS = 163840

A_WQT = R0
A_XNA = R0 + 16384
A_XNF = A_XNA + 2304
A_QB = R0 + 20480
A_CNT = R0 + 23552
KNAME = 'parallel_sum__compressed_kv_cla__geglu_ffn__decode_kernel'
def srd_inplace(a, r, nbytes):
    a(f's_and_b32 s{r+1}, s{r+1}, 0xffff')
    a(f's_mov_b32 s{r+2}, {nbytes}')
    a(f's_mov_b32 s{r+3}, 0x00020000')

def gen_kp(a):
    a.label(KNAME)
    a('s_cmp_ge_u32 s2, 256')
    a('s_cbranch_scc1 KP_EXIT')
    stamp(a, 0)
    a('s_load_dwordx4 s[4:7], s[0:1], 0')
    a('s_load_dwordx2 s[28:29], s[0:1], 16')
    a('s_load_dwordx4 s[8:11], s[0:1], 24')
    a('s_load_dwordx2 s[12:13], s[0:1], 40')
    a('s_load_dwordx2 s[36:37], s[0:1], 56')
    a('s_load_dwordx2 s[40:41], s[0:1], 64')
    a('s_load_dwordx2 s[14:15], s[0:1], 72')
    a('s_load_dwordx2 s[16:17], s[0:1], 80')
    a('s_load_dwordx2 s[44:45], s[0:1], 88')
    a('s_load_dwordx2 s[18:19], s[0:1], 96')
    wave_lane(a, 3, 2)
    a('s_waitcnt lgkmcnt(0)')
    srd(a, 24, 6, 33554432)
    a('s_cmp_ge_u32 s3, 4')
    a('s_cbranch_scc1 KP_LOADER')
    a('v_lshlrev_b32 v30, 4, v2')
    a('v_mov_b32 v248, 0xff')
    srd_inplace(a, 44, 256)
    a('s_or_b32 s70, s2, s3')
    a('s_cmp_lg_u32 s70, 0')
    a('s_cbranch_scc1 KP_NONON')
    a('s_memrealtime s[70:71]')
    a('s_waitcnt lgkmcnt(0)')
    a('s_or_b32 s70, s70, 1')
    a('v_mov_b32 v22, s70')
    a('v_mov_b32 v23, 0')
    a('s_mov_b64 exec, 1')
    a('buffer_store_dword v22, v23, s[44:47], 0 offen sc1')
    a('s_mov_b64 exec, -1')
    a.label('KP_NONON')
    srd(a, 20, 4, 8192)
    T = 60
    ln_issue(a, 20, 3, T)
    lane_decomp(a)
    a('s_lshr_b32 s73, s2, 3')
    a('s_and_b32 s68, s2, 7')
    a('s_lshr_b32 s74, s2, 1')
    a('s_and_b32 s74, s74, 3')
    a('s_and_b32 s75, s2, 1')
    a('v_lshrrev_b32 v8, 3, v2')
    srd_inplace(a, 28, 4194304)
    a('v_lshrrev_b32 v9, 1, v8')
    a('v_and_b32 v9, 1, v9')
    a('v_lshlrev_b32 v9, 1, v9')
    a('v_xor_b32 v9, v9, v5')
    a('v_lshlrev_b32 v9, 4, v9')
    a('v_lshl_add_u32 v10, v8, 13, v9')
    a('v_xor_b32 v11, 64, v10')
    a('s_lshl_b32 s70, s74, 20')
    a('s_lshl_b32 s71, s3, 18')
    a('s_add_u32 s70, s70, s71')
    a('s_lshl_b32 s71, s73, 8')
    a('s_add_u32 s70, s70, s71')
    a('s_lshl_b32 s71, s75, 7')
    a('s_add_u32 s70, s70, s71')
    a('s_lshl_b32 s71, s3, 12')
    a(f's_add_u32 s71, s71, {A_WQT}')
    for i in range(4):
        a('s_mov_b32 m0, s71')
        a('s_add_u32 s71, s71, 1024')
        a(f'buffer_load_dwordx4 v{10 + (i & 1)}, s[28:31], s70 offen nt lds')
        a('s_add_u32 s70, s70, 65536')
    srd(a, 32, 8, 4194304)
    a('v_lshlrev_b32 v12, 13, v3')
    a('v_lshl_add_u32 v12, v4, 4, v12')
    a('s_lshl_b32 s70, s68, 19')
    a('s_lshl_b32 s71, s3, 17')
    a('s_add_u32 s70, s70, s71')
    a('s_lshl_b32 s71, s73, 8')
    a('s_add_u32 s70, s70, s71')
    for st in range(4):
        a(f'buffer_load_dwordx4 v[{104+4*st}:{107+4*st}], v12, s[32:35], s70 offen offset:{st*64} nt')
    a('s_cmp_ge_u32 s3, 2')
    a('s_cselect_b32 s76, s40, s36')
    a('s_cselect_b32 s77, s41, s37')
    srd_inplace(a, 76, 1409024)
    a('s_mov_b32 s70, 2752')
    a('v_mul_lo_u32 v14, v8, s70')
    a('v_lshl_add_u32 v14, v5, 4, v14')
    a('s_and_b32 s70, s3, 1')
    a('s_lshl_b32 s70, s70, 5')
    a('s_lshl_b32 s71, s68, 6')
    a('s_add_u32 s70, s70, s71')
    a('s_mul_i32 s70, s70, 2752')
    a('s_lshl_b32 s71, s73, 7')
    a('s_add_u32 s70, s70, s71')
    a('s_cmp_ge_u32 s2, 176')
    a('s_cselect_b32 s70, 0x40000000, s70')
    for i in range(4):
        a(f'buffer_load_dwordx4 v[{120+4*i}:{123+4*i}], v14, s[76:79], s70 offen nt')
        a('s_add_u32 s70, s70, 22016')
    a(f'v_mov_b32 v226, {A_CNT}')
    a('v_mov_b32 v227, 1')
    a('v_mov_b32 v228, 0')
    a('ds_write_b32 v226, v228')
    a('ds_write_b32 v226, v228 offset:4')
    a('ds_write_b32 v226, v228 offset:8')
    a('ds_write_b32 v226, v228 offset:12')
    a('s_waitcnt lgkmcnt(0)')
    a('s_barrier')
    a('v_lshlrev_b32 v13, 1, v4')
    a('v_xor_b32 v13, v13, v3')
    a('v_lshlrev_b32 v13, 4, v13')
    a('v_lshrrev_b32 v22, 5, v0')
    a('v_and_b32 v23, 31, v0')
    a('v_lshlrev_b32 v19, 9, v22')
    a('v_lshl_add_u32 v19, v23, 4, v19')
    a('s_mov_b32 s70, 288')
    a('v_mul_lo_u32 v20, v22, s70')
    a('v_lshl_add_u32 v20, v23, 3, v20')
    a('v_mul_lo_u32 v16, v5, s70')
    a('v_lshl_add_u32 v16, v4, 4, v16')
    a('v_lshlrev_b32 v29, 11, v5')
    a('v_lshl_add_u32 v29, v4, 4, v29')
    ln_compute(a, T, 12)
    a('s_mov_b32 s70, 288')
    a(f'v_mul_lo_u32 v14, v{T}, s70')
    a(f'v_and_b32 v15, 7, v{T+1}')
    a('v_lshl_add_u32 v14, v15, 5, v14')
    a(f'v_add_u32 v14, {A_XNA}, v14')
    a(f'v_lshrrev_b32 v15, 3, v{T+1}')
    a('v_cmp_eq_u32 vcc, s74, v15')
    a('s_and_saveexec_b64 s[80:81], vcc')
    a(f'ds_write_b128 v14, v[{T+4}:{T+7}]')
    a(f'ds_write_b128 v14, v[{T+8}:{T+11}] offset:16')
    a('s_mov_b64 exec, s[80:81]')
    a('s_mov_b32 s70, 160')
    a(f'v_mul_lo_u32 v14, v{T}, s70')
    a(f'v_and_b32 v15, 3, v{T+1}')
    a('v_lshl_add_u32 v14, v15, 5, v14')
    a(f'v_add_u32 v14, {A_XNF}, v14')
    a(f'v_lshrrev_b32 v15, 2, v{T+1}')
    a('v_cmp_eq_u32 vcc, s68, v15')
    a('s_and_saveexec_b64 s[80:81], vcc')
    a(f'ds_write_b128 v14, v[{T+4}:{T+7}]')
    a(f'ds_write_b128 v14, v[{T+8}:{T+11}] offset:16')
    a('s_mov_b64 exec, s[80:81]')
    a(f'v_add_u32 v15, {A_XNA}, v16')
    a('s_mov_b32 s70, 160')
    a('v_mul_lo_u32 v17, v5, s70')
    a('v_lshl_add_u32 v17, v4, 4, v17')
    a(f'v_add_u32 v17, {A_XNF}, v17')
    a('s_lshl_b32 s69, s3, 1')
    tr_base_p128(a, 18, 14, A_WQT, 69)
    for r in range(136, 148):
        a(f'v_mov_b32 v{r}, 0')
    a('s_waitcnt vmcnt(8)')
    wsync(a, 1, 226, 227, 228)
    stamp(a, 21)
    for ks in range(4):
        a(f'ds_read_b128 v[{36+8*ks}:{39+8*ks}], v15 offset:{ks*64}')
        a(f'ds_read_b64_tr_b16 v[{40+8*ks}:{41+8*ks}], v18 offset:{ks*4096}')
        a(f'ds_read_b64_tr_b16 v[{42+8*ks}:{43+8*ks}], v18 offset:{ks*4096+512}')
    for ks in range(4):
        a(f's_waitcnt lgkmcnt({12-3*(ks+1)})')
        a(f'v_mfma_f32_16x16x32_bf16 v[136:139], v[{40+8*ks}:{43+8*ks}], v[{36+8*ks}:{39+8*ks}], v[136:139]')
    a.label('KP_NL')
    a('ds_read_b32 v23, v226 offset:12')
    a('s_waitcnt lgkmcnt(0)')
    a('v_readfirstlane_b32 s100, v23')
    a('s_nop 3')
    a('s_cmp_eq_u32 s100, 0')
    a('s_cbranch_scc1 KP_NL')
    a('s_and_b32 s96, s100, 0xff')
    a('s_lshr_b32 s97, s100, 8')
    a('s_and_b32 s97, s97, 0xff')
    a('s_lshr_b32 s98, s100, 16')
    a('s_and_b32 s98, s98, 0xff')
    a('s_lshr_b32 s99, s100, 24')
    tag4(a, 136)
    stamp(a, 1)
    srd(a, 48, 18, 524288, WS_QPART)
    srd(a, 40, 18, 0xB0000, WS_FFNP)
    a('v_lshlrev_b32 v14, 9, v5')
    a('v_lshl_add_u32 v14, v4, 4, v14')
    a('s_lshl_b32 s70, s73, 14')
    a('s_lshl_b32 s71, s74, 12')
    a('s_add_u32 s70, s70, s71')
    a('s_lshl_b32 s71, s75, 8')
    a('s_add_u32 s70, s70, s71')
    a('s_lshl_b32 s71, s3, 6')
    a('s_add_u32 s70, s70, s71')
    a('buffer_store_dwordx4 v[136:139], v14, s[48:51], s70 offen sc1')
    wsync(a, 2, 226, 227, 228)
    a('v_lshl_add_u32 v22, v8, 7, v9')
    a('s_lshl_b32 s70, s3, 12')
    a(f's_add_u32 s70, s70, {A_WQT}')
    a('v_add_u32 v22, s70, v22')
    a('v_xor_b32 v23, 64, v22')
    a('s_waitcnt vmcnt(1)')
    for i in range(4):
        a(f'ds_write_b128 v{22 + (i & 1)}, v[{120+4*i}:{123+4*i}] offset:{i*1024}')
    wsync(a, 3, 226, 227, 228)
    for ks in range(2):
        a(f'ds_read_b128 v[{36+4*ks}:{39+4*ks}], v17 offset:{ks*64}')
    for mat in range(2):
        for ks in range(2):
            r = 44 + 8 * mat + 4 * ks
            a(f'ds_read_b64_tr_b16 v[{r}:{r+1}], v18 offset:{mat*8192+ks*4096}')
            a(f'ds_read_b64_tr_b16 v[{r+2}:{r+3}], v18 offset:{mat*8192+ks*4096+512}')
    a('s_waitcnt lgkmcnt(0)')
    for mat in range(2):
        for ks in range(2):
            r = 44 + 8 * mat + 4 * ks
            a(f'v_mfma_f32_16x16x32_bf16 v[{140+4*mat}:{143+4*mat}], v[{r}:{r+3}], v[{36+4*ks}:{39+4*ks}], v[{140+4*mat}:{143+4*mat}]')
    stamp(a, 22)
    a.nop(8)
    tag4(a, 140); tag4(a, 144)
    a('s_mov_b32 s70, 5632')
    a('v_mul_lo_u32 v14, v5, s70')
    a('v_lshl_add_u32 v14, v4, 4, v14')
    a('s_mul_i32 s70, s68, 45056')
    a('s_lshl_b32 s71, s73, 8')
    a('s_add_u32 s70, s70, s71')
    a('s_lshl_b32 s71, s3, 6')
    a('s_add_u32 s70, s70, s71')
    a('s_cmp_ge_u32 s2, 176')
    a('s_cselect_b32 s70, 0x40000000, s70')
    a('buffer_store_dwordx4 v[140:143], v14, s[40:43], s70 offen sc1')
    a('s_add_u32 s70, s70, 360448')
    a('buffer_store_dwordx4 v[144:147], v14, s[40:43], s70 offen sc1')
    srd(a, 52, 18, 524288, WS_QABS)
    srd(a, 56, 18, 43 * 16384, WS_FFNO)
    srd(a, 60, 18, 131072, WS_STATS)
    srd(a, 64, 18, 8388608, WS_OPART)
    a('s_lshr_b32 s74, s2, 2')
    a('s_and_b32 s75, s2, 3')
    a(f'v_add_u32 v21, {A_QB}, v20')
    a(f'v_add_u32 v24, {A_QB}, v16')
    a('s_lshl_b32 s69, s3, 2')
    tr_base_p256(a, 26, 28, 0, 69)
    a('s_add_u32 s69, s69, 2')
    tr_base_p256(a, 27, 28, 0, 69)
    def issue_qp():
        a('s_lshl_b32 s70, s73, 14')
        for m in range(4):
            a(f'buffer_load_dwordx4 v[{36+4*m}:{39+4*m}], v19, s[48:51], s70 offen sc1')
            a('s_add_u32 s70, s70, 4096')
    poll_tag(a, issue_qp, [(36,None),(40,None),(44,None),(48,None)])
    stamp(a, 30)
    for e in range(4):
        a(f'v_add_f32 v{36+e}, v{36+e}, v{40+e}')
        a(f'v_add_f32 v{44+e}, v{44+e}, v{48+e}')
        a(f'v_add_f32 v{36+e}, v{36+e}, v{44+e}')
    a('v_cvt_pk_bf16_f32 v40, v36, v37')
    a('v_cvt_pk_bf16_f32 v41, v38, v39')
    a('ds_write_b64 v21, v[40:41]')
    wsync(a, 4, 226, 227, 228)
    for st in range(4):
        a(f'ds_read_b128 v[{36+4*st}:{39+4*st}], v24 offset:{st*64}')
    for r in range(56, 60):
        a(f'v_mov_b32 v{r}, 0')
    a('v_lshlrev_b32 v25, 16, v5')
    a('v_lshl_add_u32 v25, v4, 4, v25')
    a('s_lshl_b32 s70, s73, 11')
    a('s_lshl_b32 s71, s68, 8')
    a('s_add_u32 s70, s70, s71')
    a('s_lshl_b32 s71, s3, 6')
    a('s_add_u32 s70, s70, s71')
    a('s_waitcnt lgkmcnt(0)')
    for st in range(4):
        a(f'v_mfma_f32_16x16x32_bf16 v[56:59], v[{104+4*st}:{107+4*st}], v[{36+4*st}:{39+4*st}], v[56:59]')
    a.nop(10)
    tag4(a, 56)
    a('buffer_store_dwordx4 v[56:59], v25, s[52:55], s70 offen sc1')
    wsync(a, 5, 226, 227, 228)
    stamp(a, 31)
    a('s_mov_b64 exec, 1')
    a('ds_add_u32 v226, v227 offset:4')
    a('s_mov_b64 exec, -1')
    a('s_lshr_b32 s69, s2, 5')
    def issue_sent():
        a('s_lshl_b32 s70, s69, 16')
        a('s_lshl_b32 s71, s3, 14')
        a('s_add_u32 s70, s70, s71')
        a('buffer_load_dwordx4 v[128:131], v30, s[52:55], s70 offen sc1')
        a('buffer_load_dwordx4 v[132:135], v30, s[52:55], s70 offen offset:1024 sc1')
    poll_tag(a, issue_sent, [(128,None),(132,None)])
    def issue_qabs():
        a('s_lshl_b32 s70, s69, 16')
        a('s_lshl_b32 s71, s3, 14')
        a('s_add_u32 s70, s70, s71')
        a('s_add_u32 s70, s70, 2048')
        for i in range(2, 16):
            a(f'buffer_load_dwordx4 v[{128+4*i}:{131+4*i}], v30, s[52:55], s70 offen sc1')
            a('s_add_u32 s70, s70, 1024')
    poll_tag(a, issue_qabs, [(128+4*i,None) for i in range(2, 16)])
    a('s_cmp_lg_u32 s3, 2')
    a('s_cbranch_scc1 KP_NOW2')
    a.label('KP_W2L')
    a('ds_read_b32 v228, v226 offset:4')
    a('s_waitcnt lgkmcnt(0)')
    a('v_readfirstlane_b32 s71, v228')
    a('s_nop 3')
    a('s_cmp_ge_u32 s71, 4')
    a('s_cbranch_scc0 KP_W2L')
    a.label('KP_NOW2')
    a('v_lshrrev_b32 v14, 1, v2')
    a('v_lshlrev_b32 v14, 4, v14')
    a('s_and_b32 s70, s3, 1')
    a('s_lshl_b32 s70, s70, 5')
    a('v_xor_b32 v14, s70, v14')
    a('v_and_b32 v15, 1, v2')
    a('v_lshlrev_b32 v15, 3, v15')
    a('s_lshl_b32 s71, s3, 13')
    a(f's_add_u32 s71, s71, {R0}')
    a('v_add_u32 v15, s71, v15')
    for i in range(8):
        a(f'v_xor_b32 v9, {(((i & 3) << 2) | (i >> 2)) << 4}, v14')
        a('v_add_u32 v9, v9, v15')
        for p in range(2):
            r = 128 + 4 * (2 * i + p)
            a(f'v_cvt_pk_bf16_f32 v{r}, v{r}, v{r+1}')
            a(f'v_cvt_pk_bf16_f32 v{r+1}, v{r+2}, v{r+3}')
            a(f'ds_write_b64 v9, v[{r}:{r+1}] offset:{i*1024+p*512}')
    a('v_lshlrev_b32 v30, 4, v2')
    a('s_lshr_b32 s69, s2, 5')
    stamp(a, 2)
    a('v_and_b32 v224, 31, v2')
    a('v_lshrrev_b32 v225, 5, v2')
    a('v_and_b32 v9, 3, v224')
    a('v_lshlrev_b32 v9, 2, v9')
    a('v_lshrrev_b32 v10, 2, v224')
    a('v_and_b32 v10, 3, v10')
    a('v_or_b32 v9, v9, v10')
    a('v_xor_b32 v9, v9, v225')
    a('v_lshlrev_b32 v10, 10, v224')
    a('s_lshl_b32 s70, s3, 15')
    a('v_add_u32 v11, s70, v10')
    a(f'v_add_u32 v12, {R0}, v10')
    for e in range(8):
        a(f'v_xor_b32 v14, {2*e}, v9')
        a(f'v_lshl_add_u32 v{232+e}, v14, 4, v11')
        a(f'v_lshl_add_u32 v{240+e}, v14, 4, v12')
    for r in range(32, 48):
        a(f'v_mov_b32 v{r}, 0')
    for r in range(80, 128):
        a(f'v_mov_b32 v{r}, 0')
    a('v_and_b32 v9, 1, v4')
    a('v_lshrrev_b32 v10, 1, v7')
    a('v_lshl_add_u32 v10, v9, 1, v10')
    a('v_lshl_add_u32 v11, v225, 2, v6')
    a('v_lshlrev_b32 v11, 10, v11')
    a('s_lshl_b32 s70, s3, 8')
    a('v_add_u32 v11, s70, v11')
    a('v_and_b32 v9, 1, v7')
    a('v_lshl_add_u32 v11, v9, 3, v11')
    for sec in range(2):
        a(f'v_add_u32 v9, {2*sec}, v225')
        a('v_xor_b32 v9, v9, v10')
        for t in range(4):
            a(f'v_xor_b32 v14, {t}, v6')
            a('v_lshl_add_u32 v14, v14, 2, v9')
            a(f'v_lshl_add_u32 v{160+2*t+sec}, v14, 4, v11')
            if sec:
                a(f'v_add_u32 v{160+2*t+sec}, 8192, v{160+2*t+sec}')
    a('s_waitcnt lgkmcnt(0)')
    a('s_barrier')
    stamp(a, 3)
    srd(a, 36, 10, 4194304)
    a('v_lshlrev_b32 v14, 4, v3')
    a('v_lshl_add_u32 v14, v4, 13, v14')
    a('s_lshr_b32 s70, s68, 1')
    a('s_lshl_b32 s70, s70, 7')
    a('s_and_b32 s71, s68, 1')
    a('s_lshl_b32 s71, s71, 2')
    a('s_add_u32 s70, s70, s71')
    a('s_lshl_b32 s71, s3, 5')
    a('s_add_u32 s70, s70, s71')
    a('s_lshl_b32 s70, s70, 13')
    a('s_lshl_b32 s71, s73, 8')
    a('s_add_u32 s70, s70, s71')
    for i in range(4):
        a(f'buffer_load_dwordx4 v[{192+4*i}:{195+4*i}], v14, s[36:39], s70 offen nt')
        a('s_add_u32 s70, s70, 65536')
    srd(a, 44, 12, 4194304)
    a('v_lshlrev_b32 v14, 4, v5')
    a('v_lshl_add_u32 v14, v8, 10, v14')
    a('s_lshl_b32 s70, s73, 17')
    a('s_lshl_b32 s71, s3, 15')
    a('s_add_u32 s70, s70, s71')
    a('s_lshl_b32 s71, s68, 7')
    a('s_add_u32 s70, s70, s71')
    for i in range(4):
        a(f'buffer_load_dwordx4 v[{208+4*i}:{211+4*i}], v14, s[44:47], s70 offen nt')
        a('s_add_u32 s70, s70, 8192')
    def rd(st):
        return [f'ds_read_b128 v[{48+4*(st&3)}:{51+4*(st&3)}], v{232+(st&7)} offset:{(st>>3)*256}',
                f'ds_read_b128 v[{64+4*(st&3)}:{67+4*(st&3)}], v{240+(st&7)} offset:{(st>>3)*256}']
    for st in range(3):
        for s in rd(st): a(s)
    for st in range(32):
        if st + 3 < 32:
            for s in rd(st + 3): a(s)
            a('s_waitcnt lgkmcnt(6)')
        else:
            a(f's_waitcnt lgkmcnt({2*(31-st)})')
        a(f'v_mfma_f32_32x32x16_bf16 v[32:47], v[{48+4*(st&3)}:{51+4*(st&3)}], v[{64+4*(st&3)}:{67+4*(st&3)}], v[32:47]')
    a('s_barrier')
    for r in range(64, 80):
        a(f'v_mov_b32 v{r}, 0')
    srd(a, 40, 18, 0xB0000, WS_FFNP)
    srd(a, 28, 14, 1409024)
    a('s_mov_b32 s70, 5632')
    a('v_mul_lo_u32 v14, v8, s70')
    a('v_lshl_add_u32 v14, v5, 4, v14')
    a('s_and_b32 s70, s3, 1')
    a('s_mul_i32 s70, s70, 360448')
    a('s_lshr_b32 s71, s3, 1')
    a('s_mul_i32 s71, s71, 180224')
    a('s_add_u32 s70, s70, s71')
    a('s_lshl_b32 s71, s74, 7')
    a('s_add_u32 s70, s70, s71')
    a('s_cmp_ge_u32 s2, 172')
    a('s_cselect_b32 s70, 0x40000000, s70')
    a('v_mov_b32 v229, v14')
    a('s_mov_b32 s82, s70')
    for i in range(4):
        a(f'buffer_load_dwordx4 v[{232+4*i}:{235+4*i}], v14, s[40:43], s70 offen sc1')
        a('s_add_u32 s70, s70, 45056')
    a('v_lshlrev_b32 v14, 4, v3')
    a('v_lshl_add_u32 v14, v4, 10, v14')
    a('s_lshl_b32 s70, s74, 15')
    a('s_lshl_b32 s71, s3, 13')
    a('s_add_u32 s70, s70, s71')
    a('s_lshl_b32 s71, s75, 8')
    a('s_add_u32 s70, s70, s71')
    a('s_cmp_ge_u32 s2, 172')
    a('s_cselect_b32 s70, 0x40000000, s70')
    for i in range(2):
        a(f'buffer_load_dwordx4 v[{184+4*i}:{187+4*i}], v14, s[28:31], s70 offen nt')
        a('s_add_u32 s70, s70, 4096')
    a('s_mov_b32 s70, 0x3db504f3')
    for i in range(8):
        bf16_round_pair(a, 32+2*i, 33+2*i, 32+2*i, 33+2*i, 48)
        a(f'v_mul_f32 v{32+2*i}, s70, v{32+2*i}')
        a(f'v_mul_f32 v{33+2*i}, s70, v{33+2*i}')
        bf16_round_pair(a, 32+2*i, 33+2*i, 32+2*i, 33+2*i, 48)
    a('v_max3_f32 v48, v32, v33, v34')
    for i in range(35, 47, 2):
        a(f'v_max3_f32 v48, v48, v{i}, v{i+1}')
    a('v_max_f32 v48, v48, v47')
    a('v_mov_b32 v49, v48')
    a('s_nop 1')
    a('v_permlane32_swap_b32 v48, v49')
    a('v_max_f32 v48, v48, v49')
    a('v_lshlrev_b32 v11, 2, v224')
    a(f'v_add_u32 v11, {P_ST}, v11')
    a('s_lshl_b32 s70, s3, 7')
    a('v_add_u32 v12, s70, v11')
    a('ds_write_b32 v12, v48')
    a('s_waitcnt lgkmcnt(0)')
    a('s_barrier')
    a('ds_read_b32 v48, v11')
    a('ds_read_b32 v49, v11 offset:128')
    a('ds_read_b32 v50, v11 offset:256')
    a('ds_read_b32 v51, v11 offset:384')
    a('s_waitcnt lgkmcnt(0)')
    a('v_max3_f32 v48, v48, v49, v50')
    a('v_max_f32 v48, v48, v51')
    a('s_mov_b32 s70, 0x3fb8aa3b')
    a('v_mul_f32 v49, s70, v48')
    for i in range(16):
        a(f'v_fma_f32 v{32+i}, v{32+i}, s70, -v49')
        a(f'v_exp_f32 v{32+i}, v{32+i}')
    a('s_nop 0')
    a('v_add_f32 v50, v32, v33')
    for i in range(2, 16):
        a(f'v_add_f32 v50, v50, v{32+i}')
    a('v_mov_b32 v51, v50')
    a('s_nop 1')
    a('v_permlane32_swap_b32 v50, v51')
    a('v_add_f32 v50, v50, v51')
    a('ds_write_b32 v12, v50 offset:512')
    for i in range(8):
        a(f'v_cvt_pk_bf16_f32 v{52+i}, v{32+2*i}, v{33+2*i}')
    a('s_lshl_b32 s70, s3, 11')
    a(f's_add_u32 s70, s70, {P_P}')
    a('v_add_u32 v14, s70, v30')
    a('ds_write_b128 v14, v[52:55]')
    a('ds_write_b128 v14, v[56:59] offset:1024')
    a('s_waitcnt lgkmcnt(0)')
    a('s_barrier')
    a('ds_read_b32 v50, v11 offset:512')
    a('ds_read_b32 v51, v11 offset:640')
    a('ds_read_b32 v52, v11 offset:768')
    a('ds_read_b32 v53, v11 offset:896')
    a(f'v_add_u32 v14, {P_P}, v30')
    for u in range(8):
        a(f'ds_read_b128 v[{128+4*u}:{131+4*u}], v14 offset:{u*1024}')
    def trrd(u, t, buf):
        off = (u & 3) * 16384
        return [f'ds_read_b64_tr_b16 v[{buf}:{buf+1}], v{160+2*t} offset:{off}',
                f'ds_read_b64_tr_b16 v[{buf+2}:{buf+3}], v{161+2*t} offset:{off}']
    seq = [(u, t) for u in range(8) for t in range(4)]
    bufs = [168, 172, 176, 180]
    def issue(idx):
        u, t = seq[idx]
        if u == 4 and t == 0:
            for r in range(160, 168):
                a(f'v_add_u32 v{r}, 0x10000, v{r}')
        for s in trrd(u, t, bufs[idx & 3]):
            a(s)
    for idx in range(3):
        issue(idx)
    a('s_waitcnt lgkmcnt(6)')
    a('v_add_f32 v50, v50, v51')
    a('v_add_f32 v52, v52, v53')
    a('v_add_f32 v49, v50, v52')
    a('v_mov_b32 v230, v48')
    a('v_mov_b32 v231, v49')
    for idx in range(32):
        u, t = seq[idx]
        if idx + 3 < 32:
            issue(idx + 3)
            a('s_waitcnt lgkmcnt(6)')
        else:
            a(f's_waitcnt lgkmcnt({2*(31-idx)})')
        b = bufs[idx & 3]
        a(f'v_mfma_f32_32x32x16_bf16 v[{64+16*t}:{79+16*t}], v[{b}:{b+3}], v[{128+4*u}:{131+4*u}], v[{64+16*t}:{79+16*t}]')
    a('s_barrier')
    stamp(a, 4)
    a('v_and_b32 v9, 7, v224')
    a('v_lshlrev_b32 v10, 3, v225')
    a('s_lshl_b32 s70, s3, 4')
    a('v_add_u32 v10, s70, v10')
    a('v_lshlrev_b32 v11, 10, v224')
    a.nop(6)
    for t in range(4):
        for i in range(8):
            a(f'v_cvt_pk_bf16_f32 v{128+8*t+i}, v{64+16*t+2*i}, v{65+16*t+2*i}')
        for i in range(2):
            a(f'v_xor_b32 v14, {2*t+i}, v9')
            a('v_add_u32 v14, v14, v10')
            a('v_lshl_add_u32 v14, v14, 4, v11')
            a(f'ds_write_b128 v14, v[{128+8*t+4*i}:{131+8*t+4*i}]')
    a('s_waitcnt vmcnt(0)')
    a('s_cmp_ge_u32 s2, 172')
    a('s_cbranch_scc1 KP_FPOK')
    tag_check(a, [(232,None),(236,None),(240,None),(244,None)], 22, 23, 249)
    a('s_nop 3')
    a('s_cmp_eq_u64 vcc, 0')
    a('s_cbranch_scc1 KP_FPOK')
    def issue_fp():
        a('s_mov_b32 s70, s82')
        for i in range(4):
            a(f'buffer_load_dwordx4 v[{232+4*i}:{235+4*i}], v229, s[40:43], s70 offen sc1')
            a('s_add_u32 s70, s70, 45056')
    poll_tag(a, issue_fp, [(232,None),(236,None),(240,None),(244,None)], clean=False)
    a.label('KP_FPOK')
    untag(a, [(232,None),(236,None),(240,None),(244,None)])
    a('v_lshl_add_u32 v14, v4, 8, v13')
    a('s_and_b32 s70, s3, 1')
    a('s_lshl_b32 s70, s70, 7')
    a('v_xor_b32 v14, s70, v14')
    a('s_lshl_b32 s70, s3, 11')
    a(f's_add_u32 s70, s70, {F_WD}')
    a('v_add_u32 v14, s70, v14')
    a('ds_write_b128 v14, v[184:187]')
    a('ds_write_b128 v14, v[188:191] offset:1024')
    for e in range(4):
        a(f'v_add_f32 v{232+e}, v{232+e}, v{236+e}')
        a(f'v_add_f32 v{240+e}, v{240+e}, v{244+e}')
        a(f'v_add_f32 v{232+e}, v{232+e}, v{240+e}')
    a('v_lshlrev_b32 v21, 4, v0')
    a(f'v_add_u32 v21, {F_FS}, v21')
    a('ds_write_b128 v21, v[232:235]')
    a('v_lshl_add_u32 v14, v4, 8, v13')
    a('s_lshl_b32 s70, s3, 12')
    a(f's_add_u32 s70, s70, {D_WUV}')
    a('v_add_u32 v14, s70, v14')
    a('v_xor_b32 v15, 128, v14')
    for i in range(4):
        a(f'ds_write_b128 v{14 + ((i >> 1) & 1)}, v[{192+4*i}:{195+4*i}] offset:{i*1024}')
    a('v_lshrrev_b32 v14, 1, v8')
    a('v_and_b32 v14, 1, v14')
    a('v_lshlrev_b32 v14, 1, v14')
    a('v_xor_b32 v14, v14, v5')
    a('v_lshlrev_b32 v14, 4, v14')
    a('v_lshl_add_u32 v14, v8, 7, v14')
    a('s_lshl_b32 s70, s3, 12')
    a(f's_add_u32 s70, s70, {D_WO}')
    a('v_add_u32 v14, s70, v14')
    a('v_xor_b32 v15, 64, v14')
    for i in range(4):
        a(f'ds_write_b128 v{14 + (i & 1)}, v[{208+4*i}:{211+4*i}] offset:{i*1024}')
    a('s_waitcnt lgkmcnt(0)')
    a('s_barrier')
    a('s_lshl_b32 s70, s3, 13')
    a('s_lshl_b32 s71, s2, 15')
    a('s_add_u32 s71, s71, s70')
    for i in range(8):
        a(f'v_xor_b32 v14, {i << 4}, v30')
        a('v_add_u32 v14, s70, v14')
        a(f'ds_read_b128 v[{128+4*i}:{131+4*i}], v14 offset:{i*1024}')
    for i in range(8):
        a(f's_waitcnt lgkmcnt({7-i})')
        a(f'buffer_store_dwordx4 v[{128+4*i}:{131+4*i}], v30, s[64:67], s71 offen sc1')
        a('s_add_u32 s71, s71, 1024')
    a('s_waitcnt vmcnt(0)')
    a('s_barrier')
    a('s_cmp_lg_u32 s3, 0')
    a('s_cbranch_scc1 KP_NOST')
    a('v_lshlrev_b32 v14, 12, v224')
    a('s_lshl_b32 s70, s2, 4')
    a('v_mov_b32 v232, s100')
    a('v_mov_b32 v233, s100')
    a('s_mov_b64 exec, 0xffffffff')
    a('buffer_store_dwordx4 v[230:233], v14, s[60:63], s70 offen sc1')
    a('s_mov_b64 exec, -1')
    a('ds_read_b128 v[96:99], v21')
    a('ds_read_b128 v[100:103], v21 offset:1024')
    a('ds_read_b128 v[104:107], v21 offset:2048')
    a('ds_read_b128 v[108:111], v21 offset:3072')
    a('s_waitcnt lgkmcnt(0)')
    for e in range(4):
        a(f'v_add_f32 v{96+e}, v{96+e}, v{104+e}')
        a(f'v_add_f32 v{100+e}, v{100+e}, v{108+e}')
    bf16_round_pair(a, 96, 97, 96, 97, 23)
    bf16_round_pair(a, 98, 99, 98, 99, 23)
    bf16_round_pair(a, 100, 101, 100, 101, 23)
    bf16_round_pair(a, 102, 103, 102, 103, 23)
    gelu4(a, [96, 97, 98, 99], 23)
    bf16_round_pair(a, 96, 97, 96, 97, 23)
    bf16_round_pair(a, 98, 99, 98, 99, 23)
    for e in range(4):
        a(f'v_mul_f32 v{96+e}, v{96+e}, v{100+e}')
    a('v_cvt_pk_bf16_f32 v104, v96, v97')
    a('v_cvt_pk_bf16_f32 v105, v98, v99')
    a('s_mov_b32 s70, 288')
    a('v_mul_lo_u32 v22, v8, s70')
    a('v_lshl_add_u32 v22, v5, 3, v22')
    a(f'v_add_u32 v22, {F_HB}, v22')
    a('ds_write_b64 v22, v[104:105]')
    a.label('KP_NOST')
    stamp(a, 5)
    a('s_waitcnt lgkmcnt(0)')
    a('s_barrier')
    a(f'v_add_u32 v22, {F_HB}, v16')
    a('ds_read_b128 v[32:35], v22')
    a(f'v_add_u32 v22, {F_WD}, v26')
    a(f'v_add_u32 v23, {F_WD}, v27')
    for tl in range(2):
        r = 64 + 4 * tl
        a(f'ds_read_b64_tr_b16 v[{r}:{r+1}], v{22+tl}')
        a(f'ds_read_b64_tr_b16 v[{r+2}:{r+3}], v{22+tl} offset:1024')
    for r in range(72, 80):
        a(f'v_mov_b32 v{r}, 0')
    a('s_lshl_b32 s70, s74, 14')
    a('s_lshl_b32 s71, s75, 9')
    a('s_add_u32 s70, s70, s71')
    a('s_lshl_b32 s71, s3, 7')
    a('s_add_u32 s70, s70, s71')
    a('s_cmp_ge_u32 s2, 172')
    a('s_cselect_b32 s70, 0x40000000, s70')
    a('s_waitcnt lgkmcnt(0)')
    for tl in range(2):
        r = 64 + 4 * tl
        a(f'v_mfma_f32_16x16x32_bf16 v[{72+4*tl}:{75+4*tl}], v[{r}:{r+3}], v[32:35], v[{72+4*tl}:{75+4*tl}]')
    a.nop(10)
    tag4(a, 72); tag4(a, 76)
    a('buffer_store_dwordx4 v[72:75], v29, s[56:59], s70 offen sc1')
    a('buffer_store_dwordx4 v[76:79], v29, s[56:59], s70 offen offset:64 sc1')
    srd(a, 48, 18, 1048576, WS_CTXP)
    srd(a, 40, 18, 524288, WS_ATTP)
    a('v_lshlrev_b32 v9, 4, v0')
    a('v_lshlrev_b32 v10, 20, v8')
    a('v_lshl_add_u32 v10, v5, 4, v10')
    def issue_S():
        a('s_lshl_b32 s70, s73, 12')
        a('buffer_load_dwordx4 v[32:35], v9, s[60:63], s70 offen sc1')
    poll_gen(a, issue_S, lambda: a('v_cmp_ne_u32 vcc, s100, v34'))
    a('s_barrier')
    a('s_lshl_b32 s70, s3, 18')
    a('s_lshl_b32 s71, s73, 10')
    a('s_add_u32 s70, s70, s71')
    a('s_lshl_b32 s71, s68, 7')
    a('s_add_u32 s70, s70, s71')
    for i in range(8):
        a(f'buffer_load_dwordx4 v[{64+4*i}:{67+4*i}], v10, s[64:67], s70 offen sc1')
        a('s_add_u32 s70, s70, 32768')
    stamp(a, 6)
    a('v_mov_b32 v34, v32')
    swz_reduce32(a, 34, 35, 'v_max_f32')
    a('v_sub_f32 v34, v32, v34')
    a('v_mul_f32 v34, 0x3fb8aa3b, v34')
    a('v_exp_f32 v34, v34')
    a('s_nop 0')
    a('v_mul_f32 v36, v34, v33')
    swz_reduce32(a, 36, 35, 'v_add_f32')
    a('v_rcp_f32 v36, v36')
    a('s_nop 0')
    a('v_mul_f32 v34, v34, v36')
    a('v_lshlrev_b32 v35, 2, v0')
    a(f'ds_write_b32 v35, v34 offset:{D_AL}')
    a('s_waitcnt lgkmcnt(0)')
    a('s_barrier')
    a('v_lshlrev_b32 v35, 7, v8')
    a('s_lshl_b32 s70, s3, 5')
    a('v_add_u32 v35, s70, v35')
    a(f'ds_read_b128 v[36:39], v35 offset:{D_AL}')
    a(f'ds_read_b128 v[40:43], v35 offset:{D_AL+16}')
    for r in range(48, 56):
        a(f'v_mov_b32 v{r}, 0')
    a('s_waitcnt lgkmcnt(0)')
    for i in range(8):
        a(f's_waitcnt vmcnt({7-i})')
        for e in range(4):
            a(f'v_lshlrev_b32 v22, 16, v{64+4*i+e}')
            a(f'v_and_b32 v23, 0xffff0000, v{64+4*i+e}')
            a(f'v_fmac_f32 v{48+2*e}, v22, v{36+i}')
            a(f'v_fmac_f32 v{49+2*e}, v23, v{36+i}')
    stamp(a, 10)
    a('v_lshlrev_b32 v35, 5, v0')
    a(f'ds_write_b128 v35, v[48:51] offset:{D_CB}')
    a(f'ds_write_b128 v35, v[52:55] offset:{D_CB+16}')
    a('s_waitcnt lgkmcnt(0)')
    a('s_barrier')
    a('s_cmp_lg_u32 s3, 0')
    a('s_cbranch_scc1 KP_NOSUM')
    for w in range(1, 4):
        a(f'ds_read_b128 v[{56+8*(w-1)}:{59+8*(w-1)}], v35 offset:{D_CB+w*2048}')
        a(f'ds_read_b128 v[{60+8*(w-1)}:{63+8*(w-1)}], v35 offset:{D_CB+w*2048+16}')
    a('s_waitcnt lgkmcnt(0)')
    for e in range(8):
        a(f'v_add_f32 v{48+e}, v{48+e}, v{56+e}')
        a(f'v_add_f32 v{64+e}, v{64+e}, v{72+e}')
        a(f'v_add_f32 v{48+e}, v{48+e}, v{64+e}')
    for e in range(4):
        a(f'v_cvt_pk_bf16_f32 v{56+e}, v{48+2*e}, v{49+2*e}')
    a('s_mov_b32 s70, 160')
    a('v_mul_lo_u32 v35, v8, s70')
    a('v_lshl_add_u32 v35, v5, 4, v35')
    a(f'ds_write_b128 v35, v[56:59] offset:{D_OC}')
    a.label('KP_NOSUM')
    a('s_mov_b32 s70, 160')
    a('v_mul_lo_u32 v24, v5, s70')
    a('v_lshl_add_u32 v24, v4, 4, v24')
    for r in range(96, 104):
        a(f'v_mov_b32 v{r}, 0')
    a('v_lshlrev_b32 v28, 9, v5')
    a('v_lshl_add_u32 v28, v4, 4, v28')
    a('s_lshl_b32 s70, s2, 12')
    a('s_lshl_b32 s71, s3, 7')
    a('s_add_u32 s70, s70, s71')
    a('s_waitcnt lgkmcnt(0)')
    a('s_barrier')
    for ks in range(2):
        a(f'ds_read_b128 v[{32+4*ks}:{35+4*ks}], v24 offset:{D_OC+ks*64}')
        for tl in range(2):
            r = 64 + 8 * ks + 4 * tl
            a(f'ds_read_b64_tr_b16 v[{r}:{r+1}], v{26+tl} offset:{D_WUV+ks*8192}')
            a(f'ds_read_b64_tr_b16 v[{r+2}:{r+3}], v{26+tl} offset:{D_WUV+ks*8192+1024}')
    a('s_waitcnt lgkmcnt(0)')
    for ks in range(2):
        for tl in range(2):
            r = 64 + 8 * ks + 4 * tl
            a(f'v_mfma_f32_16x16x32_bf16 v[{96+4*tl}:{99+4*tl}], v[{r}:{r+3}], v[{32+4*ks}:{35+4*ks}], v[{96+4*tl}:{99+4*tl}]')
    a.nop(10)
    tag4(a, 96); tag4(a, 100)
    a('buffer_store_dwordx4 v[96:99], v28, s[48:51], s70 offen sc1')
    a('buffer_store_dwordx4 v[100:103], v28, s[48:51], s70 offen offset:64 sc1')
    stamp(a, 11)
    a('s_lshl_b32 s69, s3, 1')
    tr_base_p128(a, 26, 27, D_WO, 69)
    def issue_ctx():
        a('s_lshl_b32 s70, s73, 15')
        for m in range(8):
            a(f'buffer_load_dwordx4 v[{64+4*m}:{67+4*m}], v19, s[48:51], s70 offen sc1')
            a('s_add_u32 s70, s70, 4096')
    poll_tag(a, issue_ctx, [(64+4*m,None) for m in range(8)])
    stamp(a, 7)
    for e in range(4):
        a(f'v_add_f32 v{64+e}, v{64+e}, v{68+e}')
        a(f'v_add_f32 v{72+e}, v{72+e}, v{76+e}')
        a(f'v_add_f32 v{80+e}, v{80+e}, v{84+e}')
        a(f'v_add_f32 v{88+e}, v{88+e}, v{92+e}')
        a(f'v_add_f32 v{64+e}, v{64+e}, v{72+e}')
        a(f'v_add_f32 v{80+e}, v{80+e}, v{88+e}')
        a(f'v_add_f32 v{64+e}, v{64+e}, v{80+e}')
    a('v_cvt_pk_bf16_f32 v68, v64, v65')
    a('v_cvt_pk_bf16_f32 v69, v66, v67')
    a(f'ds_write_b64 v20, v[68:69] offset:{D_CX}')
    for r in range(56, 60):
        a(f'v_mov_b32 v{r}, 0')
    a('s_lshl_b32 s70, s73, 14')
    a('s_lshl_b32 s71, s68, 8')
    a('s_add_u32 s70, s70, s71')
    a('s_lshl_b32 s71, s3, 6')
    a('s_add_u32 s70, s70, s71')
    a('s_waitcnt lgkmcnt(0)')
    a('s_barrier')
    for ks in range(4):
        a(f'ds_read_b128 v[{32+4*ks}:{35+4*ks}], v16 offset:{D_CX+ks*64}')
        a(f'ds_read_b64_tr_b16 v[{64+4*ks}:{65+4*ks}], v26 offset:{ks*4096}')
        a(f'ds_read_b64_tr_b16 v[{66+4*ks}:{67+4*ks}], v26 offset:{ks*4096+512}')
    for ks in range(4):
        a(f's_waitcnt lgkmcnt({12-3*(ks+1)})')
        a(f'v_mfma_f32_16x16x32_bf16 v[56:59], v[{64+4*ks}:{67+4*ks}], v[{32+4*ks}:{35+4*ks}], v[56:59]')
    a.nop(10)
    tag4(a, 56)
    a('buffer_store_dwordx4 v[56:59], v29, s[40:43], s70 offen sc1')
    stamp(a, 12)
    srd(a, 20, 4, 8192)
    srd(a, 28, 16, 8192)
    a('v_and_b32 v9, 3, v0')
    a('v_lshrrev_b32 v10, 2, v0')
    a('v_lshlrev_b32 v11, 14, v10')
    a('v_lshl_add_u32 v11, v9, 4, v11')
    a('v_lshlrev_b32 v12, 1, v0')
    a('s_lshl_b32 s69, s2, 5')
    a('buffer_load_ushort v40, v12, s[20:23], s69 offen')
    def issue_fin():
        a('s_lshl_b32 s70, s2, 6')
        a('buffer_load_dwordx4 v[64:67], v11, s[40:43], s70 offen sc1')
        a('buffer_load_dwordx4 v[68:71], v11, s[56:59], s70 offen sc1')
    a('v_cmp_gt_u32 s[76:77], 32, v10')
    a('v_cmp_gt_u32 s[78:79], 43, v10')
    a('s_nop 1')
    poll_tag(a, issue_fin, [(64,76),(68,78)])
    stamp(a, 13)
    a('v_lshlrev_b32 v14, 4, v0')
    a(f'v_add_u32 v14, {D_FA}, v14')
    a('ds_write_b128 v14, v[64:67]')
    a('ds_write_b128 v14, v[68:71] offset:4096')
    a('s_waitcnt lgkmcnt(0)')
    a('s_barrier')
    a('v_cmp_gt_u32 vcc, 16, v0')
    a('s_and_saveexec_b64 s[80:81], vcc')
    a('s_cbranch_execz KP_FIN')
    a('v_lshlrev_b32 v14, 2, v0')
    a(f'v_add_u32 v14, {D_FA}, v14')
    for g in range(32):
        a(f'ds_read_b32 v{64+g}, v14 offset:{g*64}')
    for g in range(43):
        a(f'ds_read_b32 v{128+g}, v14 offset:{4096+g*64}')
    a('s_waitcnt lgkmcnt(0)')
    for step in (16, 8, 4, 2, 1):
        for i in range(step):
            a(f'v_add_f32 v{64+i}, v{64+i}, v{64+i+step}')
    for i in range(11):
        a(f'v_add_f32 v{128+i}, v{128+i}, v{160+i}')
    for step in (16, 8, 4, 2, 1):
        for i in range(step):
            a(f'v_add_f32 v{128+i}, v{128+i}, v{128+i+step}')
    a('v_lshlrev_b32 v40, 16, v40')
    bf16_round_pair(a, 64, 128, 64, 128, 15)
    a('v_add_f32 v64, v64, v40')
    bf16_round_pair(a, 64, 65, 64, 64, 15)
    a('v_add_f32 v64, v64, v128')
    a('v_cvt_pk_bf16_f32 v64, v64, v64')
    a('buffer_store_short v64, v12, s[28:31], s69 offen')
    a.label('KP_FIN')
    a('s_mov_b64 exec, s[80:81]')
    if STAMP:
        stamp(a, 8)
        a('s_cmp_lg_u32 s3, 0')
        a('s_cbranch_scc1 KP_EXIT')
        srd(a, 76, 18, 1 << 20, WS_STAMP)
        a('s_lshl_b32 s80, s2, 7')
        a('v_mov_b32 v250, 0')
        for i in range(6):
            a(f'v_mov_b32 v251, s{84+2*i}')
            a(f'buffer_store_dword v251, v250, s[76:79], s80 offen offset:{4*i}')
    a('s_branch KP_EXIT')

    a.label('KP_LOADER')
    srd_inplace(a, 44, 256)
    a('s_sub_u32 s69, s3, 4')
    a('v_lshlrev_b32 v3, 4, v2')
    a('s_lshl_b32 s70, s2, 17')
    a('s_lshl_b32 s71, s69, 15')
    a('s_add_u32 s70, s70, s71')
    a(f'v_mov_b32 v5, {A_CNT}')
    a('s_mov_b32 s76, 0')
    a('s_barrier')
    a('s_cmp_lg_u32 s69, 3')
    a('s_cbranch_scc1 KP_LROW')
    a('v_mov_b32 v7, 0')
    def issue_n():
        a('buffer_load_dword v6, v7, s[44:47], 0 offen sc1')
    poll_gen(a, issue_n, lambda: a('v_cmp_eq_u32 vcc, 0, v6'), SBSLEEP)
    a('v_or_b32 v6, 1, v6')
    a('ds_write_b32 v5, v6 offset:12')
    a.label('KP_LROW')
    a('s_and_b32 s77, s76, 3')
    a('s_lshl_b32 s77, s77, 2')
    a('s_lshr_b32 s78, s76, 2')
    a('s_and_b32 s78, s78, 3')
    a('s_or_b32 s77, s77, s78')
    a('s_lshl_b32 s77, s77, 4')
    a('v_xor_b32 v4, s77, v3')
    a('s_mov_b32 m0, s71')
    a('s_add_u32 s71, s71, 1024')
    a('buffer_load_dwordx4 v4, s[24:27], s70 offen nt lds')
    a('s_add_u32 s70, s70, 1024')
    a(f's_cmp_ge_u32 s76, {RSW}')
    a('s_cbranch_scc1 KP_LT2')
    a(f's_waitcnt vmcnt({THR1})')
    a.label('KP_LT2')
    a(f's_waitcnt vmcnt({THROTTLE})')
    a('s_add_u32 s76, s76, 1')
    a('s_cmp_lt_u32 s76, 32')
    a('s_cbranch_scc1 KP_LROW')
    a('s_waitcnt vmcnt(0)')
    a('s_barrier')
    a.label('KP_EXIT')
    a('s_endpgm')

def main(out):
    a = Asm()
    a.raw(HDR.rstrip('\n'))
    a.raw(f'; @launch grid=(256,1,1) block=(512,1,1) lds={KP_LDS}')
    a.raw('.amdgcn_target "amdgcn-amd-amdhsa--gfx950"')
    a.raw('.text')
    a.raw(f'.globl {KNAME}')
    a.raw('.p2align 8')
    a.raw(f'.type {KNAME},@function')
    gen_kp(a)
    a.raw('.section .rodata,"a"')
    a.raw('.p2align 6')
    a.raw(kd(KNAME))
    open(out, 'w').write('\n'.join(a.L) + '\n')

if __name__ == '__main__':
    if 'stamp' in sys.argv[2:]: STAMP = True
    if 'head' in sys.argv[2:]: SMAP.clear(); SMAP.update({0:0,21:1,22:2,1:3,2:4,3:5})
    if 'chain' in sys.argv[2:]: SMAP.clear(); SMAP.update({0:0,1:1,30:2,31:3,2:4,3:5})
    if 'tail' in sys.argv[2:]: SMAP.clear(); SMAP.update({0:0,5:1,6:2,7:3,13:4,8:5})
    for x in sys.argv[2:]:
        if x.startswith('thr'): THROTTLE = int(x[3:])
        if x.startswith('slp'): SLEEP = int(x[3:])
        if x == 'pzsc1': PZ_POL = ' sc1'
        if x == 'nosent': SENT = False
        if x.startswith('qpos'): QPOS = int(x[4:])
        if x.startswith('rsw'): RSW = int(x[3:])
        if x.startswith('tha'): THR1 = int(x[3:])
        if x.startswith('sbs'): SBSLEEP = int(x[3:])
        if x == 'late': LATE = True
    main(sys.argv[1] if len(sys.argv) > 1 else 'parallel_sum__compressed_kv_cla__geglu_ffn__decode.s')
```

```python
import sys, math, struct
sys.path.insert(0, 'work')
from gen1 import Asm, srd, HDR, kd, bf16_round_pair, swz_reduce32, fsw
import gen3
from gen3 import f2u, wave_lane, lane_decomp, tr_base_p128, tr_base_p256, ln_issue, ln_compute, gelu4

WS_QPART = 0x0
WS_FFNP = 0x80000
WS_QABS = 0x130000
WS_STATS = WS_QABS + 0x80000
WS_CTXP = WS_STATS + 0x20000
WS_ATTP = WS_CTXP + 0x100000
WS_FFNO = WS_ATTP + 0x80000
WS_FL = WS_FFNO + 43 * 16384
WS_OPART = 0x800000
WS_STAMP = 0xF000000
POLL_LIMIT = 20000
STAMP = False
THROTTLE = 8
PZ_POL = ''
SLEEP = 4
SENT = True
QPOS = 16
RSW = 0
THR1 = 1
SBSLEEP = 8
LATE = False

SMAP = {0:0,1:1,2:2,3:3,5:4,8:5}
def stamp(a, i):
    if STAMP and i in SMAP:
        j = SMAP[i]
        a(f's_memtime s[{84+2*j}:{85+2*j}]')
        a('s_waitcnt lgkmcnt(0)')

uid = [0]
def poll_loads(a, issue_fn, regs, tmpv):
    uid[0] += 1
    n = uid[0]
    a('s_mov_b32 s72, 0')
    a.label(f'PL{n}')
    issue_fn()
    a('s_waitcnt vmcnt(0)')
    r = list(regs)
    a(f'v_max_u32 v{tmpv}, v{r[0]}, v{r[1]}')
    i = 2
    while i < len(r):
        if i + 1 < len(r):
            a(f'v_max3_u32 v{tmpv}, v{tmpv}, v{r[i]}, v{r[i+1]}')
            i += 2
        else:
            a(f'v_max_u32 v{tmpv}, v{tmpv}, v{r[i]}')
            i += 1
    a(f'v_cmp_eq_u32 vcc, -1, v{tmpv}')
    a('s_nop 3')
    a('s_cmp_eq_u64 vcc, 0')
    a(f's_cbranch_scc1 PD{n}')
    a('s_add_u32 s72, s72, 1')
    a(f's_cmp_lt_u32 s72, {POLL_LIMIT}')
    a(f's_cbranch_scc0 PD{n}')
    a(f's_sleep {SLEEP}')
    a(f's_branch PL{n}')
    a.label(f'PD{n}')

def tag4(a, r):
    for i in range(4):
        a(f'v_bfi_b32 v{r+i}, v248, s{96+i}, v{r+i}')

def tag_check(a, quads, acc, t1, t2):
    a(f'v_mov_b32 v{acc}, 0')
    for base, mask in quads:
        if mask is None:
            for i in (0, 2):
                a(f'v_xor_b32 v{t1}, s{96+i}, v{base+i}')
                a(f'v_xor_b32 v{t2}, s{97+i}, v{base+i+1}')
                a(f'v_or3_b32 v{acc}, v{acc}, v{t1}, v{t2}')
        else:
            a(f'v_xor_b32 v{t1}, s96, v{base}')
            a(f'v_xor_b32 v{t2}, s97, v{base+1}')
            a(f'v_or_b32 v{t1}, v{t1}, v{t2}')
            a(f'v_xor_b32 v{t2}, s98, v{base+2}')
            a(f'v_or_b32 v{t1}, v{t1}, v{t2}')
            a(f'v_xor_b32 v{t2}, s99, v{base+3}')
            a(f'v_or_b32 v{t1}, v{t1}, v{t2}')
            a(f'v_cndmask_b32 v{t1}, 0, v{t1}, s[{mask}:{mask+1}]')
            a(f'v_or_b32 v{acc}, v{acc}, v{t1}')
    a(f'v_and_b32 v{acc}, 0xff, v{acc}')
    a(f'v_cmp_ne_u32 vcc, 0, v{acc}')

def poll_gen(a, issue_fn, check_fn, sleep=None):
    uid[0] += 1
    n = uid[0]
    a('s_mov_b32 s72, 0')
    a.label(f'PL{n}')
    issue_fn()
    a('s_waitcnt vmcnt(0)')
    check_fn()
    a('s_nop 3')
    a('s_cmp_eq_u64 vcc, 0')
    a(f's_cbranch_scc1 PD{n}')
    a('s_add_u32 s72, s72, 1')
    a(f's_cmp_lt_u32 s72, {POLL_LIMIT}')
    a(f's_cbranch_scc0 PD{n}')
    a(f's_sleep {SLEEP if sleep is None else sleep}')
    a(f's_branch PL{n}')
    a.label(f'PD{n}')

def untag(a, quads):
    for base, mask in quads:
        for i in range(4):
            a(f'v_and_b32 v{base+i}, 0xffffff00, v{base+i}')

def poll_tag(a, issue_fn, quads, clean=True):
    poll_gen(a, issue_fn, lambda: tag_check(a, quads, 22, 23, 249))
    if clean:
        untag(a, quads)

def wsync(a, k, vaddr, vone, vtmp):
    uid[0] += 1
    n = uid[0]
    a('s_waitcnt lgkmcnt(0)')
    a('s_mov_b64 exec, 1')
    a(f'ds_add_u32 v{vaddr}, v{vone}')
    a('s_mov_b64 exec, -1')
    a.label(f'WS{n}')
    a(f'ds_read_b32 v{vtmp}, v{vaddr}')
    a('s_waitcnt lgkmcnt(0)')
    a(f'v_readfirstlane_b32 s71, v{vtmp}')
    a('s_nop 3')
    a(f's_cmp_ge_u32 s71, {4*k}')
    a(f's_cbranch_scc0 WS{n}')

K1_WQT = 0
K1_FT = 16384
K1_XNA = 32768
K1_XNF = K1_XNA + 2304
K1_LDS = K1_XNF + 1280

def gen_k1(a):
    a.label('k1_kernel')
    a('s_cmp_ge_u32 s2, 256')
    a('s_cbranch_scc1 K1_EXIT')
    a('s_load_dwordx2 s[4:5], s[0:1], 0')
    a('s_load_dwordx2 s[8:9], s[0:1], 16')
    a('s_load_dwordx4 s[12:15], s[0:1], 56')
    a('s_load_dwordx2 s[18:19], s[0:1], 96')
    wave_lane(a, 3, 2)
    lane_decomp(a)
    a('s_lshr_b32 s73, s2, 3')
    a('s_lshr_b32 s74, s2, 1')
    a('s_and_b32 s74, s74, 3')
    a('s_and_b32 s75, s2, 1')
    a('s_and_b32 s68, s2, 7')
    a('v_lshrrev_b32 v8, 3, v2')
    a('v_lshrrev_b32 v9, 1, v8')
    a('v_and_b32 v9, 1, v9')
    a('v_lshlrev_b32 v9, 1, v9')
    a('v_xor_b32 v9, v9, v5')
    a('v_lshlrev_b32 v9, 4, v9')
    a('v_lshl_add_u32 v10, v8, 13, v9')
    a('v_xor_b32 v11, 64, v10')
    a('s_mov_b32 s70, 2752')
    a('v_mul_lo_u32 v12, v8, s70')
    a('v_add_u32 v13, v12, v9')
    a('v_xor_b32 v9, 64, v9')
    a('v_add_u32 v12, v12, v9')
    for r in range(200, 204):
        a(f'v_mov_b32 v{r}, -1')
    a('v_lshlrev_b32 v21, 4, v2')
    a('s_waitcnt lgkmcnt(0)')
    srd(a, 20, 4, 8192)
    srd(a, 28, 8, 4194304)
    T = 60
    ln_issue(a, 20, 3, T)
    a('s_lshl_b32 s70, s74, 20')
    a('s_lshl_b32 s71, s3, 18')
    a('s_add_u32 s70, s70, s71')
    a('s_lshl_b32 s71, s73, 8')
    a('s_add_u32 s70, s70, s71')
    a('s_lshl_b32 s71, s75, 7')
    a('s_add_u32 s70, s70, s71')
    a('s_lshl_b32 s71, s3, 12')
    for i in range(4):
        a('s_mov_b32 m0, s71')
        a('s_add_u32 s71, s71, 1024')
        a(f'buffer_load_dwordx4 v{10 + (i & 1)}, s[28:31], s70 offen nt lds')
        a('s_add_u32 s70, s70, 65536')
    a('s_cmp_ge_u32 s3, 2')
    a('s_cselect_b32 s76, s14, s12')
    a('s_cselect_b32 s77, s15, s13')
    a('s_and_b32 s77, s77, 0xffff')
    a('s_mov_b32 s78, 1409024')
    a('s_mov_b32 s79, 0x00020000')
    a('s_and_b32 s70, s3, 1')
    a('s_lshl_b32 s70, s70, 5')
    a('s_lshl_b32 s71, s68, 6')
    a('s_add_u32 s70, s70, s71')
    a('s_mul_i32 s70, s70, 2752')
    a('s_lshl_b32 s71, s73, 7')
    a('s_add_u32 s70, s70, s71')
    a('s_cmp_ge_u32 s2, 176')
    a('s_cselect_b32 s70, 0x40000000, s70')
    a('s_lshl_b32 s71, s3, 12')
    a(f's_add_u32 s71, s71, {K1_FT}')
    for i in range(4):
        a('s_mov_b32 m0, s71')
        a('s_add_u32 s71, s71, 1024')
        a(f'buffer_load_dwordx4 v{13 - (i & 1)}, s[76:79], s70 offen nt lds')
        a('s_add_u32 s70, s70, 22016')
    srd(a, 40, 18, PZ_SIZE, PZ)
    a('s_lshl_b32 s70, s2, 2')
    a('s_add_u32 s70, s70, s3')
    a(f's_mul_i32 s70, s70, {PZ_PER_WAVE*1024}')
    for i in range(PZ_PER_WAVE):
        a(f'buffer_store_dwordx4 v[200:203], v21, s[40:43], s70 offen{PZ_POL}')
        a('s_add_u32 s70, s70, 1024')
    NP = PZ_PER_WAVE
    srd(a, 48, 18, 524288, WS_QPART)
    srd(a, 56, 18, 0xB0000, WS_FFNP)
    ln_compute(a, T, 8 + NP)
    a('s_mov_b32 s70, 288')
    a(f'v_mul_lo_u32 v14, v{T}, s70')
    a(f'v_and_b32 v15, 7, v{T+1}')
    a('v_lshl_add_u32 v14, v15, 5, v14')
    a(f'v_lshrrev_b32 v15, 3, v{T+1}')
    a('v_cmp_eq_u32 vcc, s74, v15')
    a('s_and_saveexec_b64 s[80:81], vcc')
    a(f'ds_write_b128 v14, v[{T+4}:{T+7}] offset:{K1_XNA}')
    a(f'ds_write_b128 v14, v[{T+8}:{T+11}] offset:{K1_XNA+16}')
    a('s_mov_b64 exec, s[80:81]')
    a('s_mov_b32 s70, 160')
    a(f'v_mul_lo_u32 v14, v{T}, s70')
    a(f'v_and_b32 v15, 3, v{T+1}')
    a('v_lshl_add_u32 v14, v15, 5, v14')
    a(f'v_lshrrev_b32 v15, 2, v{T+1}')
    a('v_cmp_eq_u32 vcc, s68, v15')
    a('s_and_saveexec_b64 s[80:81], vcc')
    a(f'ds_write_b128 v14, v[{T+4}:{T+7}] offset:{K1_XNF}')
    a(f'ds_write_b128 v14, v[{T+8}:{T+11}] offset:{K1_XNF+16}')
    a('s_mov_b64 exec, s[80:81]')
    a('s_mov_b32 s70, 288')
    a('v_mul_lo_u32 v15, v5, s70')
    a('v_lshl_add_u32 v15, v4, 4, v15')
    a('s_mov_b32 s70, 160')
    a('v_mul_lo_u32 v17, v5, s70')
    a('v_lshl_add_u32 v17, v4, 4, v17')
    a('s_lshl_b32 s69, s3, 1')
    tr_base_p128(a, 18, 19, 0, 69)
    for r in range(24, 36):
        a(f'v_mov_b32 v{r}, 0')
    a('v_lshlrev_b32 v19, 9, v5')
    a('v_lshl_add_u32 v19, v4, 4, v19')
    a('s_lshl_b32 s82, s73, 14')
    a('s_lshl_b32 s71, s74, 12')
    a('s_add_u32 s82, s82, s71')
    a('s_lshl_b32 s71, s75, 8')
    a('s_add_u32 s82, s82, s71')
    a('s_lshl_b32 s71, s3, 6')
    a('s_add_u32 s82, s82, s71')
    a('s_mov_b32 s70, 5632')
    a('v_mul_lo_u32 v20, v5, s70')
    a('v_lshl_add_u32 v20, v4, 4, v20')
    a('s_mul_i32 s83, s68, 45056')
    a('s_lshl_b32 s71, s73, 8')
    a('s_add_u32 s83, s83, s71')
    a('s_lshl_b32 s71, s3, 6')
    a('s_add_u32 s83, s83, s71')
    a('s_cmp_ge_u32 s2, 176')
    a('s_cselect_b32 s83, 0x40000000, s83')
    a(f's_waitcnt vmcnt({4+NP}) lgkmcnt(0)')
    a('s_barrier')
    for ks in range(4):
        a(f'ds_read_b128 v[{36+8*ks}:{39+8*ks}], v15 offset:{K1_XNA+ks*64}')
        a(f'ds_read_b64_tr_b16 v[{40+8*ks}:{41+8*ks}], v18 offset:{K1_WQT+ks*4096}')
        a(f'ds_read_b64_tr_b16 v[{42+8*ks}:{43+8*ks}], v18 offset:{K1_WQT+ks*4096+512}')
    for ks in range(4):
        a(f's_waitcnt lgkmcnt({12-3*(ks+1)})')
        a(f'v_mfma_f32_16x16x32_bf16 v[24:27], v[{40+8*ks}:{43+8*ks}], v[{36+8*ks}:{39+8*ks}], v[24:27]')
    a(f's_waitcnt vmcnt({NP})')
    a.nop(8)
    a('buffer_store_dwordx4 v[24:27], v19, s[48:51], s82 offen')
    a('s_barrier')
    for ks in range(2):
        a(f'ds_read_b128 v[{36+4*ks}:{39+4*ks}], v17 offset:{K1_XNF+ks*64}')
    for mat in range(2):
        for ks in range(2):
            r = 44 + 8 * mat + 4 * ks
            a(f'ds_read_b64_tr_b16 v[{r}:{r+1}], v18 offset:{K1_FT+mat*8192+ks*4096}')
            a(f'ds_read_b64_tr_b16 v[{r+2}:{r+3}], v18 offset:{K1_FT+mat*8192+ks*4096+512}')
    a('s_waitcnt lgkmcnt(0)')
    for mat in range(2):
        for ks in range(2):
            r = 44 + 8 * mat + 4 * ks
            a(f'v_mfma_f32_16x16x32_bf16 v[{28+4*mat}:{31+4*mat}], v[{r}:{r+3}], v[{36+4*ks}:{39+4*ks}], v[{28+4*mat}:{31+4*mat}]')
    a.nop(10)
    a('buffer_store_dwordx4 v[28:31], v20, s[56:59], s83 offen')
    a('s_add_u32 s83, s83, 360448')
    a('buffer_store_dwordx4 v[32:35], v20, s[56:59], s83 offen')
    a.label('K1_EXIT')
    a('s_endpgm')

R0 = 131072
P_QB = R0
P_FS = R0 + 2304
P_HB = P_FS + 4096
P_WD = R0 + 9216
P_P = R0
P_ST = R0 + 8192
D_OT = 0
D_AL = 32768
D_CB = D_AL + 1024
D_OC = D_CB + 8192
D_CX = D_OC + 1280
D_WUV = 46080
D_WO = D_WUV + 16384
D_FA = 81920
F_FS = 90112
F_HB = 94208
F_WD = 97280
KP_LDS = 163840

A_WQT = R0
A_XNA = R0 + 16384
A_XNF = A_XNA + 2304
A_QB = R0 + 20480
A_CNT = R0 + 23552
KNAME = 'parallel_sum__compressed_kv_cla__geglu_ffn__decode_kernel'
def srd_inplace(a, r, nbytes):
    a(f's_and_b32 s{r+1}, s{r+1}, 0xffff')
    a(f's_mov_b32 s{r+2}, {nbytes}')
    a(f's_mov_b32 s{r+3}, 0x00020000')

def gen_kp(a):
    a.label(KNAME)
    a('s_cmp_ge_u32 s2, 256')
    a('s_cbranch_scc1 KP_EXIT')
    stamp(a, 0)
    a('s_load_dwordx4 s[4:7], s[0:1], 0')
    a('s_load_dwordx2 s[28:29], s[0:1], 16')
    a('s_load_dwordx4 s[8:11], s[0:1], 24')
    a('s_load_dwordx2 s[12:13], s[0:1], 40')
    a('s_load_dwordx2 s[36:37], s[0:1], 56')
    a('s_load_dwordx2 s[40:41], s[0:1], 64')
    a('s_load_dwordx2 s[14:15], s[0:1], 72')
    a('s_load_dwordx2 s[16:17], s[0:1], 80')
    a('s_load_dwordx2 s[44:45], s[0:1], 88')
    a('s_load_dwordx2 s[18:19], s[0:1], 96')
    wave_lane(a, 3, 2)
    a('s_waitcnt lgkmcnt(0)')
    srd(a, 24, 6, 33554432)
    a('s_cmp_ge_u32 s3, 4')
    a('s_cbranch_scc1 KP_LOADER')
    a('v_lshlrev_b32 v30, 4, v2')
    a('v_mov_b32 v248, 0xff')
    srd_inplace(a, 44, 256)
    a('s_or_b32 s70, s2, s3')
    a('s_cmp_lg_u32 s70, 0')
    a('s_cbranch_scc1 KP_NONON')
    a('s_memrealtime s[70:71]')
    a('s_waitcnt lgkmcnt(0)')
    a('s_or_b32 s70, s70, 1')
    a('v_mov_b32 v22, s70')
    a('v_mov_b32 v23, 0')
    a('s_mov_b64 exec, 1')
    a('buffer_store_dword v22, v23, s[44:47], 0 offen sc1')
    a('s_mov_b64 exec, -1')
    a.label('KP_NONON')
    srd(a, 20, 4, 8192)
    T = 60
    ln_issue(a, 20, 3, T)
    lane_decomp(a)
    a('s_lshr_b32 s73, s2, 3')
    a('s_and_b32 s68, s2, 7')
    a('s_lshr_b32 s74, s2, 1')
    a('s_and_b32 s74, s74, 3')
    a('s_and_b32 s75, s2, 1')
    a('v_lshrrev_b32 v8, 3, v2')
    srd_inplace(a, 28, 4194304)
    a('v_lshrrev_b32 v9, 1, v8')
    a('v_and_b32 v9, 1, v9')
    a('v_lshlrev_b32 v9, 1, v9')
    a('v_xor_b32 v9, v9, v5')
    a('v_lshlrev_b32 v9, 4, v9')
    a('v_lshl_add_u32 v10, v8, 13, v9')
    a('v_xor_b32 v11, 64, v10')
    a('s_lshl_b32 s70, s74, 20')
    a('s_lshl_b32 s71, s3, 18')
    a('s_add_u32 s70, s70, s71')
    a('s_lshl_b32 s71, s73, 8')
    a('s_add_u32 s70, s70, s71')
    a('s_lshl_b32 s71, s75, 7')
    a('s_add_u32 s70, s70, s71')
    a('s_lshl_b32 s71, s3, 12')
    a(f's_add_u32 s71, s71, {A_WQT}')
    for i in range(4):
        a('s_mov_b32 m0, s71')
        a('s_add_u32 s71, s71, 1024')
        a(f'buffer_load_dwordx4 v{10 + (i & 1)}, s[28:31], s70 offen nt lds')
        a('s_add_u32 s70, s70, 65536')
    srd(a, 32, 8, 4194304)
    a('v_lshlrev_b32 v12, 13, v3')
    a('v_lshl_add_u32 v12, v4, 4, v12')
    a('s_lshl_b32 s70, s68, 19')
    a('s_lshl_b32 s71, s3, 17')
    a('s_add_u32 s70, s70, s71')
    a('s_lshl_b32 s71, s73, 8')
    a('s_add_u32 s70, s70, s71')
    for st in range(4):
        a(f'buffer_load_dwordx4 v[{104+4*st}:{107+4*st}], v12, s[32:35], s70 offen offset:{st*64} nt')
    a('s_cmp_ge_u32 s3, 2')
    a('s_cselect_b32 s76, s40, s36')
    a('s_cselect_b32 s77, s41, s37')
    srd_inplace(a, 76, 1409024)
    a('s_mov_b32 s70, 2752')
    a('v_mul_lo_u32 v14, v8, s70')
    a('v_lshl_add_u32 v14, v5, 4, v14')
    a('s_and_b32 s70, s3, 1')
    a('s_lshl_b32 s70, s70, 5')
    a('s_lshl_b32 s71, s68, 6')
    a('s_add_u32 s70, s70, s71')
    a('s_mul_i32 s70, s70, 2752')
    a('s_lshl_b32 s71, s73, 7')
    a('s_add_u32 s70, s70, s71')
    a('s_cmp_ge_u32 s2, 176')
    a('s_cselect_b32 s70, 0x40000000, s70')
    for i in range(4):
        a(f'buffer_load_dwordx4 v[{120+4*i}:{123+4*i}], v14, s[76:79], s70 offen nt')
        a('s_add_u32 s70, s70, 22016')
    a(f'v_mov_b32 v226, {A_CNT}')
    a('v_mov_b32 v227, 1')
    a('v_mov_b32 v228, 0')
    a('ds_write_b32 v226, v228')
    a('ds_write_b32 v226, v228 offset:4')
    a('ds_write_b32 v226, v228 offset:8')
    a('ds_write_b32 v226, v228 offset:12')
    a('s_waitcnt lgkmcnt(0)')
    a('s_barrier')
    a('v_lshlrev_b32 v13, 1, v4')
    a('v_xor_b32 v13, v13, v3')
    a('v_lshlrev_b32 v13, 4, v13')
    a('v_lshrrev_b32 v22, 5, v0')
    a('v_and_b32 v23, 31, v0')
    a('v_lshlrev_b32 v19, 9, v22')
    a('v_lshl_add_u32 v19, v23, 4, v19')
    a('s_mov_b32 s70, 288')
    a('v_mul_lo_u32 v20, v22, s70')
    a('v_lshl_add_u32 v20, v23, 3, v20')
    a('v_mul_lo_u32 v16, v5, s70')
    a('v_lshl_add_u32 v16, v4, 4, v16')
    a('v_lshlrev_b32 v29, 11, v5')
    a('v_lshl_add_u32 v29, v4, 4, v29')
    ln_compute(a, T, 12)
    a('s_mov_b32 s70, 288')
    a(f'v_mul_lo_u32 v14, v{T}, s70')
    a(f'v_and_b32 v15, 7, v{T+1}')
    a('v_lshl_add_u32 v14, v15, 5, v14')
    a(f'v_add_u32 v14, {A_XNA}, v14')
    a(f'v_lshrrev_b32 v15, 3, v{T+1}')
    a('v_cmp_eq_u32 vcc, s74, v15')
    a('s_and_saveexec_b64 s[80:81], vcc')
    a(f'ds_write_b128 v14, v[{T+4}:{T+7}]')
    a(f'ds_write_b128 v14, v[{T+8}:{T+11}] offset:16')
    a('s_mov_b64 exec, s[80:81]')
    a('s_mov_b32 s70, 160')
    a(f'v_mul_lo_u32 v14, v{T}, s70')
    a(f'v_and_b32 v15, 3, v{T+1}')
    a('v_lshl_add_u32 v14, v15, 5, v14')
    a(f'v_add_u32 v14, {A_XNF}, v14')
    a(f'v_lshrrev_b32 v15, 2, v{T+1}')
    a('v_cmp_eq_u32 vcc, s68, v15')
    a('s_and_saveexec_b64 s[80:81], vcc')
    a(f'ds_write_b128 v14, v[{T+4}:{T+7}]')
    a(f'ds_write_b128 v14, v[{T+8}:{T+11}] offset:16')
    a('s_mov_b64 exec, s[80:81]')
    a(f'v_add_u32 v15, {A_XNA}, v16')
    a('s_mov_b32 s70, 160')
    a('v_mul_lo_u32 v17, v5, s70')
    a('v_lshl_add_u32 v17, v4, 4, v17')
    a(f'v_add_u32 v17, {A_XNF}, v17')
    a('s_lshl_b32 s69, s3, 1')
    tr_base_p128(a, 18, 14, A_WQT, 69)
    for r in range(136, 148):
        a(f'v_mov_b32 v{r}, 0')
    a('s_waitcnt vmcnt(8)')
    wsync(a, 1, 226, 227, 228)
    stamp(a, 21)
    for ks in range(4):
        a(f'ds_read_b128 v[{36+8*ks}:{39+8*ks}], v15 offset:{ks*64}')
        a(f'ds_read_b64_tr_b16 v[{40+8*ks}:{41+8*ks}], v18 offset:{ks*4096}')
        a(f'ds_read_b64_tr_b16 v[{42+8*ks}:{43+8*ks}], v18 offset:{ks*4096+512}')
    for ks in range(4):
        a(f's_waitcnt lgkmcnt({12-3*(ks+1)})')
        a(f'v_mfma_f32_16x16x32_bf16 v[136:139], v[{40+8*ks}:{43+8*ks}], v[{36+8*ks}:{39+8*ks}], v[136:139]')
    a.label('KP_NL')
    a('ds_read_b32 v23, v226 offset:12')
    a('s_waitcnt lgkmcnt(0)')
    a('v_readfirstlane_b32 s100, v23')
    a('s_nop 3')
    a('s_cmp_eq_u32 s100, 0')
    a('s_cbranch_scc1 KP_NL')
    a('s_and_b32 s96, s100, 0xff')
    a('s_lshr_b32 s97, s100, 8')
    a('s_and_b32 s97, s97, 0xff')
    a('s_lshr_b32 s98, s100, 16')
    a('s_and_b32 s98, s98, 0xff')
    a('s_lshr_b32 s99, s100, 24')
    tag4(a, 136)
    stamp(a, 1)
    srd(a, 48, 18, 524288, WS_QPART)
    srd(a, 40, 18, 0xB0000, WS_FFNP)
    a('v_lshlrev_b32 v14, 9, v5')
    a('v_lshl_add_u32 v14, v4, 4, v14')
    a('s_lshl_b32 s70, s73, 14')
    a('s_lshl_b32 s71, s74, 12')
    a('s_add_u32 s70, s70, s71')
    a('s_lshl_b32 s71, s75, 8')
    a('s_add_u32 s70, s70, s71')
    a('s_lshl_b32 s71, s3, 6')
    a('s_add_u32 s70, s70, s71')
    a('buffer_store_dwordx4 v[136:139], v14, s[48:51], s70 offen sc1')
    wsync(a, 2, 226, 227, 228)
    a('v_lshl_add_u32 v22, v8, 7, v9')
    a('s_lshl_b32 s70, s3, 12')
    a(f's_add_u32 s70, s70, {A_WQT}')
    a('v_add_u32 v22, s70, v22')
    a('v_xor_b32 v23, 64, v22')
    a('s_waitcnt vmcnt(1)')
    for i in range(4):
        a(f'ds_write_b128 v{22 + (i & 1)}, v[{120+4*i}:{123+4*i}] offset:{i*1024}')
    wsync(a, 3, 226, 227, 228)
    for ks in range(2):
        a(f'ds_read_b128 v[{36+4*ks}:{39+4*ks}], v17 offset:{ks*64}')
    for mat in range(2):
        for ks in range(2):
            r = 44 + 8 * mat + 4 * ks
            a(f'ds_read_b64_tr_b16 v[{r}:{r+1}], v18 offset:{mat*8192+ks*4096}')
            a(f'ds_read_b64_tr_b16 v[{r+2}:{r+3}], v18 offset:{mat*8192+ks*4096+512}')
    a('s_waitcnt lgkmcnt(0)')
    for mat in range(2):
        for ks in range(2):
            r = 44 + 8 * mat + 4 * ks
            a(f'v_mfma_f32_16x16x32_bf16 v[{140+4*mat}:{143+4*mat}], v[{r}:{r+3}], v[{36+4*ks}:{39+4*ks}], v[{140+4*mat}:{143+4*mat}]')
    stamp(a, 22)
    a.nop(8)
    tag4(a, 140); tag4(a, 144)
    a('s_mov_b32 s70, 5632')
    a('v_mul_lo_u32 v14, v5, s70')
    a('v_lshl_add_u32 v14, v4, 4, v14')
    a('s_mul_i32 s70, s68, 45056')
    a('s_lshl_b32 s71, s73, 8')
    a('s_add_u32 s70, s70, s71')
    a('s_lshl_b32 s71, s3, 6')
    a('s_add_u32 s70, s70, s71')
    a('s_cmp_ge_u32 s2, 176')
    a('s_cselect_b32 s70, 0x40000000, s70')
    a('buffer_store_dwordx4 v[140:143], v14, s[40:43], s70 offen sc1')
    a('s_add_u32 s70, s70, 360448')
    a('buffer_store_dwordx4 v[144:147], v14, s[40:43], s70 offen sc1')
    srd(a, 52, 18, 524288, WS_QABS)
    srd(a, 56, 18, 43 * 16384, WS_FFNO)
    srd(a, 60, 18, 131072, WS_STATS)
    srd(a, 64, 18, 8388608, WS_OPART)
    a('s_lshr_b32 s74, s2, 2')
    a('s_and_b32 s75, s2, 3')
    a(f'v_add_u32 v21, {A_QB}, v20')
    a(f'v_add_u32 v24, {A_QB}, v16')
    a('s_lshl_b32 s69, s3, 2')
    tr_base_p256(a, 26, 28, 0, 69)
    a('s_add_u32 s69, s69, 2')
    tr_base_p256(a, 27, 28, 0, 69)
    def issue_qp():
        a('s_lshl_b32 s70, s73, 14')
        for m in range(4):
            a(f'buffer_load_dwordx4 v[{36+4*m}:{39+4*m}], v19, s[48:51], s70 offen sc1')
            a('s_add_u32 s70, s70, 4096')
    poll_tag(a, issue_qp, [(36,None),(40,None),(44,None),(48,None)])
    stamp(a, 30)
    for e in range(4):
        a(f'v_add_f32 v{36+e}, v{36+e}, v{40+e}')
        a(f'v_add_f32 v{44+e}, v{44+e}, v{48+e}')
        a(f'v_add_f32 v{36+e}, v{36+e}, v{44+e}')
    a('v_cvt_pk_bf16_f32 v40, v36, v37')
    a('v_cvt_pk_bf16_f32 v41, v38, v39')
    a('ds_write_b64 v21, v[40:41]')
    wsync(a, 4, 226, 227, 228)
    for st in range(4):
        a(f'ds_read_b128 v[{36+4*st}:{39+4*st}], v24 offset:{st*64}')
    for r in range(56, 60):
        a(f'v_mov_b32 v{r}, 0')
    a('v_lshlrev_b32 v25, 16, v5')
    a('v_lshl_add_u32 v25, v4, 4, v25')
    a('s_lshl_b32 s70, s73, 11')
    a('s_lshl_b32 s71, s68, 8')
    a('s_add_u32 s70, s70, s71')
    a('s_lshl_b32 s71, s3, 6')
    a('s_add_u32 s70, s70, s71')
    a('s_waitcnt lgkmcnt(0)')
    for st in range(4):
        a(f'v_mfma_f32_16x16x32_bf16 v[56:59], v[{104+4*st}:{107+4*st}], v[{36+4*st}:{39+4*st}], v[56:59]')
    a.nop(10)
    tag4(a, 56)
    a('buffer_store_dwordx4 v[56:59], v25, s[52:55], s70 offen sc1')
    wsync(a, 5, 226, 227, 228)
    stamp(a, 31)
    a('s_mov_b64 exec, 1')
    a('ds_add_u32 v226, v227 offset:4')
    a('s_mov_b64 exec, -1')
    a('s_lshr_b32 s69, s2, 5')
    def issue_sent():
        a('s_lshl_b32 s70, s69, 16')
        a('s_lshl_b32 s71, s3, 14')
        a('s_add_u32 s70, s70, s71')
        a('buffer_load_dwordx4 v[128:131], v30, s[52:55], s70 offen sc1')
        a('buffer_load_dwordx4 v[132:135], v30, s[52:55], s70 offen offset:1024 sc1')
    poll_tag(a, issue_sent, [(128,None),(132,None)])
    def issue_qabs():
        a('s_lshl_b32 s70, s69, 16')
        a('s_lshl_b32 s71, s3, 14')
        a('s_add_u32 s70, s70, s71')
        a('s_add_u32 s70, s70, 2048')
        for i in range(2, 16):
            a(f'buffer_load_dwordx4 v[{128+4*i}:{131+4*i}], v30, s[52:55], s70 offen sc1')
            a('s_add_u32 s70, s70, 1024')
    poll_tag(a, issue_qabs, [(128+4*i,None) for i in range(2, 16)])
    a('s_cmp_lg_u32 s3, 2')
    a('s_cbranch_scc1 KP_NOW2')
    a.label('KP_W2L')
    a('ds_read_b32 v228, v226 offset:4')
    a('s_waitcnt lgkmcnt(0)')
    a('v_readfirstlane_b32 s71, v228')
    a('s_nop 3')
    a('s_cmp_ge_u32 s71, 4')
    a('s_cbranch_scc0 KP_W2L')
    a.label('KP_NOW2')
    a('v_lshrrev_b32 v14, 1, v2')
    a('v_lshlrev_b32 v14, 4, v14')
    a('s_and_b32 s70, s3, 1')
    a('s_lshl_b32 s70, s70, 5')
    a('v_xor_b32 v14, s70, v14')
    a('v_and_b32 v15, 1, v2')
    a('v_lshlrev_b32 v15, 3, v15')
    a('s_lshl_b32 s71, s3, 13')
    a(f's_add_u32 s71, s71, {R0}')
    a('v_add_u32 v15, s71, v15')
    for i in range(8):
        a(f'v_xor_b32 v9, {(((i & 3) << 2) | (i >> 2)) << 4}, v14')
        a('v_add_u32 v9, v9, v15')
        for p in range(2):
            r = 128 + 4 * (2 * i + p)
            a(f'v_cvt_pk_bf16_f32 v{r}, v{r}, v{r+1}')
            a(f'v_cvt_pk_bf16_f32 v{r+1}, v{r+2}, v{r+3}')
            a(f'ds_write_b64 v9, v[{r}:{r+1}] offset:{i*1024+p*512}')
    a('v_lshlrev_b32 v30, 4, v2')
    a('s_lshr_b32 s69, s2, 5')
    stamp(a, 2)
    a('v_and_b32 v224, 31, v2')
    a('v_lshrrev_b32 v225, 5, v2')
    a('v_and_b32 v9, 3, v224')
    a('v_lshlrev_b32 v9, 2, v9')
    a('v_lshrrev_b32 v10, 2, v224')
    a('v_and_b32 v10, 3, v10')
    a('v_or_b32 v9, v9, v10')
    a('v_xor_b32 v9, v9, v225')
    a('v_lshlrev_b32 v10, 10, v224')
    a('s_lshl_b32 s70, s3, 15')
    a('v_add_u32 v11, s70, v10')
    a(f'v_add_u32 v12, {R0}, v10')
    for e in range(8):
        a(f'v_xor_b32 v14, {2*e}, v9')
        a(f'v_lshl_add_u32 v{232+e}, v14, 4, v11')
        a(f'v_lshl_add_u32 v{240+e}, v14, 4, v12')
    for r in range(32, 48):
        a(f'v_mov_b32 v{r}, 0')
    for r in range(80, 128):
        a(f'v_mov_b32 v{r}, 0')
    a('v_and_b32 v9, 1, v4')
    a('v_lshrrev_b32 v10, 1, v7')
    a('v_lshl_add_u32 v10, v9, 1, v10')
    a('v_lshl_add_u32 v11, v225, 2, v6')
    a('v_lshlrev_b32 v11, 10, v11')
    a('s_lshl_b32 s70, s3, 8')
    a('v_add_u32 v11, s70, v11')
    a('v_and_b32 v9, 1, v7')
    a('v_lshl_add_u32 v11, v9, 3, v11')
    for sec in range(2):
        a(f'v_add_u32 v9, {2*sec}, v225')
        a('v_xor_b32 v9, v9, v10')
        for t in range(4):
            a(f'v_xor_b32 v14, {t}, v6')
            a('v_lshl_add_u32 v14, v14, 2, v9')
            a(f'v_lshl_add_u32 v{160+2*t+sec}, v14, 4, v11')
            if sec:
                a(f'v_add_u32 v{160+2*t+sec}, 8192, v{160+2*t+sec}')
    a('s_waitcnt lgkmcnt(0)')
    a('s_barrier')
    stamp(a, 3)
    def deferred_w():
        srd(a, 36, 10, 4194304)
        a('v_lshlrev_b32 v14, 4, v3')
        a('v_lshl_add_u32 v14, v4, 13, v14')
        a('s_lshr_b32 s70, s68, 1')
        a('s_lshl_b32 s70, s70, 7')
        a('s_and_b32 s71, s68, 1')
        a('s_lshl_b32 s71, s71, 2')
        a('s_add_u32 s70, s70, s71')
        a('s_lshl_b32 s71, s3, 5')
        a('s_add_u32 s70, s70, s71')
        a('s_lshl_b32 s70, s70, 13')
        a('s_lshl_b32 s71, s73, 8')
        a('s_add_u32 s70, s70, s71')
        for i in range(4):
            a(f'buffer_load_dwordx4 v[{192+4*i}:{195+4*i}], v14, s[36:39], s70 offen nt')
            a('s_add_u32 s70, s70, 65536')
        srd(a, 44, 12, 4194304)
        a('v_lshlrev_b32 v14, 4, v5')
        a('v_lshl_add_u32 v14, v8, 10, v14')
        a('s_lshl_b32 s70, s73, 17')
        a('s_lshl_b32 s71, s3, 15')
        a('s_add_u32 s70, s70, s71')
        a('s_lshl_b32 s71, s68, 7')
        a('s_add_u32 s70, s70, s71')
        for i in range(4):
            a(f'buffer_load_dwordx4 v[{208+4*i}:{211+4*i}], v14, s[44:47], s70 offen nt')
            a('s_add_u32 s70, s70, 8192')
    def rd(st):
        return [f'ds_read_b128 v[{48+4*(st&3)}:{51+4*(st&3)}], v{232+(st&7)} offset:{(st>>3)*256}',
                f'ds_read_b128 v[{64+4*(st&3)}:{67+4*(st&3)}], v{240+(st&7)} offset:{(st>>3)*256}']
    for st in range(3):
        for s in rd(st): a(s)
    for st in range(32):
        if st + 3 < 32:
            for s in rd(st + 3): a(s)
            a('s_waitcnt lgkmcnt(6)')
        else:
            a(f's_waitcnt lgkmcnt({2*(31-st)})')
        a(f'v_mfma_f32_32x32x16_bf16 v[32:47], v[{48+4*(st&3)}:{51+4*(st&3)}], v[{64+4*(st&3)}:{67+4*(st&3)}], v[32:47]')
        if st == 2:
            deferred_w()
    a('s_barrier')
    stamp(a, 40)
    for r in range(64, 80):
        a(f'v_mov_b32 v{r}, 0')
    def deferred_f():
        srd(a, 40, 18, 0xB0000, WS_FFNP)
        srd(a, 28, 14, 1409024)
        a('s_mov_b32 s70, 5632')
        a('v_mul_lo_u32 v14, v8, s70')
        a('v_lshl_add_u32 v14, v5, 4, v14')
        a('s_and_b32 s70, s3, 1')
        a('s_mul_i32 s70, s70, 360448')
        a('s_lshr_b32 s71, s3, 1')
        a('s_mul_i32 s71, s71, 180224')
        a('s_add_u32 s70, s70, s71')
        a('s_lshl_b32 s71, s74, 7')
        a('s_add_u32 s70, s70, s71')
        a('s_cmp_ge_u32 s2, 172')
        a('s_cselect_b32 s70, 0x40000000, s70')
        a('v_mov_b32 v229, v14')
        a('s_mov_b32 s82, s70')
        for i in range(4):
            a(f'buffer_load_dwordx4 v[{232+4*i}:{235+4*i}], v14, s[40:43], s70 offen sc1')
            a('s_add_u32 s70, s70, 45056')
        a('v_lshlrev_b32 v14, 4, v3')
        a('v_lshl_add_u32 v14, v4, 10, v14')
        a('s_lshl_b32 s70, s74, 15')
        a('s_lshl_b32 s71, s3, 13')
        a('s_add_u32 s70, s70, s71')
        a('s_lshl_b32 s71, s75, 8')
        a('s_add_u32 s70, s70, s71')
        a('s_cmp_ge_u32 s2, 172')
        a('s_cselect_b32 s70, 0x40000000, s70')
        for i in range(2):
            a(f'buffer_load_dwordx4 v[{184+4*i}:{187+4*i}], v14, s[28:31], s70 offen nt')
            a('s_add_u32 s70, s70, 4096')
    a('s_mov_b32 s70, 0x3db504f3')
    for i in range(8):
        bf16_round_pair(a, 32+2*i, 33+2*i, 32+2*i, 33+2*i, 48)
        a(f'v_mul_f32 v{32+2*i}, s70, v{32+2*i}')
        a(f'v_mul_f32 v{33+2*i}, s70, v{33+2*i}')
        bf16_round_pair(a, 32+2*i, 33+2*i, 32+2*i, 33+2*i, 48)
    a('v_max3_f32 v48, v32, v33, v34')
    for i in range(35, 47, 2):
        a(f'v_max3_f32 v48, v48, v{i}, v{i+1}')
    a('v_max_f32 v48, v48, v47')
    a('v_mov_b32 v49, v48')
    a('s_nop 1')
    a('v_permlane32_swap_b32 v48, v49')
    a('v_max_f32 v48, v48, v49')
    a('v_lshlrev_b32 v11, 2, v224')
    a(f'v_add_u32 v11, {P_ST}, v11')
    a('s_lshl_b32 s70, s3, 7')
    a('v_add_u32 v12, s70, v11')
    a('ds_write_b32 v12, v48')
    a('s_waitcnt lgkmcnt(0)')
    a('s_barrier')
    a('ds_read_b32 v48, v11')
    a('ds_read_b32 v49, v11 offset:128')
    a('ds_read_b32 v50, v11 offset:256')
    a('ds_read_b32 v51, v11 offset:384')
    a('s_waitcnt lgkmcnt(0)')
    a('v_max3_f32 v48, v48, v49, v50')
    a('v_max_f32 v48, v48, v51')
    a('s_mov_b32 s70, 0x3fb8aa3b')
    a('v_mul_f32 v49, s70, v48')
    for i in range(16):
        a(f'v_fma_f32 v{32+i}, v{32+i}, s70, -v49')
        a(f'v_exp_f32 v{32+i}, v{32+i}')
    a('s_nop 0')
    a('v_add_f32 v50, v32, v33')
    for i in range(2, 16):
        a(f'v_add_f32 v50, v50, v{32+i}')
    a('v_mov_b32 v51, v50')
    a('s_nop 1')
    a('v_permlane32_swap_b32 v50, v51')
    a('v_add_f32 v50, v50, v51')
    a('ds_write_b32 v12, v50 offset:512')
    for i in range(8):
        a(f'v_cvt_pk_bf16_f32 v{52+i}, v{32+2*i}, v{33+2*i}')
    a('s_lshl_b32 s70, s3, 11')
    a(f's_add_u32 s70, s70, {P_P}')
    a('v_add_u32 v14, s70, v30')
    a('ds_write_b128 v14, v[52:55]')
    a('ds_write_b128 v14, v[56:59] offset:1024')
    a('s_waitcnt lgkmcnt(0)')
    a('s_barrier')
    stamp(a, 41)
    a('ds_read_b32 v50, v11 offset:512')
    a('ds_read_b32 v51, v11 offset:640')
    a('ds_read_b32 v52, v11 offset:768')
    a('ds_read_b32 v53, v11 offset:896')
    a(f'v_add_u32 v14, {P_P}, v30')
    for u in range(8):
        a(f'ds_read_b128 v[{128+4*u}:{131+4*u}], v14 offset:{u*1024}')
    def trrd(u, t, buf):
        off = (u & 3) * 16384
        return [f'ds_read_b64_tr_b16 v[{buf}:{buf+1}], v{160+2*t} offset:{off}',
                f'ds_read_b64_tr_b16 v[{buf+2}:{buf+3}], v{161+2*t} offset:{off}']
    seq = [(u, t) for u in range(8) for t in range(4)]
    bufs = [168, 172, 176, 180]
    def issue(idx):
        u, t = seq[idx]
        if u == 4 and t == 0:
            for r in range(160, 168):
                a(f'v_add_u32 v{r}, 0x10000, v{r}')
        for s in trrd(u, t, bufs[idx & 3]):
            a(s)
    for idx in range(3):
        issue(idx)
    a('s_waitcnt lgkmcnt(6)')
    a('v_add_f32 v50, v50, v51')
    a('v_add_f32 v52, v52, v53')
    a('v_add_f32 v49, v50, v52')
    a('v_mov_b32 v230, v48')
    a('v_mov_b32 v231, v49')
    for idx in range(32):
        u, t = seq[idx]
        if idx + 3 < 32:
            issue(idx + 3)
            a('s_waitcnt lgkmcnt(6)')
        else:
            a(f's_waitcnt lgkmcnt({2*(31-idx)})')
        b = bufs[idx & 3]
        a(f'v_mfma_f32_32x32x16_bf16 v[{64+16*t}:{79+16*t}], v[{b}:{b+3}], v[{128+4*u}:{131+4*u}], v[{64+16*t}:{79+16*t}]')
        if idx == 2:
            deferred_f()
    a('s_barrier')
    stamp(a, 4)
    a('v_and_b32 v9, 7, v224')
    a('v_lshlrev_b32 v10, 3, v225')
    a('s_lshl_b32 s70, s3, 4')
    a('v_add_u32 v10, s70, v10')
    a('v_lshlrev_b32 v11, 10, v224')
    a.nop(6)
    for t in range(4):
        for i in range(8):
            a(f'v_cvt_pk_bf16_f32 v{128+8*t+i}, v{64+16*t+2*i}, v{65+16*t+2*i}')
        for i in range(2):
            a(f'v_xor_b32 v14, {2*t+i}, v9')
            a('v_add_u32 v14, v14, v10')
            a('v_lshl_add_u32 v14, v14, 4, v11')
            a(f'ds_write_b128 v14, v[{128+8*t+4*i}:{131+8*t+4*i}]')
    a('s_waitcnt lgkmcnt(0)')
    a('s_barrier')
    stamp(a, 42)
    a('s_lshl_b32 s70, s3, 13')
    a('s_lshl_b32 s71, s2, 15')
    a('s_add_u32 s71, s71, s70')
    for i in range(8):
        a(f'v_xor_b32 v14, {i << 4}, v30')
        a('v_add_u32 v14, s70, v14')
        a(f'ds_read_b128 v[{128+4*i}:{131+4*i}], v14 offset:{i*1024}')
    for i in range(8):
        a(f's_waitcnt lgkmcnt({7-i})')
        a(f'buffer_store_dwordx4 v[{128+4*i}:{131+4*i}], v30, s[64:67], s71 offen sc1')
        a('s_add_u32 s71, s71, 1024')
    a('s_waitcnt vmcnt(8)')
    a('s_cmp_ge_u32 s2, 172')
    a('s_cbranch_scc1 KP_FPOK')
    tag_check(a, [(232,None),(236,None),(240,None),(244,None)], 22, 23, 249)
    a('s_nop 3')
    a('s_cmp_eq_u64 vcc, 0')
    a('s_cbranch_scc1 KP_FPOK')
    def issue_fp():
        a('s_mov_b32 s70, s82')
        for i in range(4):
            a(f'buffer_load_dwordx4 v[{232+4*i}:{235+4*i}], v229, s[40:43], s70 offen sc1')
            a('s_add_u32 s70, s70, 45056')
    poll_tag(a, issue_fp, [(232,None),(236,None),(240,None),(244,None)], clean=False)
    a.label('KP_FPOK')
    untag(a, [(232,None),(236,None),(240,None),(244,None)])
    a('v_lshl_add_u32 v14, v4, 8, v13')
    a('s_and_b32 s70, s3, 1')
    a('s_lshl_b32 s70, s70, 7')
    a('v_xor_b32 v14, s70, v14')
    a('s_lshl_b32 s70, s3, 11')
    a(f's_add_u32 s70, s70, {F_WD}')
    a('v_add_u32 v14, s70, v14')
    a('ds_write_b128 v14, v[184:187]')
    a('ds_write_b128 v14, v[188:191] offset:1024')
    for e in range(4):
        a(f'v_add_f32 v{232+e}, v{232+e}, v{236+e}')
        a(f'v_add_f32 v{240+e}, v{240+e}, v{244+e}')
        a(f'v_add_f32 v{232+e}, v{232+e}, v{240+e}')
    a('v_lshlrev_b32 v21, 4, v0')
    a(f'v_add_u32 v21, {F_FS}, v21')
    a('ds_write_b128 v21, v[232:235]')
    a('v_lshl_add_u32 v14, v4, 8, v13')
    a('s_lshl_b32 s70, s3, 12')
    a(f's_add_u32 s70, s70, {D_WUV}')
    a('v_add_u32 v14, s70, v14')
    a('v_xor_b32 v15, 128, v14')
    for i in range(4):
        a(f'ds_write_b128 v{14 + ((i >> 1) & 1)}, v[{192+4*i}:{195+4*i}] offset:{i*1024}')
    a('v_lshrrev_b32 v14, 1, v8')
    a('v_and_b32 v14, 1, v14')
    a('v_lshlrev_b32 v14, 1, v14')
    a('v_xor_b32 v14, v14, v5')
    a('v_lshlrev_b32 v14, 4, v14')
    a('v_lshl_add_u32 v14, v8, 7, v14')
    a('s_lshl_b32 s70, s3, 12')
    a(f's_add_u32 s70, s70, {D_WO}')
    a('v_add_u32 v14, s70, v14')
    a('v_xor_b32 v15, 64, v14')
    for i in range(4):
        a(f'ds_write_b128 v{14 + (i & 1)}, v[{208+4*i}:{211+4*i}] offset:{i*1024}')
    a('s_waitcnt vmcnt(0) lgkmcnt(0)')
    a('s_barrier')
    a('s_cmp_lg_u32 s3, 0')
    a('s_cbranch_scc1 KP_NOST')
    a('v_lshlrev_b32 v14, 12, v224')
    a('s_lshl_b32 s70, s2, 4')
    a('v_mov_b32 v232, s100')
    a('v_mov_b32 v233, s100')
    a('s_mov_b64 exec, 0xffffffff')
    a('buffer_store_dwordx4 v[230:233], v14, s[60:63], s70 offen sc1')
    a('s_mov_b64 exec, -1')
    a('ds_read_b128 v[96:99], v21')
    a('ds_read_b128 v[100:103], v21 offset:1024')
    a('ds_read_b128 v[104:107], v21 offset:2048')
    a('ds_read_b128 v[108:111], v21 offset:3072')
    a('s_waitcnt lgkmcnt(0)')
    for e in range(4):
        a(f'v_add_f32 v{96+e}, v{96+e}, v{104+e}')
        a(f'v_add_f32 v{100+e}, v{100+e}, v{108+e}')
    bf16_round_pair(a, 96, 97, 96, 97, 23)
    bf16_round_pair(a, 98, 99, 98, 99, 23)
    bf16_round_pair(a, 100, 101, 100, 101, 23)
    bf16_round_pair(a, 102, 103, 102, 103, 23)
    gelu4(a, [96, 97, 98, 99], 23)
    bf16_round_pair(a, 96, 97, 96, 97, 23)
    bf16_round_pair(a, 98, 99, 98, 99, 23)
    for e in range(4):
        a(f'v_mul_f32 v{96+e}, v{96+e}, v{100+e}')
    a('v_cvt_pk_bf16_f32 v104, v96, v97')
    a('v_cvt_pk_bf16_f32 v105, v98, v99')
    a('s_mov_b32 s70, 288')
    a('v_mul_lo_u32 v22, v8, s70')
    a('v_lshl_add_u32 v22, v5, 3, v22')
    a(f'v_add_u32 v22, {F_HB}, v22')
    a('ds_write_b64 v22, v[104:105]')
    a.label('KP_NOST')
    stamp(a, 5)
    a('s_waitcnt lgkmcnt(0)')
    a('s_barrier')
    a(f'v_add_u32 v22, {F_HB}, v16')
    a('ds_read_b128 v[32:35], v22')
    a(f'v_add_u32 v22, {F_WD}, v26')
    a(f'v_add_u32 v23, {F_WD}, v27')
    for tl in range(2):
        r = 64 + 4 * tl
        a(f'ds_read_b64_tr_b16 v[{r}:{r+1}], v{22+tl}')
        a(f'ds_read_b64_tr_b16 v[{r+2}:{r+3}], v{22+tl} offset:1024')
    for r in range(72, 80):
        a(f'v_mov_b32 v{r}, 0')
    a('s_lshl_b32 s70, s74, 14')
    a('s_lshl_b32 s71, s75, 9')
    a('s_add_u32 s70, s70, s71')
    a('s_lshl_b32 s71, s3, 7')
    a('s_add_u32 s70, s70, s71')
    a('s_cmp_ge_u32 s2, 172')
    a('s_cselect_b32 s70, 0x40000000, s70')
    a('s_waitcnt lgkmcnt(0)')
    for tl in range(2):
        r = 64 + 4 * tl
        a(f'v_mfma_f32_16x16x32_bf16 v[{72+4*tl}:{75+4*tl}], v[{r}:{r+3}], v[32:35], v[{72+4*tl}:{75+4*tl}]')
    a.nop(10)
    tag4(a, 72); tag4(a, 76)
    a('buffer_store_dwordx4 v[72:75], v29, s[56:59], s70 offen sc1')
    a('buffer_store_dwordx4 v[76:79], v29, s[56:59], s70 offen offset:64 sc1')
    srd(a, 48, 18, 1048576, WS_CTXP)
    srd(a, 40, 18, 524288, WS_ATTP)
    a('v_lshlrev_b32 v9, 4, v0')
    a('v_lshlrev_b32 v10, 20, v8')
    a('v_lshl_add_u32 v10, v5, 4, v10')
    def issue_S():
        a('s_lshl_b32 s70, s73, 12')
        a('buffer_load_dwordx4 v[32:35], v9, s[60:63], s70 offen sc1')
    poll_gen(a, issue_S, lambda: a('v_cmp_ne_u32 vcc, s100, v34'))
    a('s_barrier')
    a('s_lshl_b32 s70, s3, 18')
    a('s_lshl_b32 s71, s73, 10')
    a('s_add_u32 s70, s70, s71')
    a('s_lshl_b32 s71, s68, 7')
    a('s_add_u32 s70, s70, s71')
    for i in range(8):
        a(f'buffer_load_dwordx4 v[{64+4*i}:{67+4*i}], v10, s[64:67], s70 offen sc1')
        a('s_add_u32 s70, s70, 32768')
    stamp(a, 6)
    a('v_mov_b32 v34, v32')
    swz_reduce32(a, 34, 35, 'v_max_f32')
    a('v_sub_f32 v34, v32, v34')
    a('v_mul_f32 v34, 0x3fb8aa3b, v34')
    a('v_exp_f32 v34, v34')
    a('s_nop 0')
    a('v_mul_f32 v36, v34, v33')
    swz_reduce32(a, 36, 35, 'v_add_f32')
    a('v_rcp_f32 v36, v36')
    a('s_nop 0')
    a('v_mul_f32 v34, v34, v36')
    a('v_lshlrev_b32 v35, 2, v0')
    a(f'ds_write_b32 v35, v34 offset:{D_AL}')
    a('s_waitcnt lgkmcnt(0)')
    a('s_barrier')
    a('v_lshlrev_b32 v35, 7, v8')
    a('s_lshl_b32 s70, s3, 5')
    a('v_add_u32 v35, s70, v35')
    a(f'ds_read_b128 v[36:39], v35 offset:{D_AL}')
    a(f'ds_read_b128 v[40:43], v35 offset:{D_AL+16}')
    for r in range(48, 56):
        a(f'v_mov_b32 v{r}, 0')
    a('s_waitcnt lgkmcnt(0)')
    for i in range(8):
        a(f's_waitcnt vmcnt({7-i})')
        for e in range(4):
            a(f'v_lshlrev_b32 v22, 16, v{64+4*i+e}')
            a(f'v_and_b32 v23, 0xffff0000, v{64+4*i+e}')
            a(f'v_fmac_f32 v{48+2*e}, v22, v{36+i}')
            a(f'v_fmac_f32 v{49+2*e}, v23, v{36+i}')
    stamp(a, 10)
    a('v_lshlrev_b32 v35, 5, v0')
    a(f'ds_write_b128 v35, v[48:51] offset:{D_CB}')
    a(f'ds_write_b128 v35, v[52:55] offset:{D_CB+16}')
    a('s_waitcnt lgkmcnt(0)')
    a('s_barrier')
    a('s_cmp_lg_u32 s3, 0')
    a('s_cbranch_scc1 KP_NOSUM')
    for w in range(1, 4):
        a(f'ds_read_b128 v[{56+8*(w-1)}:{59+8*(w-1)}], v35 offset:{D_CB+w*2048}')
        a(f'ds_read_b128 v[{60+8*(w-1)}:{63+8*(w-1)}], v35 offset:{D_CB+w*2048+16}')
    a('s_waitcnt lgkmcnt(0)')
    for e in range(8):
        a(f'v_add_f32 v{48+e}, v{48+e}, v{56+e}')
        a(f'v_add_f32 v{64+e}, v{64+e}, v{72+e}')
        a(f'v_add_f32 v{48+e}, v{48+e}, v{64+e}')
    for e in range(4):
        a(f'v_cvt_pk_bf16_f32 v{56+e}, v{48+2*e}, v{49+2*e}')
    a('s_mov_b32 s70, 160')
    a('v_mul_lo_u32 v35, v8, s70')
    a('v_lshl_add_u32 v35, v5, 4, v35')
    a(f'ds_write_b128 v35, v[56:59] offset:{D_OC}')
    a.label('KP_NOSUM')
    a('s_mov_b32 s70, 160')
    a('v_mul_lo_u32 v24, v5, s70')
    a('v_lshl_add_u32 v24, v4, 4, v24')
    for r in range(96, 104):
        a(f'v_mov_b32 v{r}, 0')
    a('v_lshlrev_b32 v28, 9, v5')
    a('v_lshl_add_u32 v28, v4, 4, v28')
    a('s_lshl_b32 s70, s2, 12')
    a('s_lshl_b32 s71, s3, 7')
    a('s_add_u32 s70, s70, s71')
    a('s_waitcnt lgkmcnt(0)')
    a('s_barrier')
    for ks in range(2):
        a(f'ds_read_b128 v[{32+4*ks}:{35+4*ks}], v24 offset:{D_OC+ks*64}')
        for tl in range(2):
            r = 64 + 8 * ks + 4 * tl
            a(f'ds_read_b64_tr_b16 v[{r}:{r+1}], v{26+tl} offset:{D_WUV+ks*8192}')
            a(f'ds_read_b64_tr_b16 v[{r+2}:{r+3}], v{26+tl} offset:{D_WUV+ks*8192+1024}')
    a('s_waitcnt lgkmcnt(0)')
    for ks in range(2):
        for tl in range(2):
            r = 64 + 8 * ks + 4 * tl
            a(f'v_mfma_f32_16x16x32_bf16 v[{96+4*tl}:{99+4*tl}], v[{r}:{r+3}], v[{32+4*ks}:{35+4*ks}], v[{96+4*tl}:{99+4*tl}]')
    a.nop(10)
    tag4(a, 96); tag4(a, 100)
    a('buffer_store_dwordx4 v[96:99], v28, s[48:51], s70 offen sc1')
    a('buffer_store_dwordx4 v[100:103], v28, s[48:51], s70 offen offset:64 sc1')
    stamp(a, 11)
    a('s_lshl_b32 s69, s3, 1')
    tr_base_p128(a, 26, 27, D_WO, 69)
    def issue_ctx():
        a('s_lshl_b32 s70, s73, 15')
        for m in range(8):
            a(f'buffer_load_dwordx4 v[{64+4*m}:{67+4*m}], v19, s[48:51], s70 offen sc1')
            a('s_add_u32 s70, s70, 4096')
    poll_tag(a, issue_ctx, [(64+4*m,None) for m in range(8)])
    stamp(a, 7)
    for e in range(4):
        a(f'v_add_f32 v{64+e}, v{64+e}, v{68+e}')
        a(f'v_add_f32 v{72+e}, v{72+e}, v{76+e}')
        a(f'v_add_f32 v{80+e}, v{80+e}, v{84+e}')
        a(f'v_add_f32 v{88+e}, v{88+e}, v{92+e}')
        a(f'v_add_f32 v{64+e}, v{64+e}, v{72+e}')
        a(f'v_add_f32 v{80+e}, v{80+e}, v{88+e}')
        a(f'v_add_f32 v{64+e}, v{64+e}, v{80+e}')
    a('v_cvt_pk_bf16_f32 v68, v64, v65')
    a('v_cvt_pk_bf16_f32 v69, v66, v67')
    a(f'ds_write_b64 v20, v[68:69] offset:{D_CX}')
    for r in range(56, 60):
        a(f'v_mov_b32 v{r}, 0')
    a('s_lshl_b32 s70, s73, 14')
    a('s_lshl_b32 s71, s68, 8')
    a('s_add_u32 s70, s70, s71')
    a('s_lshl_b32 s71, s3, 6')
    a('s_add_u32 s70, s70, s71')
    a('s_waitcnt lgkmcnt(0)')
    a('s_barrier')
    for ks in range(4):
        a(f'ds_read_b128 v[{32+4*ks}:{35+4*ks}], v16 offset:{D_CX+ks*64}')
        a(f'ds_read_b64_tr_b16 v[{64+4*ks}:{65+4*ks}], v26 offset:{ks*4096}')
        a(f'ds_read_b64_tr_b16 v[{66+4*ks}:{67+4*ks}], v26 offset:{ks*4096+512}')
    for ks in range(4):
        a(f's_waitcnt lgkmcnt({12-3*(ks+1)})')
        a(f'v_mfma_f32_16x16x32_bf16 v[56:59], v[{64+4*ks}:{67+4*ks}], v[{32+4*ks}:{35+4*ks}], v[56:59]')
    a.nop(10)
    tag4(a, 56)
    a('buffer_store_dwordx4 v[56:59], v29, s[40:43], s70 offen sc1')
    stamp(a, 12)
    srd(a, 20, 4, 8192)
    srd(a, 28, 16, 8192)
    a('v_and_b32 v9, 3, v0')
    a('v_lshrrev_b32 v10, 2, v0')
    a('v_lshlrev_b32 v11, 14, v10')
    a('v_lshl_add_u32 v11, v9, 4, v11')
    a('v_lshlrev_b32 v12, 1, v0')
    a('s_lshl_b32 s69, s2, 5')
    a('buffer_load_ushort v40, v12, s[20:23], s69 offen')
    def issue_fin():
        a('s_lshl_b32 s70, s2, 6')
        a('buffer_load_dwordx4 v[64:67], v11, s[40:43], s70 offen sc1')
        a('buffer_load_dwordx4 v[68:71], v11, s[56:59], s70 offen sc1')
    a('v_cmp_gt_u32 s[76:77], 32, v10')
    a('v_cmp_gt_u32 s[78:79], 43, v10')
    a('s_nop 1')
    poll_tag(a, issue_fin, [(64,76),(68,78)])
    stamp(a, 13)
    a('v_lshlrev_b32 v14, 4, v0')
    a(f'v_add_u32 v14, {D_FA}, v14')
    a('ds_write_b128 v14, v[64:67]')
    a('ds_write_b128 v14, v[68:71] offset:4096')
    a('s_waitcnt lgkmcnt(0)')
    a('s_barrier')
    a('v_cmp_gt_u32 vcc, 16, v0')
    a('s_and_saveexec_b64 s[80:81], vcc')
    a('s_cbranch_execz KP_FIN')
    a('v_lshlrev_b32 v14, 2, v0')
    a(f'v_add_u32 v14, {D_FA}, v14')
    for g in range(32):
        a(f'ds_read_b32 v{64+g}, v14 offset:{g*64}')
    for g in range(43):
        a(f'ds_read_b32 v{128+g}, v14 offset:{4096+g*64}')
    a('s_waitcnt lgkmcnt(0)')
    for step in (16, 8, 4, 2, 1):
        for i in range(step):
            a(f'v_add_f32 v{64+i}, v{64+i}, v{64+i+step}')
    for i in range(11):
        a(f'v_add_f32 v{128+i}, v{128+i}, v{160+i}')
    for step in (16, 8, 4, 2, 1):
        for i in range(step):
            a(f'v_add_f32 v{128+i}, v{128+i}, v{128+i+step}')
    a('v_lshlrev_b32 v40, 16, v40')
    bf16_round_pair(a, 64, 128, 64, 128, 15)
    a('v_add_f32 v64, v64, v40')
    bf16_round_pair(a, 64, 65, 64, 64, 15)
    a('v_add_f32 v64, v64, v128')
    a('v_cvt_pk_bf16_f32 v64, v64, v64')
    a('buffer_store_short v64, v12, s[28:31], s69 offen')
    a.label('KP_FIN')
    a('s_mov_b64 exec, s[80:81]')
    if STAMP:
        stamp(a, 8)
        a('s_cmp_lg_u32 s3, 0')
        a('s_cbranch_scc1 KP_EXIT')
        srd(a, 76, 18, 1 << 20, WS_STAMP)
        a('s_lshl_b32 s80, s2, 7')
        a('v_mov_b32 v250, 0')
        for i in range(6):
            a(f'v_mov_b32 v251, s{84+2*i}')
            a(f'buffer_store_dword v251, v250, s[76:79], s80 offen offset:{4*i}')
    a('s_branch KP_EXIT')

    a.label('KP_LOADER')
    srd_inplace(a, 44, 256)
    a('s_sub_u32 s69, s3, 4')
    a('v_lshlrev_b32 v3, 4, v2')
    a('s_lshl_b32 s70, s2, 17')
    a('s_lshl_b32 s71, s69, 15')
    a('s_add_u32 s70, s70, s71')
    a(f'v_mov_b32 v5, {A_CNT}')
    a('s_mov_b32 s76, 0')
    a('s_barrier')
    a('s_cmp_lg_u32 s69, 3')
    a('s_cbranch_scc1 KP_LROW')
    a('v_mov_b32 v7, 0')
    def issue_n():
        a('buffer_load_dword v6, v7, s[44:47], 0 offen sc1')
    poll_gen(a, issue_n, lambda: a('v_cmp_eq_u32 vcc, 0, v6'), SBSLEEP)
    a('v_or_b32 v6, 1, v6')
    a('ds_write_b32 v5, v6 offset:12')
    a.label('KP_LROW')
    a('s_and_b32 s77, s76, 3')
    a('s_lshl_b32 s77, s77, 2')
    a('s_lshr_b32 s78, s76, 2')
    a('s_and_b32 s78, s78, 3')
    a('s_or_b32 s77, s77, s78')
    a('s_lshl_b32 s77, s77, 4')
    a('v_xor_b32 v4, s77, v3')
    a('s_mov_b32 m0, s71')
    a('s_add_u32 s71, s71, 1024')
    a('buffer_load_dwordx4 v4, s[24:27], s70 offen nt lds')
    a('s_add_u32 s70, s70, 1024')
    a(f's_cmp_ge_u32 s76, {RSW}')
    a('s_cbranch_scc1 KP_LT2')
    a(f's_waitcnt vmcnt({THR1})')
    a.label('KP_LT2')
    a(f's_waitcnt vmcnt({THROTTLE})')
    a('s_add_u32 s76, s76, 1')
    a('s_cmp_lt_u32 s76, 32')
    a('s_cbranch_scc1 KP_LROW')
    a('s_waitcnt vmcnt(0)')
    a('s_barrier')
    a.label('KP_EXIT')
    a('s_endpgm')

def main(out):
    a = Asm()
    a.raw(HDR.rstrip('\n'))
    a.raw(f'; @launch grid=(256,1,1) block=(512,1,1) lds={KP_LDS}')
    a.raw('.amdgcn_target "amdgcn-amd-amdhsa--gfx950"')
    a.raw('.text')
    a.raw(f'.globl {KNAME}')
    a.raw('.p2align 8')
    a.raw(f'.type {KNAME},@function')
    gen_kp(a)
    a.raw('.section .rodata,"a"')
    a.raw('.p2align 6')
    a.raw(kd(KNAME))
    open(out, 'w').write('\n'.join(a.L) + '\n')

if __name__ == '__main__':
    if 'stamp' in sys.argv[2:]: STAMP = True
    if 'head' in sys.argv[2:]: SMAP.clear(); SMAP.update({0:0,21:1,22:2,1:3,2:4,3:5})
    if 'chain' in sys.argv[2:]: SMAP.clear(); SMAP.update({0:0,1:1,30:2,31:3,2:4,3:5})
    if 'mid' in sys.argv[2:]: SMAP.clear(); SMAP.update({3:0,40:1,41:2,4:3,42:4,5:5})
    if 'tail' in sys.argv[2:]: SMAP.clear(); SMAP.update({0:0,5:1,6:2,7:3,13:4,8:5})
    for x in sys.argv[2:]:
        if x.startswith('thr'): THROTTLE = int(x[3:])
        if x.startswith('slp'): SLEEP = int(x[3:])
        if x == 'pzsc1': PZ_POL = ' sc1'
        if x == 'nosent': SENT = False
        if x.startswith('qpos'): QPOS = int(x[4:])
        if x.startswith('rsw'): RSW = int(x[3:])
        if x.startswith('tha'): THR1 = int(x[3:])
        if x.startswith('sbs'): SBSLEEP = int(x[3:])
        if x == 'late': LATE = True
    main(sys.argv[1] if len(sys.argv) > 1 else 'parallel_sum__compressed_kv_cla__geglu_ffn__decode.s')
```

```python
import sys, math, struct
sys.path.insert(0, 'work')
from gen1 import Asm, srd, HDR, kd, bf16_round_pair, swz_reduce32, fsw
import gen3
from gen3 import f2u, wave_lane, lane_decomp, tr_base_p128, tr_base_p256, ln_issue, ln_compute, gelu4

WS_QPART = 0x0
WS_FFNP = 0x80000
WS_QABS = 0x130000
WS_STATS = WS_QABS + 0x80000
WS_CTXP = WS_STATS + 0x20000
WS_ATTP = WS_CTXP + 0x100000
WS_FFNO = WS_ATTP + 0x80000
WS_FL = WS_FFNO + 43 * 16384
WS_OPART = 0x800000
WS_STAMP = 0xF000000
POLL_LIMIT = 20000
STAMP = False
THROTTLE = 8
PZ_POL = ''
SLEEP = 4
SENT = True
QPOS = 16
RSW = 0
THR1 = 1
SBSLEEP = 8
LATE = False

SMAP = {0:0,1:1,2:2,3:3,5:4,8:5}
def stamp(a, i):
    if STAMP and i in SMAP:
        j = SMAP[i]
        a(f's_memtime s[{84+2*j}:{85+2*j}]')
        a('s_waitcnt lgkmcnt(0)')

uid = [0]
def poll_loads(a, issue_fn, regs, tmpv):
    uid[0] += 1
    n = uid[0]
    a('s_mov_b32 s72, 0')
    a.label(f'PL{n}')
    issue_fn()
    a('s_waitcnt vmcnt(0)')
    r = list(regs)
    a(f'v_max_u32 v{tmpv}, v{r[0]}, v{r[1]}')
    i = 2
    while i < len(r):
        if i + 1 < len(r):
            a(f'v_max3_u32 v{tmpv}, v{tmpv}, v{r[i]}, v{r[i+1]}')
            i += 2
        else:
            a(f'v_max_u32 v{tmpv}, v{tmpv}, v{r[i]}')
            i += 1
    a(f'v_cmp_eq_u32 vcc, -1, v{tmpv}')
    a('s_nop 3')
    a('s_cmp_eq_u64 vcc, 0')
    a(f's_cbranch_scc1 PD{n}')
    a('s_add_u32 s72, s72, 1')
    a(f's_cmp_lt_u32 s72, {POLL_LIMIT}')
    a(f's_cbranch_scc0 PD{n}')
    a(f's_sleep {SLEEP}')
    a(f's_branch PL{n}')
    a.label(f'PD{n}')

def hm(a):
    a('s_mov_b32 exec_lo, 0x00ff00ff')
    a('s_mov_b32 exec_hi, 0x00ff00ff')
def fm(a):
    a('s_mov_b64 exec, -1')

def tag4(a, r):
    for i in range(4):
        a(f'v_bfi_b32 v{r+i}, v248, s{96+i}, v{r+i}')

def tag_check(a, quads, acc, t1, t2):
    a(f'v_mov_b32 v{acc}, 0')
    for base, mask in quads:
        if mask is None:
            for i in (0, 2):
                a(f'v_xor_b32 v{t1}, s{96+i}, v{base+i}')
                a(f'v_xor_b32 v{t2}, s{97+i}, v{base+i+1}')
                a(f'v_or3_b32 v{acc}, v{acc}, v{t1}, v{t2}')
        else:
            a(f'v_xor_b32 v{t1}, s96, v{base}')
            a(f'v_xor_b32 v{t2}, s97, v{base+1}')
            a(f'v_or_b32 v{t1}, v{t1}, v{t2}')
            a(f'v_xor_b32 v{t2}, s98, v{base+2}')
            a(f'v_or_b32 v{t1}, v{t1}, v{t2}')
            a(f'v_xor_b32 v{t2}, s99, v{base+3}')
            a(f'v_or_b32 v{t1}, v{t1}, v{t2}')
            a(f'v_cndmask_b32 v{t1}, 0, v{t1}, s[{mask}:{mask+1}]')
            a(f'v_or_b32 v{acc}, v{acc}, v{t1}')
    a(f'v_and_b32 v{acc}, 0xff, v{acc}')
    a(f'v_cmp_ne_u32 vcc, 0, v{acc}')

def poll_gen(a, issue_fn, check_fn, sleep=None):
    uid[0] += 1
    n = uid[0]
    a('s_mov_b32 s72, 0')
    a.label(f'PL{n}')
    issue_fn()
    a('s_waitcnt vmcnt(0)')
    check_fn()
    a('s_nop 3')
    a('s_cmp_eq_u64 vcc, 0')
    a(f's_cbranch_scc1 PD{n}')
    a('s_add_u32 s72, s72, 1')
    a(f's_cmp_lt_u32 s72, {POLL_LIMIT}')
    a(f's_cbranch_scc0 PD{n}')
    a(f's_sleep {SLEEP if sleep is None else sleep}')
    a(f's_branch PL{n}')
    a.label(f'PD{n}')

def untag(a, quads):
    for base, mask in quads:
        for i in range(4):
            a(f'v_and_b32 v{base+i}, 0xffffff00, v{base+i}')

def poll_tag(a, issue_fn, quads, clean=True):
    poll_gen(a, issue_fn, lambda: tag_check(a, quads, 22, 23, 249))
    if clean:
        untag(a, quads)

def wsync(a, k, vaddr, vone, vtmp):
    uid[0] += 1
    n = uid[0]
    a('s_waitcnt lgkmcnt(0)')
    a('s_mov_b64 exec, 1')
    a(f'ds_add_u32 v{vaddr}, v{vone}')
    a('s_mov_b64 exec, -1')
    a.label(f'WS{n}')
    a(f'ds_read_b32 v{vtmp}, v{vaddr}')
    a('s_waitcnt lgkmcnt(0)')
    a(f'v_readfirstlane_b32 s71, v{vtmp}')
    a('s_nop 3')
    a(f's_cmp_ge_u32 s71, {4*k}')
    a(f's_cbranch_scc0 WS{n}')

K1_WQT = 0
K1_FT = 16384
K1_XNA = 32768
K1_XNF = K1_XNA + 2304
K1_LDS = K1_XNF + 1280

def gen_k1(a):
    a.label('k1_kernel')
    a('s_cmp_ge_u32 s2, 256')
    a('s_cbranch_scc1 K1_EXIT')
    a('s_load_dwordx2 s[4:5], s[0:1], 0')
    a('s_load_dwordx2 s[8:9], s[0:1], 16')
    a('s_load_dwordx4 s[12:15], s[0:1], 56')
    a('s_load_dwordx2 s[18:19], s[0:1], 96')
    wave_lane(a, 3, 2)
    lane_decomp(a)
    a('s_lshr_b32 s73, s2, 3')
    a('s_lshr_b32 s74, s2, 1')
    a('s_and_b32 s74, s74, 3')
    a('s_and_b32 s75, s2, 1')
    a('s_and_b32 s68, s2, 7')
    a('v_lshrrev_b32 v8, 3, v2')
    a('v_lshrrev_b32 v9, 1, v8')
    a('v_and_b32 v9, 1, v9')
    a('v_lshlrev_b32 v9, 1, v9')
    a('v_xor_b32 v9, v9, v5')
    a('v_lshlrev_b32 v9, 4, v9')
    a('v_lshl_add_u32 v10, v8, 13, v9')
    a('v_xor_b32 v11, 64, v10')
    a('s_mov_b32 s70, 2752')
    a('v_mul_lo_u32 v12, v8, s70')
    a('v_add_u32 v13, v12, v9')
    a('v_xor_b32 v9, 64, v9')
    a('v_add_u32 v12, v12, v9')
    for r in range(200, 204):
        a(f'v_mov_b32 v{r}, -1')
    a('v_lshlrev_b32 v21, 4, v2')
    a('s_waitcnt lgkmcnt(0)')
    srd(a, 20, 4, 8192)
    srd(a, 28, 8, 4194304)
    T = 60
    ln_issue(a, 20, 3, T)
    a('s_lshl_b32 s70, s74, 20')
    a('s_lshl_b32 s71, s3, 18')
    a('s_add_u32 s70, s70, s71')
    a('s_lshl_b32 s71, s73, 8')
    a('s_add_u32 s70, s70, s71')
    a('s_lshl_b32 s71, s75, 7')
    a('s_add_u32 s70, s70, s71')
    a('s_lshl_b32 s71, s3, 12')
    for i in range(4):
        a('s_mov_b32 m0, s71')
        a('s_add_u32 s71, s71, 1024')
        a(f'buffer_load_dwordx4 v{10 + (i & 1)}, s[28:31], s70 offen nt lds')
        a('s_add_u32 s70, s70, 65536')
    a('s_cmp_ge_u32 s3, 2')
    a('s_cselect_b32 s76, s14, s12')
    a('s_cselect_b32 s77, s15, s13')
    a('s_and_b32 s77, s77, 0xffff')
    a('s_mov_b32 s78, 1409024')
    a('s_mov_b32 s79, 0x00020000')
    a('s_and_b32 s70, s3, 1')
    a('s_lshl_b32 s70, s70, 5')
    a('s_lshl_b32 s71, s68, 6')
    a('s_add_u32 s70, s70, s71')
    a('s_mul_i32 s70, s70, 2752')
    a('s_lshl_b32 s71, s73, 7')
    a('s_add_u32 s70, s70, s71')
    a('s_cmp_ge_u32 s2, 176')
    a('s_cselect_b32 s70, 0x40000000, s70')
    a('s_lshl_b32 s71, s3, 12')
    a(f's_add_u32 s71, s71, {K1_FT}')
    for i in range(4):
        a('s_mov_b32 m0, s71')
        a('s_add_u32 s71, s71, 1024')
        a(f'buffer_load_dwordx4 v{13 - (i & 1)}, s[76:79], s70 offen nt lds')
        a('s_add_u32 s70, s70, 22016')
    srd(a, 40, 18, PZ_SIZE, PZ)
    a('s_lshl_b32 s70, s2, 2')
    a('s_add_u32 s70, s70, s3')
    a(f's_mul_i32 s70, s70, {PZ_PER_WAVE*1024}')
    for i in range(PZ_PER_WAVE):
        a(f'buffer_store_dwordx4 v[200:203], v21, s[40:43], s70 offen{PZ_POL}')
        a('s_add_u32 s70, s70, 1024')
    NP = PZ_PER_WAVE
    srd(a, 48, 18, 524288, WS_QPART)
    srd(a, 56, 18, 0xB0000, WS_FFNP)
    ln_compute(a, T, 8 + NP)
    a('s_mov_b32 s70, 288')
    a(f'v_mul_lo_u32 v14, v{T}, s70')
    a(f'v_and_b32 v15, 7, v{T+1}')
    a('v_lshl_add_u32 v14, v15, 5, v14')
    a(f'v_lshrrev_b32 v15, 3, v{T+1}')
    a('v_cmp_eq_u32 vcc, s74, v15')
    a('s_and_saveexec_b64 s[80:81], vcc')
    a(f'ds_write_b128 v14, v[{T+4}:{T+7}] offset:{K1_XNA}')
    a(f'ds_write_b128 v14, v[{T+8}:{T+11}] offset:{K1_XNA+16}')
    a('s_mov_b64 exec, s[80:81]')
    a('s_mov_b32 s70, 160')
    a(f'v_mul_lo_u32 v14, v{T}, s70')
    a(f'v_and_b32 v15, 3, v{T+1}')
    a('v_lshl_add_u32 v14, v15, 5, v14')
    a(f'v_lshrrev_b32 v15, 2, v{T+1}')
    a('v_cmp_eq_u32 vcc, s68, v15')
    a('s_and_saveexec_b64 s[80:81], vcc')
    a(f'ds_write_b128 v14, v[{T+4}:{T+7}] offset:{K1_XNF}')
    a(f'ds_write_b128 v14, v[{T+8}:{T+11}] offset:{K1_XNF+16}')
    a('s_mov_b64 exec, s[80:81]')
    a('s_mov_b32 s70, 288')
    a('v_mul_lo_u32 v15, v5, s70')
    a('v_lshl_add_u32 v15, v4, 4, v15')
    a('s_mov_b32 s70, 160')
    a('v_mul_lo_u32 v17, v5, s70')
    a('v_lshl_add_u32 v17, v4, 4, v17')
    a('s_lshl_b32 s69, s3, 1')
    tr_base_p128(a, 18, 19, 0, 69)
    for r in range(24, 36):
        a(f'v_mov_b32 v{r}, 0')
    a('v_lshlrev_b32 v19, 9, v5')
    a('v_lshl_add_u32 v19, v4, 4, v19')
    a('s_lshl_b32 s82, s73, 14')
    a('s_lshl_b32 s71, s74, 12')
    a('s_add_u32 s82, s82, s71')
    a('s_lshl_b32 s71, s75, 8')
    a('s_add_u32 s82, s82, s71')
    a('s_lshl_b32 s71, s3, 6')
    a('s_add_u32 s82, s82, s71')
    a('s_mov_b32 s70, 5632')
    a('v_mul_lo_u32 v20, v5, s70')
    a('v_lshl_add_u32 v20, v4, 4, v20')
    a('s_mul_i32 s83, s68, 45056')
    a('s_lshl_b32 s71, s73, 8')
    a('s_add_u32 s83, s83, s71')
    a('s_lshl_b32 s71, s3, 6')
    a('s_add_u32 s83, s83, s71')
    a('s_cmp_ge_u32 s2, 176')
    a('s_cselect_b32 s83, 0x40000000, s83')
    a(f's_waitcnt vmcnt({4+NP}) lgkmcnt(0)')
    a('s_barrier')
    for ks in range(4):
        a(f'ds_read_b128 v[{36+8*ks}:{39+8*ks}], v15 offset:{K1_XNA+ks*64}')
        a(f'ds_read_b64_tr_b16 v[{40+8*ks}:{41+8*ks}], v18 offset:{K1_WQT+ks*4096}')
        a(f'ds_read_b64_tr_b16 v[{42+8*ks}:{43+8*ks}], v18 offset:{K1_WQT+ks*4096+512}')
    for ks in range(4):
        a(f's_waitcnt lgkmcnt({12-3*(ks+1)})')
        a(f'v_mfma_f32_16x16x32_bf16 v[24:27], v[{40+8*ks}:{43+8*ks}], v[{36+8*ks}:{39+8*ks}], v[24:27]')
    a(f's_waitcnt vmcnt({NP})')
    a.nop(8)
    a('buffer_store_dwordx4 v[24:27], v19, s[48:51], s82 offen')
    a('s_barrier')
    for ks in range(2):
        a(f'ds_read_b128 v[{36+4*ks}:{39+4*ks}], v17 offset:{K1_XNF+ks*64}')
    for mat in range(2):
        for ks in range(2):
            r = 44 + 8 * mat + 4 * ks
            a(f'ds_read_b64_tr_b16 v[{r}:{r+1}], v18 offset:{K1_FT+mat*8192+ks*4096}')
            a(f'ds_read_b64_tr_b16 v[{r+2}:{r+3}], v18 offset:{K1_FT+mat*8192+ks*4096+512}')
    a('s_waitcnt lgkmcnt(0)')
    for mat in range(2):
        for ks in range(2):
            r = 44 + 8 * mat + 4 * ks
            a(f'v_mfma_f32_16x16x32_bf16 v[{28+4*mat}:{31+4*mat}], v[{r}:{r+3}], v[{36+4*ks}:{39+4*ks}], v[{28+4*mat}:{31+4*mat}]')
    a.nop(10)
    a('buffer_store_dwordx4 v[28:31], v20, s[56:59], s83 offen')
    a('s_add_u32 s83, s83, 360448')
    a('buffer_store_dwordx4 v[32:35], v20, s[56:59], s83 offen')
    a.label('K1_EXIT')
    a('s_endpgm')

R0 = 131072
P_QB = R0
P_FS = R0 + 2304
P_HB = P_FS + 4096
P_WD = R0 + 9216
P_P = R0
P_ST = R0 + 8192
D_OT = 0
D_AL = 32768
D_CB = D_AL + 1024
D_OC = D_CB + 8192
D_CX = D_OC + 1280
D_WUV = 46080
D_WO = D_WUV + 16384
D_FA = 81920
F_FS = 90112
F_HB = 94208
F_WD = 97280
KP_LDS = 163840

A_WQT = R0
A_XNA = R0 + 16384
A_XNF = A_XNA + 2304
A_QB = R0 + 20480
A_CNT = R0 + 23552
KNAME = 'parallel_sum__compressed_kv_cla__geglu_ffn__decode_kernel'
def srd_inplace(a, r, nbytes):
    a(f's_and_b32 s{r+1}, s{r+1}, 0xffff')
    a(f's_mov_b32 s{r+2}, {nbytes}')
    a(f's_mov_b32 s{r+3}, 0x00020000')

def gen_kp(a):
    a.label(KNAME)
    a('s_cmp_ge_u32 s2, 256')
    a('s_cbranch_scc1 KP_EXIT')
    stamp(a, 0)
    a('s_load_dwordx4 s[4:7], s[0:1], 0')
    a('s_load_dwordx2 s[28:29], s[0:1], 16')
    a('s_load_dwordx4 s[8:11], s[0:1], 24')
    a('s_load_dwordx2 s[12:13], s[0:1], 40')
    a('s_load_dwordx2 s[36:37], s[0:1], 56')
    a('s_load_dwordx2 s[40:41], s[0:1], 64')
    a('s_load_dwordx2 s[14:15], s[0:1], 72')
    a('s_load_dwordx2 s[16:17], s[0:1], 80')
    a('s_load_dwordx2 s[44:45], s[0:1], 88')
    a('s_load_dwordx2 s[18:19], s[0:1], 96')
    wave_lane(a, 3, 2)
    a('s_waitcnt lgkmcnt(0)')
    srd(a, 24, 6, 33554432)
    a('s_cmp_ge_u32 s3, 4')
    a('s_cbranch_scc1 KP_LOADER')
    a('v_lshlrev_b32 v30, 4, v2')
    a('v_mov_b32 v248, 0xff')
    srd_inplace(a, 44, 256)
    a('s_or_b32 s70, s2, s3')
    a('s_cmp_lg_u32 s70, 0')
    a('s_cbranch_scc1 KP_NONON')
    a('s_memrealtime s[70:71]')
    a('s_waitcnt lgkmcnt(0)')
    a('s_or_b32 s70, s70, 1')
    a('v_mov_b32 v22, s70')
    a('v_mov_b32 v23, 0')
    a('s_mov_b64 exec, 1')
    a('buffer_store_dword v22, v23, s[44:47], 0 offen sc1')
    a('s_mov_b64 exec, -1')
    a.label('KP_NONON')
    srd(a, 20, 4, 8192)
    T = 60
    ln_issue(a, 20, 3, T)
    lane_decomp(a)
    a('s_lshr_b32 s73, s2, 3')
    a('s_and_b32 s68, s2, 7')
    a('s_lshr_b32 s74, s2, 1')
    a('s_and_b32 s74, s74, 3')
    a('s_and_b32 s75, s2, 1')
    a('v_lshrrev_b32 v8, 3, v2')
    srd_inplace(a, 28, 4194304)
    a('v_lshrrev_b32 v9, 1, v8')
    a('v_and_b32 v9, 1, v9')
    a('v_lshlrev_b32 v9, 1, v9')
    a('v_xor_b32 v9, v9, v5')
    a('v_lshlrev_b32 v9, 4, v9')
    a('v_lshl_add_u32 v10, v8, 13, v9')
    a('v_xor_b32 v11, 64, v10')
    a('s_lshl_b32 s70, s74, 20')
    a('s_lshl_b32 s71, s3, 18')
    a('s_add_u32 s70, s70, s71')
    a('s_lshl_b32 s71, s73, 8')
    a('s_add_u32 s70, s70, s71')
    a('s_lshl_b32 s71, s75, 7')
    a('s_add_u32 s70, s70, s71')
    a('s_lshl_b32 s71, s3, 12')
    a(f's_add_u32 s71, s71, {A_WQT}')
    for i in range(4):
        a('s_mov_b32 m0, s71')
        a('s_add_u32 s71, s71, 1024')
        a(f'buffer_load_dwordx4 v{10 + (i & 1)}, s[28:31], s70 offen nt lds')
        a('s_add_u32 s70, s70, 65536')
    srd(a, 32, 8, 4194304)
    a('v_lshlrev_b32 v12, 13, v3')
    a('v_lshl_add_u32 v12, v4, 4, v12')
    a('s_lshl_b32 s70, s68, 19')
    a('s_lshl_b32 s71, s3, 17')
    a('s_add_u32 s70, s70, s71')
    a('s_lshl_b32 s71, s73, 8')
    a('s_add_u32 s70, s70, s71')
    for st in range(4):
        a(f'buffer_load_dwordx4 v[{104+4*st}:{107+4*st}], v12, s[32:35], s70 offen offset:{st*64} nt')
    a('s_cmp_ge_u32 s3, 2')
    a('s_cselect_b32 s76, s40, s36')
    a('s_cselect_b32 s77, s41, s37')
    srd_inplace(a, 76, 1409024)
    a('s_mov_b32 s70, 2752')
    a('v_mul_lo_u32 v14, v8, s70')
    a('v_lshl_add_u32 v14, v5, 4, v14')
    a('s_and_b32 s70, s3, 1')
    a('s_lshl_b32 s70, s70, 5')
    a('s_lshl_b32 s71, s68, 6')
    a('s_add_u32 s70, s70, s71')
    a('s_mul_i32 s70, s70, 2752')
    a('s_lshl_b32 s71, s73, 7')
    a('s_add_u32 s70, s70, s71')
    a('s_cmp_ge_u32 s2, 176')
    a('s_cselect_b32 s70, 0x40000000, s70')
    for i in range(4):
        a(f'buffer_load_dwordx4 v[{120+4*i}:{123+4*i}], v14, s[76:79], s70 offen nt')
        a('s_add_u32 s70, s70, 22016')
    a(f'v_mov_b32 v226, {A_CNT}')
    a('v_mov_b32 v227, 1')
    a('v_mov_b32 v228, 0')
    a('ds_write_b32 v226, v228')
    a('ds_write_b32 v226, v228 offset:4')
    a('ds_write_b32 v226, v228 offset:8')
    a('ds_write_b32 v226, v228 offset:12')
    a('s_waitcnt lgkmcnt(0)')
    a('s_barrier')
    a('v_lshlrev_b32 v13, 1, v4')
    a('v_xor_b32 v13, v13, v3')
    a('v_lshlrev_b32 v13, 4, v13')
    a('v_lshrrev_b32 v22, 5, v0')
    a('v_and_b32 v23, 31, v0')
    a('v_lshlrev_b32 v19, 9, v22')
    a('v_lshl_add_u32 v19, v23, 4, v19')
    a('s_mov_b32 s70, 288')
    a('v_mul_lo_u32 v20, v22, s70')
    a('v_lshl_add_u32 v20, v23, 3, v20')
    a('v_mul_lo_u32 v16, v5, s70')
    a('v_lshl_add_u32 v16, v4, 4, v16')
    a('v_lshlrev_b32 v29, 11, v5')
    a('v_lshl_add_u32 v29, v4, 4, v29')
    ln_compute(a, T, 12)
    a('s_mov_b32 s70, 288')
    a(f'v_mul_lo_u32 v14, v{T}, s70')
    a(f'v_and_b32 v15, 7, v{T+1}')
    a('v_lshl_add_u32 v14, v15, 5, v14')
    a(f'v_add_u32 v14, {A_XNA}, v14')
    a(f'v_lshrrev_b32 v15, 3, v{T+1}')
    a('v_cmp_eq_u32 vcc, s74, v15')
    a('s_and_saveexec_b64 s[80:81], vcc')
    a(f'ds_write_b128 v14, v[{T+4}:{T+7}]')
    a(f'ds_write_b128 v14, v[{T+8}:{T+11}] offset:16')
    a('s_mov_b64 exec, s[80:81]')
    a('s_mov_b32 s70, 160')
    a(f'v_mul_lo_u32 v14, v{T}, s70')
    a(f'v_and_b32 v15, 3, v{T+1}')
    a('v_lshl_add_u32 v14, v15, 5, v14')
    a(f'v_add_u32 v14, {A_XNF}, v14')
    a(f'v_lshrrev_b32 v15, 2, v{T+1}')
    a('v_cmp_eq_u32 vcc, s68, v15')
    a('s_and_saveexec_b64 s[80:81], vcc')
    a(f'ds_write_b128 v14, v[{T+4}:{T+7}]')
    a(f'ds_write_b128 v14, v[{T+8}:{T+11}] offset:16')
    a('s_mov_b64 exec, s[80:81]')
    a(f'v_add_u32 v15, {A_XNA}, v16')
    a('s_mov_b32 s70, 160')
    a('v_mul_lo_u32 v17, v5, s70')
    a('v_lshl_add_u32 v17, v4, 4, v17')
    a(f'v_add_u32 v17, {A_XNF}, v17')
    a('s_lshl_b32 s69, s3, 1')
    tr_base_p128(a, 18, 14, A_WQT, 69)
    for r in range(136, 148):
        a(f'v_mov_b32 v{r}, 0')
    a('s_waitcnt vmcnt(8)')
    wsync(a, 1, 226, 227, 228)
    stamp(a, 21)
    for ks in range(4):
        a(f'ds_read_b128 v[{36+8*ks}:{39+8*ks}], v15 offset:{ks*64}')
        a(f'ds_read_b64_tr_b16 v[{40+8*ks}:{41+8*ks}], v18 offset:{ks*4096}')
        a(f'ds_read_b64_tr_b16 v[{42+8*ks}:{43+8*ks}], v18 offset:{ks*4096+512}')
    for ks in range(4):
        a(f's_waitcnt lgkmcnt({12-3*(ks+1)})')
        a(f'v_mfma_f32_16x16x32_bf16 v[136:139], v[{40+8*ks}:{43+8*ks}], v[{36+8*ks}:{39+8*ks}], v[136:139]')
    a.label('KP_NL')
    a('ds_read_b32 v23, v226 offset:12')
    a('s_waitcnt lgkmcnt(0)')
    a('v_readfirstlane_b32 s100, v23')
    a('s_nop 3')
    a('s_cmp_eq_u32 s100, 0')
    a('s_cbranch_scc1 KP_NL')
    a('s_and_b32 s96, s100, 0xff')
    a('s_lshr_b32 s97, s100, 8')
    a('s_and_b32 s97, s97, 0xff')
    a('s_lshr_b32 s98, s100, 16')
    a('s_and_b32 s98, s98, 0xff')
    a('s_lshr_b32 s99, s100, 24')
    tag4(a, 136)
    stamp(a, 1)
    srd(a, 48, 18, 524288, WS_QPART)
    srd(a, 40, 18, 0xB0000, WS_FFNP)
    a('v_lshlrev_b32 v14, 9, v5')
    a('v_lshl_add_u32 v14, v4, 4, v14')
    a('s_lshl_b32 s70, s73, 14')
    a('s_lshl_b32 s71, s74, 12')
    a('s_add_u32 s70, s70, s71')
    a('s_lshl_b32 s71, s75, 8')
    a('s_add_u32 s70, s70, s71')
    a('s_lshl_b32 s71, s3, 6')
    a('s_add_u32 s70, s70, s71')
    hm(a)
    a('buffer_store_dwordx4 v[136:139], v14, s[48:51], s70 offen sc1')
    fm(a)
    wsync(a, 2, 226, 227, 228)
    a('v_lshl_add_u32 v22, v8, 7, v9')
    a('s_lshl_b32 s70, s3, 12')
    a(f's_add_u32 s70, s70, {A_WQT}')
    a('v_add_u32 v22, s70, v22')
    a('v_xor_b32 v23, 64, v22')
    a('s_waitcnt vmcnt(1)')
    for i in range(4):
        a(f'ds_write_b128 v{22 + (i & 1)}, v[{120+4*i}:{123+4*i}] offset:{i*1024}')
    wsync(a, 3, 226, 227, 228)
    for ks in range(2):
        a(f'ds_read_b128 v[{36+4*ks}:{39+4*ks}], v17 offset:{ks*64}')
    for mat in range(2):
        for ks in range(2):
            r = 44 + 8 * mat + 4 * ks
            a(f'ds_read_b64_tr_b16 v[{r}:{r+1}], v18 offset:{mat*8192+ks*4096}')
            a(f'ds_read_b64_tr_b16 v[{r+2}:{r+3}], v18 offset:{mat*8192+ks*4096+512}')
    a('s_waitcnt lgkmcnt(0)')
    for mat in range(2):
        for ks in range(2):
            r = 44 + 8 * mat + 4 * ks
            a(f'v_mfma_f32_16x16x32_bf16 v[{140+4*mat}:{143+4*mat}], v[{r}:{r+3}], v[{36+4*ks}:{39+4*ks}], v[{140+4*mat}:{143+4*mat}]')
    stamp(a, 22)
    a.nop(8)
    tag4(a, 140); tag4(a, 144)
    a('s_mov_b32 s70, 5632')
    a('v_mul_lo_u32 v14, v5, s70')
    a('v_lshl_add_u32 v14, v4, 4, v14')
    a('s_mul_i32 s70, s68, 45056')
    a('s_lshl_b32 s71, s73, 8')
    a('s_add_u32 s70, s70, s71')
    a('s_lshl_b32 s71, s3, 6')
    a('s_add_u32 s70, s70, s71')
    a('s_cmp_ge_u32 s2, 176')
    a('s_cselect_b32 s70, 0x40000000, s70')
    hm(a)
    a('buffer_store_dwordx4 v[140:143], v14, s[40:43], s70 offen sc1')
    a('s_add_u32 s70, s70, 360448')
    a('buffer_store_dwordx4 v[144:147], v14, s[40:43], s70 offen sc1')
    fm(a)
    srd(a, 52, 18, 524288, WS_QABS)
    srd(a, 56, 18, 43 * 16384, WS_FFNO)
    srd(a, 60, 18, 131072, WS_STATS)
    srd(a, 64, 18, 8388608, WS_OPART)
    a('s_lshr_b32 s74, s2, 2')
    a('s_and_b32 s75, s2, 3')
    a(f'v_add_u32 v21, {A_QB}, v20')
    a(f'v_add_u32 v24, {A_QB}, v16')
    a('s_lshl_b32 s69, s3, 2')
    tr_base_p256(a, 26, 28, 0, 69)
    a('s_add_u32 s69, s69, 2')
    tr_base_p256(a, 27, 28, 0, 69)
    def issue_qp():
        a('s_lshl_b32 s70, s73, 14')
        for m in range(4):
            a(f'buffer_load_dwordx4 v[{36+4*m}:{39+4*m}], v19, s[48:51], s70 offen sc1')
            a('s_add_u32 s70, s70, 4096')
    poll_tag(a, issue_qp, [(36,None),(40,None),(44,None),(48,None)])
    stamp(a, 30)
    for e in range(4):
        a(f'v_add_f32 v{36+e}, v{36+e}, v{40+e}')
        a(f'v_add_f32 v{44+e}, v{44+e}, v{48+e}')
        a(f'v_add_f32 v{36+e}, v{36+e}, v{44+e}')
    a('v_cvt_pk_bf16_f32 v40, v36, v37')
    a('v_cvt_pk_bf16_f32 v41, v38, v39')
    a('ds_write_b64 v21, v[40:41]')
    wsync(a, 4, 226, 227, 228)
    for st in range(4):
        a(f'ds_read_b128 v[{36+4*st}:{39+4*st}], v24 offset:{st*64}')
    for r in range(56, 60):
        a(f'v_mov_b32 v{r}, 0')
    a('v_lshlrev_b32 v25, 16, v5')
    a('v_lshl_add_u32 v25, v4, 4, v25')
    a('s_lshl_b32 s70, s73, 11')
    a('s_lshl_b32 s71, s68, 8')
    a('s_add_u32 s70, s70, s71')
    a('s_lshl_b32 s71, s3, 6')
    a('s_add_u32 s70, s70, s71')
    a('s_waitcnt lgkmcnt(0)')
    for st in range(4):
        a(f'v_mfma_f32_16x16x32_bf16 v[56:59], v[{104+4*st}:{107+4*st}], v[{36+4*st}:{39+4*st}], v[56:59]')
    a.nop(10)
    tag4(a, 56)
    hm(a)
    a('buffer_store_dwordx4 v[56:59], v25, s[52:55], s70 offen sc1')
    fm(a)
    wsync(a, 5, 226, 227, 228)
    stamp(a, 31)
    a('s_mov_b64 exec, 1')
    a('ds_add_u32 v226, v227 offset:4')
    a('s_mov_b64 exec, -1')
    a('s_lshr_b32 s69, s2, 5')
    def issue_sent():
        a('s_lshl_b32 s70, s69, 16')
        a('s_lshl_b32 s71, s3, 14')
        a('s_add_u32 s70, s70, s71')
        a('buffer_load_dwordx4 v[128:131], v30, s[52:55], s70 offen sc1')
        a('buffer_load_dwordx4 v[132:135], v30, s[52:55], s70 offen offset:1024 sc1')
    poll_tag(a, issue_sent, [(128,None),(132,None)])
    def issue_qabs():
        a('s_lshl_b32 s70, s69, 16')
        a('s_lshl_b32 s71, s3, 14')
        a('s_add_u32 s70, s70, s71')
        a('s_add_u32 s70, s70, 2048')
        for i in range(2, 16):
            a(f'buffer_load_dwordx4 v[{128+4*i}:{131+4*i}], v30, s[52:55], s70 offen sc1')
            a('s_add_u32 s70, s70, 1024')
    poll_tag(a, issue_qabs, [(128+4*i,None) for i in range(2, 16)])
    a('s_cmp_lg_u32 s3, 2')
    a('s_cbranch_scc1 KP_NOW2')
    a.label('KP_W2L')
    a('ds_read_b32 v228, v226 offset:4')
    a('s_waitcnt lgkmcnt(0)')
    a('v_readfirstlane_b32 s71, v228')
    a('s_nop 3')
    a('s_cmp_ge_u32 s71, 4')
    a('s_cbranch_scc0 KP_W2L')
    a.label('KP_NOW2')
    a('v_lshrrev_b32 v14, 1, v2')
    a('v_lshlrev_b32 v14, 4, v14')
    a('s_and_b32 s70, s3, 1')
    a('s_lshl_b32 s70, s70, 5')
    a('v_xor_b32 v14, s70, v14')
    a('v_and_b32 v15, 1, v2')
    a('v_lshlrev_b32 v15, 3, v15')
    a('s_lshl_b32 s71, s3, 13')
    a(f's_add_u32 s71, s71, {R0}')
    a('v_add_u32 v15, s71, v15')
    for i in range(8):
        a(f'v_xor_b32 v9, {(((i & 3) << 2) | (i >> 2)) << 4}, v14')
        a('v_add_u32 v9, v9, v15')
        for p in range(2):
            r = 128 + 4 * (2 * i + p)
            a(f'v_cvt_pk_bf16_f32 v{r}, v{r}, v{r+1}')
            a(f'v_cvt_pk_bf16_f32 v{r+1}, v{r+2}, v{r+3}')
            a(f'ds_write_b64 v9, v[{r}:{r+1}] offset:{i*1024+p*512}')
    a('v_lshlrev_b32 v30, 4, v2')
    a('s_lshr_b32 s69, s2, 5')
    stamp(a, 2)
    a('v_and_b32 v224, 31, v2')
    a('v_lshrrev_b32 v225, 5, v2')
    a('v_and_b32 v9, 3, v224')
    a('v_lshlrev_b32 v9, 2, v9')
    a('v_lshrrev_b32 v10, 2, v224')
    a('v_and_b32 v10, 3, v10')
    a('v_or_b32 v9, v9, v10')
    a('v_xor_b32 v9, v9, v225')
    a('v_lshlrev_b32 v10, 10, v224')
    a('s_lshl_b32 s70, s3, 15')
    a('v_add_u32 v11, s70, v10')
    a(f'v_add_u32 v12, {R0}, v10')
    for e in range(8):
        a(f'v_xor_b32 v14, {2*e}, v9')
        a(f'v_lshl_add_u32 v{232+e}, v14, 4, v11')
        a(f'v_lshl_add_u32 v{240+e}, v14, 4, v12')
    for r in range(32, 48):
        a(f'v_mov_b32 v{r}, 0')
    for r in range(80, 128):
        a(f'v_mov_b32 v{r}, 0')
    a('v_and_b32 v9, 1, v4')
    a('v_lshrrev_b32 v10, 1, v7')
    a('v_lshl_add_u32 v10, v9, 1, v10')
    a('v_lshl_add_u32 v11, v225, 2, v6')
    a('v_lshlrev_b32 v11, 10, v11')
    a('s_lshl_b32 s70, s3, 8')
    a('v_add_u32 v11, s70, v11')
    a('v_and_b32 v9, 1, v7')
    a('v_lshl_add_u32 v11, v9, 3, v11')
    for sec in range(2):
        a(f'v_add_u32 v9, {2*sec}, v225')
        a('v_xor_b32 v9, v9, v10')
        for t in range(4):
            a(f'v_xor_b32 v14, {t}, v6')
            a('v_lshl_add_u32 v14, v14, 2, v9')
            a(f'v_lshl_add_u32 v{160+2*t+sec}, v14, 4, v11')
            if sec:
                a(f'v_add_u32 v{160+2*t+sec}, 8192, v{160+2*t+sec}')
    a('s_waitcnt lgkmcnt(0)')
    a('s_barrier')
    stamp(a, 3)
    def deferred_w():
        srd(a, 36, 10, 4194304)
        a('v_lshlrev_b32 v14, 4, v3')
        a('v_lshl_add_u32 v14, v4, 13, v14')
        a('s_lshr_b32 s70, s68, 1')
        a('s_lshl_b32 s70, s70, 7')
        a('s_and_b32 s71, s68, 1')
        a('s_lshl_b32 s71, s71, 2')
        a('s_add_u32 s70, s70, s71')
        a('s_lshl_b32 s71, s3, 5')
        a('s_add_u32 s70, s70, s71')
        a('s_lshl_b32 s70, s70, 13')
        a('s_lshl_b32 s71, s73, 8')
        a('s_add_u32 s70, s70, s71')
        for i in range(4):
            a(f'buffer_load_dwordx4 v[{192+4*i}:{195+4*i}], v14, s[36:39], s70 offen nt')
            a('s_add_u32 s70, s70, 65536')
        srd(a, 44, 12, 4194304)
        a('v_lshlrev_b32 v14, 4, v5')
        a('v_lshl_add_u32 v14, v8, 10, v14')
        a('s_lshl_b32 s70, s73, 17')
        a('s_lshl_b32 s71, s3, 15')
        a('s_add_u32 s70, s70, s71')
        a('s_lshl_b32 s71, s68, 7')
        a('s_add_u32 s70, s70, s71')
        for i in range(4):
            a(f'buffer_load_dwordx4 v[{208+4*i}:{211+4*i}], v14, s[44:47], s70 offen nt')
            a('s_add_u32 s70, s70, 8192')
    def rd(st):
        return [f'ds_read_b128 v[{48+4*(st&3)}:{51+4*(st&3)}], v{232+(st&7)} offset:{(st>>3)*256}',
                f'ds_read_b128 v[{64+4*(st&3)}:{67+4*(st&3)}], v{240+(st&7)} offset:{(st>>3)*256}']
    for st in range(3):
        for s in rd(st): a(s)
    for st in range(32):
        if st + 3 < 32:
            for s in rd(st + 3): a(s)
            a('s_waitcnt lgkmcnt(6)')
        else:
            a(f's_waitcnt lgkmcnt({2*(31-st)})')
        a(f'v_mfma_f32_32x32x16_bf16 v[32:47], v[{48+4*(st&3)}:{51+4*(st&3)}], v[{64+4*(st&3)}:{67+4*(st&3)}], v[32:47]')
        if st == 2:
            deferred_w()
    a('s_barrier')
    stamp(a, 40)
    for r in range(64, 80):
        a(f'v_mov_b32 v{r}, 0')
    def deferred_f():
        srd(a, 40, 18, 0xB0000, WS_FFNP)
        srd(a, 28, 14, 1409024)
        a('s_mov_b32 s70, 5632')
        a('v_mul_lo_u32 v14, v8, s70')
        a('v_lshl_add_u32 v14, v5, 4, v14')
        a('s_and_b32 s70, s3, 1')
        a('s_mul_i32 s70, s70, 360448')
        a('s_lshr_b32 s71, s3, 1')
        a('s_mul_i32 s71, s71, 180224')
        a('s_add_u32 s70, s70, s71')
        a('s_lshl_b32 s71, s74, 7')
        a('s_add_u32 s70, s70, s71')
        a('s_cmp_ge_u32 s2, 172')
        a('s_cselect_b32 s70, 0x40000000, s70')
        a('v_mov_b32 v229, v14')
        a('s_mov_b32 s82, s70')
        for i in range(4):
            a(f'buffer_load_dwordx4 v[{232+4*i}:{235+4*i}], v14, s[40:43], s70 offen sc1')
            a('s_add_u32 s70, s70, 45056')
        a('v_lshlrev_b32 v14, 4, v3')
        a('v_lshl_add_u32 v14, v4, 10, v14')
        a('s_lshl_b32 s70, s74, 15')
        a('s_lshl_b32 s71, s3, 13')
        a('s_add_u32 s70, s70, s71')
        a('s_lshl_b32 s71, s75, 8')
        a('s_add_u32 s70, s70, s71')
        a('s_cmp_ge_u32 s2, 172')
        a('s_cselect_b32 s70, 0x40000000, s70')
        for i in range(2):
            a(f'buffer_load_dwordx4 v[{184+4*i}:{187+4*i}], v14, s[28:31], s70 offen nt')
            a('s_add_u32 s70, s70, 4096')
    a('s_mov_b32 s70, 0x3db504f3')
    for i in range(8):
        bf16_round_pair(a, 32+2*i, 33+2*i, 32+2*i, 33+2*i, 48)
        a(f'v_mul_f32 v{32+2*i}, s70, v{32+2*i}')
        a(f'v_mul_f32 v{33+2*i}, s70, v{33+2*i}')
        bf16_round_pair(a, 32+2*i, 33+2*i, 32+2*i, 33+2*i, 48)
    a('v_max3_f32 v48, v32, v33, v34')
    for i in range(35, 47, 2):
        a(f'v_max3_f32 v48, v48, v{i}, v{i+1}')
    a('v_max_f32 v48, v48, v47')
    a('v_mov_b32 v49, v48')
    a('s_nop 1')
    a('v_permlane32_swap_b32 v48, v49')
    a('v_max_f32 v48, v48, v49')
    a('v_lshlrev_b32 v11, 2, v224')
    a(f'v_add_u32 v11, {P_ST}, v11')
    a('s_lshl_b32 s70, s3, 7')
    a('v_add_u32 v12, s70, v11')
    a('ds_write_b32 v12, v48')
    a('s_waitcnt lgkmcnt(0)')
    a('s_barrier')
    a('ds_read_b32 v48, v11')
    a('ds_read_b32 v49, v11 offset:128')
    a('ds_read_b32 v50, v11 offset:256')
    a('ds_read_b32 v51, v11 offset:384')
    a('s_waitcnt lgkmcnt(0)')
    a('v_max3_f32 v48, v48, v49, v50')
    a('v_max_f32 v48, v48, v51')
    a('s_mov_b32 s70, 0x3fb8aa3b')
    a('v_mul_f32 v49, s70, v48')
    for i in range(16):
        a(f'v_fma_f32 v{32+i}, v{32+i}, s70, -v49')
        a(f'v_exp_f32 v{32+i}, v{32+i}')
    a('s_nop 0')
    a('v_add_f32 v50, v32, v33')
    for i in range(2, 16):
        a(f'v_add_f32 v50, v50, v{32+i}')
    a('v_mov_b32 v51, v50')
    a('s_nop 1')
    a('v_permlane32_swap_b32 v50, v51')
    a('v_add_f32 v50, v50, v51')
    a('ds_write_b32 v12, v50 offset:512')
    for i in range(8):
        a(f'v_cvt_pk_bf16_f32 v{52+i}, v{32+2*i}, v{33+2*i}')
    a('s_lshl_b32 s70, s3, 11')
    a(f's_add_u32 s70, s70, {P_P}')
    a('v_add_u32 v14, s70, v30')
    a('ds_write_b128 v14, v[52:55]')
    a('ds_write_b128 v14, v[56:59] offset:1024')
    a('s_waitcnt lgkmcnt(0)')
    a('s_barrier')
    stamp(a, 41)
    a('ds_read_b32 v50, v11 offset:512')
    a('ds_read_b32 v51, v11 offset:640')
    a('ds_read_b32 v52, v11 offset:768')
    a('ds_read_b32 v53, v11 offset:896')
    a(f'v_add_u32 v14, {P_P}, v30')
    for u in range(8):
        a(f'ds_read_b128 v[{128+4*u}:{131+4*u}], v14 offset:{u*1024}')
    def trrd(u, t, buf):
        off = (u & 3) * 16384
        return [f'ds_read_b64_tr_b16 v[{buf}:{buf+1}], v{160+2*t} offset:{off}',
                f'ds_read_b64_tr_b16 v[{buf+2}:{buf+3}], v{161+2*t} offset:{off}']
    seq = [(u, t) for u in range(8) for t in range(4)]
    bufs = [168, 172, 176, 180]
    def issue(idx):
        u, t = seq[idx]
        if u == 4 and t == 0:
            for r in range(160, 168):
                a(f'v_add_u32 v{r}, 0x10000, v{r}')
        for s in trrd(u, t, bufs[idx & 3]):
            a(s)
    for idx in range(3):
        issue(idx)
    a('s_waitcnt lgkmcnt(6)')
    a('v_add_f32 v50, v50, v51')
    a('v_add_f32 v52, v52, v53')
    a('v_add_f32 v49, v50, v52')
    a('v_mov_b32 v230, v48')
    a('v_mov_b32 v231, v49')
    for idx in range(32):
        u, t = seq[idx]
        if idx + 3 < 32:
            issue(idx + 3)
            a('s_waitcnt lgkmcnt(6)')
        else:
            a(f's_waitcnt lgkmcnt({2*(31-idx)})')
        b = bufs[idx & 3]
        a(f'v_mfma_f32_32x32x16_bf16 v[{64+16*t}:{79+16*t}], v[{b}:{b+3}], v[{128+4*u}:{131+4*u}], v[{64+16*t}:{79+16*t}]')
        if idx == 2:
            deferred_f()
    a('s_barrier')
    stamp(a, 4)
    a('v_and_b32 v9, 7, v224')
    a('v_lshlrev_b32 v10, 3, v225')
    a('s_lshl_b32 s70, s3, 4')
    a('v_add_u32 v10, s70, v10')
    a('v_lshlrev_b32 v11, 10, v224')
    a.nop(6)
    for t in range(4):
        for i in range(8):
            a(f'v_cvt_pk_bf16_f32 v{128+8*t+i}, v{64+16*t+2*i}, v{65+16*t+2*i}')
        for i in range(2):
            a(f'v_xor_b32 v14, {2*t+i}, v9')
            a('v_add_u32 v14, v14, v10')
            a('v_lshl_add_u32 v14, v14, 4, v11')
            a(f'ds_write_b128 v14, v[{128+8*t+4*i}:{131+8*t+4*i}]')
    a('s_waitcnt lgkmcnt(0)')
    a('s_barrier')
    stamp(a, 42)
    a('s_lshl_b32 s70, s3, 13')
    a('s_lshl_b32 s71, s2, 15')
    a('s_add_u32 s71, s71, s70')
    for i in range(8):
        a(f'v_xor_b32 v14, {i << 4}, v30')
        a('v_add_u32 v14, s70, v14')
        a(f'ds_read_b128 v[{128+4*i}:{131+4*i}], v14 offset:{i*1024}')
    for i in range(8):
        a(f's_waitcnt lgkmcnt({7-i})')
        a(f'buffer_store_dwordx4 v[{128+4*i}:{131+4*i}], v30, s[64:67], s71 offen sc1')
        a('s_add_u32 s71, s71, 1024')
    a('s_waitcnt vmcnt(8)')
    a('s_cmp_ge_u32 s2, 172')
    a('s_cbranch_scc1 KP_FPOK')
    tag_check(a, [(232,None),(236,None),(240,None),(244,None)], 22, 23, 249)
    a('s_nop 3')
    a('s_cmp_eq_u64 vcc, 0')
    a('s_cbranch_scc1 KP_FPOK')
    def issue_fp():
        a('s_mov_b32 s70, s82')
        for i in range(4):
            a(f'buffer_load_dwordx4 v[{232+4*i}:{235+4*i}], v229, s[40:43], s70 offen sc1')
            a('s_add_u32 s70, s70, 45056')
    poll_tag(a, issue_fp, [(232,None),(236,None),(240,None),(244,None)], clean=False)
    a.label('KP_FPOK')
    untag(a, [(232,None),(236,None),(240,None),(244,None)])
    a('v_lshl_add_u32 v14, v4, 8, v13')
    a('s_and_b32 s70, s3, 1')
    a('s_lshl_b32 s70, s70, 7')
    a('v_xor_b32 v14, s70, v14')
    a('s_lshl_b32 s70, s3, 11')
    a(f's_add_u32 s70, s70, {F_WD}')
    a('v_add_u32 v14, s70, v14')
    a('ds_write_b128 v14, v[184:187]')
    a('ds_write_b128 v14, v[188:191] offset:1024')
    for e in range(4):
        a(f'v_add_f32 v{232+e}, v{232+e}, v{236+e}')
        a(f'v_add_f32 v{240+e}, v{240+e}, v{244+e}')
        a(f'v_add_f32 v{232+e}, v{232+e}, v{240+e}')
    a('v_lshlrev_b32 v21, 4, v0')
    a(f'v_add_u32 v21, {F_FS}, v21')
    a('ds_write_b128 v21, v[232:235]')
    a('v_lshl_add_u32 v14, v4, 8, v13')
    a('s_lshl_b32 s70, s3, 12')
    a(f's_add_u32 s70, s70, {D_WUV}')
    a('v_add_u32 v14, s70, v14')
    a('v_xor_b32 v15, 128, v14')
    for i in range(4):
        a(f'ds_write_b128 v{14 + ((i >> 1) & 1)}, v[{192+4*i}:{195+4*i}] offset:{i*1024}')
    a('v_lshrrev_b32 v14, 1, v8')
    a('v_and_b32 v14, 1, v14')
    a('v_lshlrev_b32 v14, 1, v14')
    a('v_xor_b32 v14, v14, v5')
    a('v_lshlrev_b32 v14, 4, v14')
    a('v_lshl_add_u32 v14, v8, 7, v14')
    a('s_lshl_b32 s70, s3, 12')
    a(f's_add_u32 s70, s70, {D_WO}')
    a('v_add_u32 v14, s70, v14')
    a('v_xor_b32 v15, 64, v14')
    for i in range(4):
        a(f'ds_write_b128 v{14 + (i & 1)}, v[{208+4*i}:{211+4*i}] offset:{i*1024}')
    a('s_waitcnt vmcnt(0) lgkmcnt(0)')
    a('s_barrier')
    a('s_cmp_lg_u32 s3, 0')
    a('s_cbranch_scc1 KP_NOST')
    a('v_lshlrev_b32 v14, 12, v224')
    a('s_lshl_b32 s70, s2, 4')
    a('v_mov_b32 v232, s100')
    a('v_mov_b32 v233, s100')
    a('s_mov_b32 exec_lo, -1')
    a('s_mov_b32 exec_hi, 0')
    a('buffer_store_dwordx4 v[230:233], v14, s[60:63], s70 offen sc1')
    a('s_mov_b64 exec, -1')
    a('ds_read_b128 v[96:99], v21')
    a('ds_read_b128 v[100:103], v21 offset:1024')
    a('ds_read_b128 v[104:107], v21 offset:2048')
    a('ds_read_b128 v[108:111], v21 offset:3072')
    a('s_waitcnt lgkmcnt(0)')
    for e in range(4):
        a(f'v_add_f32 v{96+e}, v{96+e}, v{104+e}')
        a(f'v_add_f32 v{100+e}, v{100+e}, v{108+e}')
    bf16_round_pair(a, 96, 97, 96, 97, 23)
    bf16_round_pair(a, 98, 99, 98, 99, 23)
    bf16_round_pair(a, 100, 101, 100, 101, 23)
    bf16_round_pair(a, 102, 103, 102, 103, 23)
    gelu4(a, [96, 97, 98, 99], 23)
    bf16_round_pair(a, 96, 97, 96, 97, 23)
    bf16_round_pair(a, 98, 99, 98, 99, 23)
    for e in range(4):
        a(f'v_mul_f32 v{96+e}, v{96+e}, v{100+e}')
    a('v_cvt_pk_bf16_f32 v104, v96, v97')
    a('v_cvt_pk_bf16_f32 v105, v98, v99')
    a('s_mov_b32 s70, 288')
    a('v_mul_lo_u32 v22, v8, s70')
    a('v_lshl_add_u32 v22, v5, 3, v22')
    a(f'v_add_u32 v22, {F_HB}, v22')
    a('ds_write_b64 v22, v[104:105]')
    a.label('KP_NOST')
    stamp(a, 5)
    a('s_waitcnt lgkmcnt(0)')
    a('s_barrier')
    a(f'v_add_u32 v22, {F_HB}, v16')
    a('ds_read_b128 v[32:35], v22')
    a(f'v_add_u32 v22, {F_WD}, v26')
    a(f'v_add_u32 v23, {F_WD}, v27')
    for tl in range(2):
        r = 64 + 4 * tl
        a(f'ds_read_b64_tr_b16 v[{r}:{r+1}], v{22+tl}')
        a(f'ds_read_b64_tr_b16 v[{r+2}:{r+3}], v{22+tl} offset:1024')
    for r in range(72, 80):
        a(f'v_mov_b32 v{r}, 0')
    a('s_lshl_b32 s70, s74, 14')
    a('s_lshl_b32 s71, s75, 9')
    a('s_add_u32 s70, s70, s71')
    a('s_lshl_b32 s71, s3, 7')
    a('s_add_u32 s70, s70, s71')
    a('s_cmp_ge_u32 s2, 172')
    a('s_cselect_b32 s70, 0x40000000, s70')
    a('s_waitcnt lgkmcnt(0)')
    for tl in range(2):
        r = 64 + 4 * tl
        a(f'v_mfma_f32_16x16x32_bf16 v[{72+4*tl}:{75+4*tl}], v[{r}:{r+3}], v[32:35], v[{72+4*tl}:{75+4*tl}]')
    a.nop(10)
    tag4(a, 72); tag4(a, 76)
    hm(a)
    a('buffer_store_dwordx4 v[72:75], v29, s[56:59], s70 offen sc1')
    a('buffer_store_dwordx4 v[76:79], v29, s[56:59], s70 offen offset:64 sc1')
    fm(a)
    srd(a, 48, 18, 1048576, WS_CTXP)
    srd(a, 40, 18, 524288, WS_ATTP)
    a('v_lshlrev_b32 v9, 4, v0')
    a('v_lshlrev_b32 v10, 20, v8')
    a('v_lshl_add_u32 v10, v5, 4, v10')
    def issue_S():
        a('s_lshl_b32 s70, s73, 12')
        a('buffer_load_dwordx4 v[32:35], v9, s[60:63], s70 offen sc1')
    poll_gen(a, issue_S, lambda: a('v_cmp_ne_u32 vcc, s100, v34'))
    a('s_barrier')
    a('s_lshl_b32 s70, s3, 18')
    a('s_lshl_b32 s71, s73, 10')
    a('s_add_u32 s70, s70, s71')
    a('s_lshl_b32 s71, s68, 7')
    a('s_add_u32 s70, s70, s71')
    for i in range(8):
        a(f'buffer_load_dwordx4 v[{64+4*i}:{67+4*i}], v10, s[64:67], s70 offen sc1')
        a('s_add_u32 s70, s70, 32768')
    stamp(a, 6)
    a('v_mov_b32 v34, v32')
    swz_reduce32(a, 34, 35, 'v_max_f32')
    a('v_sub_f32 v34, v32, v34')
    a('v_mul_f32 v34, 0x3fb8aa3b, v34')
    a('v_exp_f32 v34, v34')
    a('s_nop 0')
    a('v_mul_f32 v36, v34, v33')
    swz_reduce32(a, 36, 35, 'v_add_f32')
    a('v_rcp_f32 v36, v36')
    a('s_nop 0')
    a('v_mul_f32 v34, v34, v36')
    a('v_lshlrev_b32 v35, 2, v0')
    a(f'ds_write_b32 v35, v34 offset:{D_AL}')
    a('s_waitcnt lgkmcnt(0)')
    a('s_barrier')
    a('v_lshlrev_b32 v35, 7, v8')
    a('s_lshl_b32 s70, s3, 5')
    a('v_add_u32 v35, s70, v35')
    a(f'ds_read_b128 v[36:39], v35 offset:{D_AL}')
    a(f'ds_read_b128 v[40:43], v35 offset:{D_AL+16}')
    for r in range(48, 56):
        a(f'v_mov_b32 v{r}, 0')
    a('s_waitcnt lgkmcnt(0)')
    for i in range(8):
        a(f's_waitcnt vmcnt({7-i})')
        for e in range(4):
            a(f'v_lshlrev_b32 v22, 16, v{64+4*i+e}')
            a(f'v_and_b32 v23, 0xffff0000, v{64+4*i+e}')
            a(f'v_fmac_f32 v{48+2*e}, v22, v{36+i}')
            a(f'v_fmac_f32 v{49+2*e}, v23, v{36+i}')
    stamp(a, 10)
    a('v_lshlrev_b32 v35, 5, v0')
    a(f'ds_write_b128 v35, v[48:51] offset:{D_CB}')
    a(f'ds_write_b128 v35, v[52:55] offset:{D_CB+16}')
    a('s_waitcnt lgkmcnt(0)')
    a('s_barrier')
    a('s_cmp_lg_u32 s3, 0')
    a('s_cbranch_scc1 KP_NOSUM')
    for w in range(1, 4):
        a(f'ds_read_b128 v[{56+8*(w-1)}:{59+8*(w-1)}], v35 offset:{D_CB+w*2048}')
        a(f'ds_read_b128 v[{60+8*(w-1)}:{63+8*(w-1)}], v35 offset:{D_CB+w*2048+16}')
    a('s_waitcnt lgkmcnt(0)')
    for e in range(8):
        a(f'v_add_f32 v{48+e}, v{48+e}, v{56+e}')
        a(f'v_add_f32 v{64+e}, v{64+e}, v{72+e}')
        a(f'v_add_f32 v{48+e}, v{48+e}, v{64+e}')
    for e in range(4):
        a(f'v_cvt_pk_bf16_f32 v{56+e}, v{48+2*e}, v{49+2*e}')
    a('s_mov_b32 s70, 160')
    a('v_mul_lo_u32 v35, v8, s70')
    a('v_lshl_add_u32 v35, v5, 4, v35')
    a(f'ds_write_b128 v35, v[56:59] offset:{D_OC}')
    a.label('KP_NOSUM')
    a('s_mov_b32 s70, 160')
    a('v_mul_lo_u32 v24, v5, s70')
    a('v_lshl_add_u32 v24, v4, 4, v24')
    for r in range(96, 104):
        a(f'v_mov_b32 v{r}, 0')
    a('v_lshlrev_b32 v28, 9, v5')
    a('v_lshl_add_u32 v28, v4, 4, v28')
    a('s_lshl_b32 s70, s2, 12')
    a('s_lshl_b32 s71, s3, 7')
    a('s_add_u32 s70, s70, s71')
    a('s_waitcnt lgkmcnt(0)')
    a('s_barrier')
    for ks in range(2):
        a(f'ds_read_b128 v[{32+4*ks}:{35+4*ks}], v24 offset:{D_OC+ks*64}')
        for tl in range(2):
            r = 64 + 8 * ks + 4 * tl
            a(f'ds_read_b64_tr_b16 v[{r}:{r+1}], v{26+tl} offset:{D_WUV+ks*8192}')
            a(f'ds_read_b64_tr_b16 v[{r+2}:{r+3}], v{26+tl} offset:{D_WUV+ks*8192+1024}')
    a('s_waitcnt lgkmcnt(0)')
    for ks in range(2):
        for tl in range(2):
            r = 64 + 8 * ks + 4 * tl
            a(f'v_mfma_f32_16x16x32_bf16 v[{96+4*tl}:{99+4*tl}], v[{r}:{r+3}], v[{32+4*ks}:{35+4*ks}], v[{96+4*tl}:{99+4*tl}]')
    a.nop(10)
    tag4(a, 96); tag4(a, 100)
    hm(a)
    a('buffer_store_dwordx4 v[96:99], v28, s[48:51], s70 offen sc1')
    a('buffer_store_dwordx4 v[100:103], v28, s[48:51], s70 offen offset:64 sc1')
    fm(a)
    stamp(a, 11)
    a('s_lshl_b32 s69, s3, 1')
    tr_base_p128(a, 26, 27, D_WO, 69)
    def issue_ctx():
        a('s_lshl_b32 s70, s73, 15')
        for m in range(8):
            a(f'buffer_load_dwordx4 v[{64+4*m}:{67+4*m}], v19, s[48:51], s70 offen sc1')
            a('s_add_u32 s70, s70, 4096')
    poll_tag(a, issue_ctx, [(64+4*m,None) for m in range(8)])
    stamp(a, 7)
    for e in range(4):
        a(f'v_add_f32 v{64+e}, v{64+e}, v{68+e}')
        a(f'v_add_f32 v{72+e}, v{72+e}, v{76+e}')
        a(f'v_add_f32 v{80+e}, v{80+e}, v{84+e}')
        a(f'v_add_f32 v{88+e}, v{88+e}, v{92+e}')
        a(f'v_add_f32 v{64+e}, v{64+e}, v{72+e}')
        a(f'v_add_f32 v{80+e}, v{80+e}, v{88+e}')
        a(f'v_add_f32 v{64+e}, v{64+e}, v{80+e}')
    a('v_cvt_pk_bf16_f32 v68, v64, v65')
    a('v_cvt_pk_bf16_f32 v69, v66, v67')
    a(f'ds_write_b64 v20, v[68:69] offset:{D_CX}')
    for r in range(56, 60):
        a(f'v_mov_b32 v{r}, 0')
    a('s_lshl_b32 s70, s73, 14')
    a('s_lshl_b32 s71, s68, 8')
    a('s_add_u32 s70, s70, s71')
    a('s_lshl_b32 s71, s3, 6')
    a('s_add_u32 s70, s70, s71')
    a('s_waitcnt lgkmcnt(0)')
    a('s_barrier')
    for ks in range(4):
        a(f'ds_read_b128 v[{32+4*ks}:{35+4*ks}], v16 offset:{D_CX+ks*64}')
        a(f'ds_read_b64_tr_b16 v[{64+4*ks}:{65+4*ks}], v26 offset:{ks*4096}')
        a(f'ds_read_b64_tr_b16 v[{66+4*ks}:{67+4*ks}], v26 offset:{ks*4096+512}')
    for ks in range(4):
        a(f's_waitcnt lgkmcnt({12-3*(ks+1)})')
        a(f'v_mfma_f32_16x16x32_bf16 v[56:59], v[{64+4*ks}:{67+4*ks}], v[{32+4*ks}:{35+4*ks}], v[56:59]')
    a.nop(10)
    tag4(a, 56)
    hm(a)
    a('buffer_store_dwordx4 v[56:59], v29, s[40:43], s70 offen sc1')
    fm(a)
    stamp(a, 12)
    srd(a, 20, 4, 8192)
    srd(a, 28, 16, 8192)
    a('v_and_b32 v9, 3, v0')
    a('v_lshrrev_b32 v10, 2, v0')
    a('v_lshlrev_b32 v11, 14, v10')
    a('v_lshl_add_u32 v11, v9, 4, v11')
    a('v_lshlrev_b32 v12, 1, v0')
    a('s_lshl_b32 s69, s2, 5')
    a('buffer_load_ushort v40, v12, s[20:23], s69 offen')
    def issue_fin():
        a('s_lshl_b32 s70, s2, 6')
        a('buffer_load_dwordx4 v[64:67], v11, s[40:43], s70 offen sc1')
        a('buffer_load_dwordx4 v[68:71], v11, s[56:59], s70 offen sc1')
    a('v_cmp_gt_u32 s[76:77], 32, v10')
    a('v_cmp_gt_u32 s[78:79], 43, v10')
    a('s_nop 1')
    poll_tag(a, issue_fin, [(64,76),(68,78)])
    stamp(a, 13)
    a('v_lshlrev_b32 v14, 4, v0')
    a(f'v_add_u32 v14, {D_FA}, v14')
    a('ds_write_b128 v14, v[64:67]')
    a('ds_write_b128 v14, v[68:71] offset:4096')
    a('s_waitcnt lgkmcnt(0)')
    a('s_barrier')
    a('v_cmp_gt_u32 vcc, 16, v0')
    a('s_and_saveexec_b64 s[80:81], vcc')
    a('s_cbranch_execz KP_FIN')
    a('v_lshlrev_b32 v14, 2, v0')
    a(f'v_add_u32 v14, {D_FA}, v14')
    for g in range(32):
        a(f'ds_read_b32 v{64+g}, v14 offset:{g*64}')
    for g in range(43):
        a(f'ds_read_b32 v{128+g}, v14 offset:{4096+g*64}')
    a('s_waitcnt lgkmcnt(0)')
    for step in (16, 8, 4, 2, 1):
        for i in range(step):
            a(f'v_add_f32 v{64+i}, v{64+i}, v{64+i+step}')
    for i in range(11):
        a(f'v_add_f32 v{128+i}, v{128+i}, v{160+i}')
    for step in (16, 8, 4, 2, 1):
        for i in range(step):
            a(f'v_add_f32 v{128+i}, v{128+i}, v{128+i+step}')
    a('v_lshlrev_b32 v40, 16, v40')
    bf16_round_pair(a, 64, 128, 64, 128, 15)
    a('v_add_f32 v64, v64, v40')
    bf16_round_pair(a, 64, 65, 64, 64, 15)
    a('v_add_f32 v64, v64, v128')
    a('v_cvt_pk_bf16_f32 v64, v64, v64')
    a('buffer_store_short v64, v12, s[28:31], s69 offen')
    a.label('KP_FIN')
    a('s_mov_b64 exec, s[80:81]')
    if STAMP:
        stamp(a, 8)
        a('s_cmp_lg_u32 s3, 0')
        a('s_cbranch_scc1 KP_EXIT')
        srd(a, 76, 18, 1 << 20, WS_STAMP)
        a('s_lshl_b32 s80, s2, 7')
        a('v_mov_b32 v250, 0')
        for i in range(6):
            a(f'v_mov_b32 v251, s{84+2*i}')
            a(f'buffer_store_dword v251, v250, s[76:79], s80 offen offset:{4*i}')
    a('s_branch KP_EXIT')

    a.label('KP_LOADER')
    srd_inplace(a, 44, 256)
    a('s_sub_u32 s69, s3, 4')
    a('v_lshlrev_b32 v3, 4, v2')
    a('s_lshl_b32 s70, s2, 17')
    a('s_lshl_b32 s71, s69, 15')
    a('s_add_u32 s70, s70, s71')
    a(f'v_mov_b32 v5, {A_CNT}')
    a('s_mov_b32 s76, 0')
    a('s_barrier')
    a('s_cmp_lg_u32 s69, 3')
    a('s_cbranch_scc1 KP_LROW')
    a('v_mov_b32 v7, 0')
    def issue_n():
        a('buffer_load_dword v6, v7, s[44:47], 0 offen sc1')
    poll_gen(a, issue_n, lambda: a('v_cmp_eq_u32 vcc, 0, v6'), SBSLEEP)
    a('v_or_b32 v6, 1, v6')
    a('ds_write_b32 v5, v6 offset:12')
    a.label('KP_LROW')
    a('s_and_b32 s77, s76, 3')
    a('s_lshl_b32 s77, s77, 2')
    a('s_lshr_b32 s78, s76, 2')
    a('s_and_b32 s78, s78, 3')
    a('s_or_b32 s77, s77, s78')
    a('s_lshl_b32 s77, s77, 4')
    a('v_xor_b32 v4, s77, v3')
    a('s_mov_b32 m0, s71')
    a('s_add_u32 s71, s71, 1024')
    a('buffer_load_dwordx4 v4, s[24:27], s70 offen nt lds')
    a('s_add_u32 s70, s70, 1024')
    a(f's_cmp_ge_u32 s76, {RSW}')
    a('s_cbranch_scc1 KP_LT2')
    a(f's_waitcnt vmcnt({THR1})')
    a.label('KP_LT2')
    a(f's_waitcnt vmcnt({THROTTLE})')
    a('s_add_u32 s76, s76, 1')
    a('s_cmp_lt_u32 s76, 32')
    a('s_cbranch_scc1 KP_LROW')
    a('s_waitcnt vmcnt(0)')
    a('s_barrier')
    a.label('KP_EXIT')
    a('s_endpgm')

def main(out):
    a = Asm()
    a.raw(HDR.rstrip('\n'))
    a.raw(f'; @launch grid=(256,1,1) block=(512,1,1) lds={KP_LDS}')
    a.raw('.amdgcn_target "amdgcn-amd-amdhsa--gfx950"')
    a.raw('.text')
    a.raw(f'.globl {KNAME}')
    a.raw('.p2align 8')
    a.raw(f'.type {KNAME},@function')
    gen_kp(a)
    a.raw('.section .rodata,"a"')
    a.raw('.p2align 6')
    a.raw(kd(KNAME))
    open(out, 'w').write('\n'.join(a.L) + '\n')

if __name__ == '__main__':
    if 'stamp' in sys.argv[2:]: STAMP = True
    if 'head' in sys.argv[2:]: SMAP.clear(); SMAP.update({0:0,21:1,22:2,1:3,2:4,3:5})
    if 'chain' in sys.argv[2:]: SMAP.clear(); SMAP.update({0:0,1:1,30:2,31:3,2:4,3:5})
    if 'mid' in sys.argv[2:]: SMAP.clear(); SMAP.update({3:0,40:1,41:2,4:3,42:4,5:5})
    if 'tail' in sys.argv[2:]: SMAP.clear(); SMAP.update({0:0,5:1,6:2,7:3,13:4,8:5})
    for x in sys.argv[2:]:
        if x.startswith('thr'): THROTTLE = int(x[3:])
        if x.startswith('slp'): SLEEP = int(x[3:])
        if x == 'pzsc1': PZ_POL = ' sc1'
        if x == 'nosent': SENT = False
        if x.startswith('qpos'): QPOS = int(x[4:])
        if x.startswith('rsw'): RSW = int(x[3:])
        if x.startswith('tha'): THR1 = int(x[3:])
        if x.startswith('sbs'): SBSLEEP = int(x[3:])
        if x == 'late': LATE = True
    main(sys.argv[1] if len(sys.argv) > 1 else 'parallel_sum__compressed_kv_cla__geglu_ffn__decode.s')
```

```python
import sys, math, struct
sys.path.insert(0, 'work')
from gen1 import Asm, srd, HDR, kd, bf16_round_pair, swz_reduce32, fsw
import gen3
from gen3 import f2u, wave_lane, lane_decomp, tr_base_p128, tr_base_p256, ln_issue, ln_compute, gelu4

WS_QPART = 0x0
WS_FFNP = 0x80000
WS_QABS = 0x130000
WS_STATS = WS_QABS + 0x80000
WS_CTXP = WS_STATS + 0x20000
WS_ATTP = WS_CTXP + 0x100000
WS_FFNO = WS_ATTP + 0x80000
WS_FL = WS_FFNO + 43 * 16384
WS_OPART = 0x800000
WS_STAMP = 0xF000000
POLL_LIMIT = 20000
STAMP = False
THROTTLE = 8
PZ_POL = ''
SLEEP = 4
SENT = True
QPOS = 16
STPROD = False
RSW = 0
THR1 = 1
SBSLEEP = 8
LATE = False

SMAP = {0:0,1:1,2:2,3:3,5:4,8:5}
def stamp(a, i):
    if STAMP and i in SMAP:
        j = SMAP[i]
        a(f's_memtime s[{84+2*j}:{85+2*j}]')
        a('s_waitcnt lgkmcnt(0)')

uid = [0]
def poll_loads(a, issue_fn, regs, tmpv):
    uid[0] += 1
    n = uid[0]
    a('s_mov_b32 s72, 0')
    a.label(f'PL{n}')
    issue_fn()
    a('s_waitcnt vmcnt(0)')
    r = list(regs)
    a(f'v_max_u32 v{tmpv}, v{r[0]}, v{r[1]}')
    i = 2
    while i < len(r):
        if i + 1 < len(r):
            a(f'v_max3_u32 v{tmpv}, v{tmpv}, v{r[i]}, v{r[i+1]}')
            i += 2
        else:
            a(f'v_max_u32 v{tmpv}, v{tmpv}, v{r[i]}')
            i += 1
    a(f'v_cmp_eq_u32 vcc, -1, v{tmpv}')
    a('s_nop 3')
    a('s_cmp_eq_u64 vcc, 0')
    a(f's_cbranch_scc1 PD{n}')
    a('s_add_u32 s72, s72, 1')
    a(f's_cmp_lt_u32 s72, {POLL_LIMIT}')
    a(f's_cbranch_scc0 PD{n}')
    a(f's_sleep {SLEEP}')
    a(f's_branch PL{n}')
    a.label(f'PD{n}')

def hm(a):
    a('s_mov_b32 exec_lo, 0x00ff00ff')
    a('s_mov_b32 exec_hi, 0x00ff00ff')
def fm(a):
    a('s_mov_b64 exec, -1')

def tag4(a, r):
    for i in range(4):
        a(f'v_bfi_b32 v{r+i}, v248, s{96+i}, v{r+i}')

def tag_check(a, quads, acc, t1, t2):
    a(f'v_mov_b32 v{acc}, 0')
    for base, mask in quads:
        if mask is None:
            for i in (0, 2):
                a(f'v_xor_b32 v{t1}, s{96+i}, v{base+i}')
                a(f'v_xor_b32 v{t2}, s{97+i}, v{base+i+1}')
                a(f'v_or3_b32 v{acc}, v{acc}, v{t1}, v{t2}')
        else:
            a(f'v_xor_b32 v{t1}, s96, v{base}')
            a(f'v_xor_b32 v{t2}, s97, v{base+1}')
            a(f'v_or_b32 v{t1}, v{t1}, v{t2}')
            a(f'v_xor_b32 v{t2}, s98, v{base+2}')
            a(f'v_or_b32 v{t1}, v{t1}, v{t2}')
            a(f'v_xor_b32 v{t2}, s99, v{base+3}')
            a(f'v_or_b32 v{t1}, v{t1}, v{t2}')
            a(f'v_cndmask_b32 v{t1}, 0, v{t1}, s[{mask}:{mask+1}]')
            a(f'v_or_b32 v{acc}, v{acc}, v{t1}')
    a(f'v_and_b32 v{acc}, 0xff, v{acc}')
    a(f'v_cmp_ne_u32 vcc, 0, v{acc}')

def poll_gen(a, issue_fn, check_fn, sleep=None):
    uid[0] += 1
    n = uid[0]
    a('s_mov_b32 s72, 0')
    a.label(f'PL{n}')
    issue_fn()
    a('s_waitcnt vmcnt(0)')
    check_fn()
    a('s_nop 3')
    a('s_cmp_eq_u64 vcc, 0')
    a(f's_cbranch_scc1 PD{n}')
    a('s_add_u32 s72, s72, 1')
    a(f's_cmp_lt_u32 s72, {POLL_LIMIT}')
    a(f's_cbranch_scc0 PD{n}')
    a(f's_sleep {SLEEP if sleep is None else sleep}')
    a(f's_branch PL{n}')
    a.label(f'PD{n}')

def untag(a, quads):
    for base, mask in quads:
        for i in range(4):
            a(f'v_and_b32 v{base+i}, 0xffffff00, v{base+i}')

def poll_tag(a, issue_fn, quads, clean=True):
    poll_gen(a, issue_fn, lambda: tag_check(a, quads, 22, 23, 249))
    if clean:
        untag(a, quads)

def wsync(a, k, vaddr, vone, vtmp):
    uid[0] += 1
    n = uid[0]
    a('s_waitcnt lgkmcnt(0)')
    a('s_mov_b64 exec, 1')
    a(f'ds_add_u32 v{vaddr}, v{vone}')
    a('s_mov_b64 exec, -1')
    a.label(f'WS{n}')
    a(f'ds_read_b32 v{vtmp}, v{vaddr}')
    a('s_waitcnt lgkmcnt(0)')
    a(f'v_readfirstlane_b32 s71, v{vtmp}')
    a('s_nop 3')
    a(f's_cmp_ge_u32 s71, {4*k}')
    a(f's_cbranch_scc0 WS{n}')

K1_WQT = 0
K1_FT = 16384
K1_XNA = 32768
K1_XNF = K1_XNA + 2304
K1_LDS = K1_XNF + 1280

def gen_k1(a):
    a.label('k1_kernel')
    a('s_cmp_ge_u32 s2, 256')
    a('s_cbranch_scc1 K1_EXIT')
    a('s_load_dwordx2 s[4:5], s[0:1], 0')
    a('s_load_dwordx2 s[8:9], s[0:1], 16')
    a('s_load_dwordx4 s[12:15], s[0:1], 56')
    a('s_load_dwordx2 s[18:19], s[0:1], 96')
    wave_lane(a, 3, 2)
    lane_decomp(a)
    a('s_lshr_b32 s73, s2, 3')
    a('s_lshr_b32 s74, s2, 1')
    a('s_and_b32 s74, s74, 3')
    a('s_and_b32 s75, s2, 1')
    a('s_and_b32 s68, s2, 7')
    a('v_lshrrev_b32 v8, 3, v2')
    a('v_lshrrev_b32 v9, 1, v8')
    a('v_and_b32 v9, 1, v9')
    a('v_lshlrev_b32 v9, 1, v9')
    a('v_xor_b32 v9, v9, v5')
    a('v_lshlrev_b32 v9, 4, v9')
    a('v_lshl_add_u32 v10, v8, 13, v9')
    a('v_xor_b32 v11, 64, v10')
    a('s_mov_b32 s70, 2752')
    a('v_mul_lo_u32 v12, v8, s70')
    a('v_add_u32 v13, v12, v9')
    a('v_xor_b32 v9, 64, v9')
    a('v_add_u32 v12, v12, v9')
    for r in range(200, 204):
        a(f'v_mov_b32 v{r}, -1')
    a('v_lshlrev_b32 v21, 4, v2')
    a('s_waitcnt lgkmcnt(0)')
    srd(a, 20, 4, 8192)
    srd(a, 28, 8, 4194304)
    T = 60
    ln_issue(a, 20, 3, T)
    a('s_lshl_b32 s70, s74, 20')
    a('s_lshl_b32 s71, s3, 18')
    a('s_add_u32 s70, s70, s71')
    a('s_lshl_b32 s71, s73, 8')
    a('s_add_u32 s70, s70, s71')
    a('s_lshl_b32 s71, s75, 7')
    a('s_add_u32 s70, s70, s71')
    a('s_lshl_b32 s71, s3, 12')
    for i in range(4):
        a('s_mov_b32 m0, s71')
        a('s_add_u32 s71, s71, 1024')
        a(f'buffer_load_dwordx4 v{10 + (i & 1)}, s[28:31], s70 offen nt lds')
        a('s_add_u32 s70, s70, 65536')
    a('s_cmp_ge_u32 s3, 2')
    a('s_cselect_b32 s76, s14, s12')
    a('s_cselect_b32 s77, s15, s13')
    a('s_and_b32 s77, s77, 0xffff')
    a('s_mov_b32 s78, 1409024')
    a('s_mov_b32 s79, 0x00020000')
    a('s_and_b32 s70, s3, 1')
    a('s_lshl_b32 s70, s70, 5')
    a('s_lshl_b32 s71, s68, 6')
    a('s_add_u32 s70, s70, s71')
    a('s_mul_i32 s70, s70, 2752')
    a('s_lshl_b32 s71, s73, 7')
    a('s_add_u32 s70, s70, s71')
    a('s_cmp_ge_u32 s2, 176')
    a('s_cselect_b32 s70, 0x40000000, s70')
    a('s_lshl_b32 s71, s3, 12')
    a(f's_add_u32 s71, s71, {K1_FT}')
    for i in range(4):
        a('s_mov_b32 m0, s71')
        a('s_add_u32 s71, s71, 1024')
        a(f'buffer_load_dwordx4 v{13 - (i & 1)}, s[76:79], s70 offen nt lds')
        a('s_add_u32 s70, s70, 22016')
    srd(a, 40, 18, PZ_SIZE, PZ)
    a('s_lshl_b32 s70, s2, 2')
    a('s_add_u32 s70, s70, s3')
    a(f's_mul_i32 s70, s70, {PZ_PER_WAVE*1024}')
    for i in range(PZ_PER_WAVE):
        a(f'buffer_store_dwordx4 v[200:203], v21, s[40:43], s70 offen{PZ_POL}')
        a('s_add_u32 s70, s70, 1024')
    NP = PZ_PER_WAVE
    srd(a, 48, 18, 524288, WS_QPART)
    srd(a, 56, 18, 0xB0000, WS_FFNP)
    ln_compute(a, T, 8 + NP)
    a('s_mov_b32 s70, 288')
    a(f'v_mul_lo_u32 v14, v{T}, s70')
    a(f'v_and_b32 v15, 7, v{T+1}')
    a('v_lshl_add_u32 v14, v15, 5, v14')
    a(f'v_lshrrev_b32 v15, 3, v{T+1}')
    a('v_cmp_eq_u32 vcc, s74, v15')
    a('s_and_saveexec_b64 s[80:81], vcc')
    a(f'ds_write_b128 v14, v[{T+4}:{T+7}] offset:{K1_XNA}')
    a(f'ds_write_b128 v14, v[{T+8}:{T+11}] offset:{K1_XNA+16}')
    a('s_mov_b64 exec, s[80:81]')
    a('s_mov_b32 s70, 160')
    a(f'v_mul_lo_u32 v14, v{T}, s70')
    a(f'v_and_b32 v15, 3, v{T+1}')
    a('v_lshl_add_u32 v14, v15, 5, v14')
    a(f'v_lshrrev_b32 v15, 2, v{T+1}')
    a('v_cmp_eq_u32 vcc, s68, v15')
    a('s_and_saveexec_b64 s[80:81], vcc')
    a(f'ds_write_b128 v14, v[{T+4}:{T+7}] offset:{K1_XNF}')
    a(f'ds_write_b128 v14, v[{T+8}:{T+11}] offset:{K1_XNF+16}')
    a('s_mov_b64 exec, s[80:81]')
    a('s_mov_b32 s70, 288')
    a('v_mul_lo_u32 v15, v5, s70')
    a('v_lshl_add_u32 v15, v4, 4, v15')
    a('s_mov_b32 s70, 160')
    a('v_mul_lo_u32 v17, v5, s70')
    a('v_lshl_add_u32 v17, v4, 4, v17')
    a('s_lshl_b32 s69, s3, 1')
    tr_base_p128(a, 18, 19, 0, 69)
    for r in range(24, 36):
        a(f'v_mov_b32 v{r}, 0')
    a('v_lshlrev_b32 v19, 9, v5')
    a('v_lshl_add_u32 v19, v4, 4, v19')
    a('s_lshl_b32 s82, s73, 14')
    a('s_lshl_b32 s71, s74, 12')
    a('s_add_u32 s82, s82, s71')
    a('s_lshl_b32 s71, s75, 8')
    a('s_add_u32 s82, s82, s71')
    a('s_lshl_b32 s71, s3, 6')
    a('s_add_u32 s82, s82, s71')
    a('s_mov_b32 s70, 5632')
    a('v_mul_lo_u32 v20, v5, s70')
    a('v_lshl_add_u32 v20, v4, 4, v20')
    a('s_mul_i32 s83, s68, 45056')
    a('s_lshl_b32 s71, s73, 8')
    a('s_add_u32 s83, s83, s71')
    a('s_lshl_b32 s71, s3, 6')
    a('s_add_u32 s83, s83, s71')
    a('s_cmp_ge_u32 s2, 176')
    a('s_cselect_b32 s83, 0x40000000, s83')
    a(f's_waitcnt vmcnt({4+NP}) lgkmcnt(0)')
    a('s_barrier')
    for ks in range(4):
        a(f'ds_read_b128 v[{36+8*ks}:{39+8*ks}], v15 offset:{K1_XNA+ks*64}')
        a(f'ds_read_b64_tr_b16 v[{40+8*ks}:{41+8*ks}], v18 offset:{K1_WQT+ks*4096}')
        a(f'ds_read_b64_tr_b16 v[{42+8*ks}:{43+8*ks}], v18 offset:{K1_WQT+ks*4096+512}')
    for ks in range(4):
        a(f's_waitcnt lgkmcnt({12-3*(ks+1)})')
        a(f'v_mfma_f32_16x16x32_bf16 v[24:27], v[{40+8*ks}:{43+8*ks}], v[{36+8*ks}:{39+8*ks}], v[24:27]')
    a(f's_waitcnt vmcnt({NP})')
    a.nop(8)
    a('buffer_store_dwordx4 v[24:27], v19, s[48:51], s82 offen')
    a('s_barrier')
    for ks in range(2):
        a(f'ds_read_b128 v[{36+4*ks}:{39+4*ks}], v17 offset:{K1_XNF+ks*64}')
    for mat in range(2):
        for ks in range(2):
            r = 44 + 8 * mat + 4 * ks
            a(f'ds_read_b64_tr_b16 v[{r}:{r+1}], v18 offset:{K1_FT+mat*8192+ks*4096}')
            a(f'ds_read_b64_tr_b16 v[{r+2}:{r+3}], v18 offset:{K1_FT+mat*8192+ks*4096+512}')
    a('s_waitcnt lgkmcnt(0)')
    for mat in range(2):
        for ks in range(2):
            r = 44 + 8 * mat + 4 * ks
            a(f'v_mfma_f32_16x16x32_bf16 v[{28+4*mat}:{31+4*mat}], v[{r}:{r+3}], v[{36+4*ks}:{39+4*ks}], v[{28+4*mat}:{31+4*mat}]')
    a.nop(10)
    a('buffer_store_dwordx4 v[28:31], v20, s[56:59], s83 offen')
    a('s_add_u32 s83, s83, 360448')
    a('buffer_store_dwordx4 v[32:35], v20, s[56:59], s83 offen')
    a.label('K1_EXIT')
    a('s_endpgm')

R0 = 131072
P_QB = R0
P_FS = R0 + 2304
P_HB = P_FS + 4096
P_WD = R0 + 9216
P_P = R0
P_ST = R0 + 8192
D_OT = 0
D_AL = 32768
D_CB = D_AL + 1024
D_OC = D_CB + 8192
D_CX = D_OC + 1280
D_WUV = 46080
D_WO = D_WUV + 16384
D_FA = 81920
F_FS = 90112
F_HB = 94208
F_WD = 97280
KP_LDS = 163840

A_WQT = R0
A_XNA = R0 + 16384
A_XNF = A_XNA + 2304
A_QB = R0 + 20480
A_CNT = R0 + 23552
KNAME = 'parallel_sum__compressed_kv_cla__geglu_ffn__decode_kernel'
def srd_inplace(a, r, nbytes):
    a(f's_and_b32 s{r+1}, s{r+1}, 0xffff')
    a(f's_mov_b32 s{r+2}, {nbytes}')
    a(f's_mov_b32 s{r+3}, 0x00020000')

def gen_kp(a):
    a.label(KNAME)
    a('s_cmp_ge_u32 s2, 256')
    a('s_cbranch_scc1 KP_EXIT')
    stamp(a, 0)
    a('s_load_dwordx4 s[4:7], s[0:1], 0')
    a('s_load_dwordx2 s[28:29], s[0:1], 16')
    a('s_load_dwordx4 s[8:11], s[0:1], 24')
    a('s_load_dwordx2 s[12:13], s[0:1], 40')
    a('s_load_dwordx2 s[36:37], s[0:1], 56')
    a('s_load_dwordx2 s[40:41], s[0:1], 64')
    a('s_load_dwordx2 s[14:15], s[0:1], 72')
    a('s_load_dwordx2 s[16:17], s[0:1], 80')
    a('s_load_dwordx2 s[44:45], s[0:1], 88')
    a('s_load_dwordx2 s[18:19], s[0:1], 96')
    wave_lane(a, 3, 2)
    a('s_waitcnt lgkmcnt(0)')
    srd(a, 24, 6, 33554432)
    a('s_cmp_ge_u32 s3, 4')
    a('s_cbranch_scc1 KP_LOADER')
    a('v_lshlrev_b32 v30, 4, v2')
    a('v_mov_b32 v248, 0xff')
    srd_inplace(a, 44, 256)
    a('s_or_b32 s70, s2, s3')
    a('s_cmp_lg_u32 s70, 0')
    a('s_cbranch_scc1 KP_NONON')
    a('s_memrealtime s[70:71]')
    a('s_waitcnt lgkmcnt(0)')
    a('s_or_b32 s70, s70, 1')
    a('v_mov_b32 v22, s70')
    a('v_mov_b32 v23, 0')
    a('s_mov_b64 exec, 1')
    a('buffer_store_dword v22, v23, s[44:47], 0 offen sc1')
    a('s_mov_b64 exec, -1')
    a.label('KP_NONON')
    srd(a, 20, 4, 8192)
    T = 60
    ln_issue(a, 20, 3, T)
    lane_decomp(a)
    a('s_lshr_b32 s73, s2, 3')
    a('s_and_b32 s68, s2, 7')
    a('s_lshr_b32 s74, s2, 1')
    a('s_and_b32 s74, s74, 3')
    a('s_and_b32 s75, s2, 1')
    a('v_lshrrev_b32 v8, 3, v2')
    srd_inplace(a, 28, 4194304)
    a('v_lshrrev_b32 v9, 1, v8')
    a('v_and_b32 v9, 1, v9')
    a('v_lshlrev_b32 v9, 1, v9')
    a('v_xor_b32 v9, v9, v5')
    a('v_lshlrev_b32 v9, 4, v9')
    a('v_lshl_add_u32 v10, v8, 13, v9')
    a('v_xor_b32 v11, 64, v10')
    a('s_lshl_b32 s70, s74, 20')
    a('s_lshl_b32 s71, s3, 18')
    a('s_add_u32 s70, s70, s71')
    a('s_lshl_b32 s71, s73, 8')
    a('s_add_u32 s70, s70, s71')
    a('s_lshl_b32 s71, s75, 7')
    a('s_add_u32 s70, s70, s71')
    a('s_lshl_b32 s71, s3, 12')
    a(f's_add_u32 s71, s71, {A_WQT}')
    for i in range(4):
        a('s_mov_b32 m0, s71')
        a('s_add_u32 s71, s71, 1024')
        a(f'buffer_load_dwordx4 v{10 + (i & 1)}, s[28:31], s70 offen nt lds')
        a('s_add_u32 s70, s70, 65536')
    srd(a, 32, 8, 4194304)
    a('v_lshlrev_b32 v12, 13, v3')
    a('v_lshl_add_u32 v12, v4, 4, v12')
    a('s_lshl_b32 s70, s68, 19')
    a('s_lshl_b32 s71, s3, 17')
    a('s_add_u32 s70, s70, s71')
    a('s_lshl_b32 s71, s73, 8')
    a('s_add_u32 s70, s70, s71')
    for st in range(4):
        a(f'buffer_load_dwordx4 v[{104+4*st}:{107+4*st}], v12, s[32:35], s70 offen offset:{st*64} nt')
    a('s_cmp_ge_u32 s3, 2')
    a('s_cselect_b32 s76, s40, s36')
    a('s_cselect_b32 s77, s41, s37')
    srd_inplace(a, 76, 1409024)
    a('s_mov_b32 s70, 2752')
    a('v_mul_lo_u32 v14, v8, s70')
    a('v_lshl_add_u32 v14, v5, 4, v14')
    a('s_and_b32 s70, s3, 1')
    a('s_lshl_b32 s70, s70, 5')
    a('s_lshl_b32 s71, s68, 6')
    a('s_add_u32 s70, s70, s71')
    a('s_mul_i32 s70, s70, 2752')
    a('s_lshl_b32 s71, s73, 7')
    a('s_add_u32 s70, s70, s71')
    a('s_cmp_ge_u32 s2, 176')
    a('s_cselect_b32 s70, 0x40000000, s70')
    for i in range(4):
        a(f'buffer_load_dwordx4 v[{120+4*i}:{123+4*i}], v14, s[76:79], s70 offen nt')
        a('s_add_u32 s70, s70, 22016')
    a(f'v_mov_b32 v226, {A_CNT}')
    a('v_mov_b32 v227, 1')
    a('v_mov_b32 v228, 0')
    a('ds_write_b32 v226, v228')
    a('ds_write_b32 v226, v228 offset:4')
    a('ds_write_b32 v226, v228 offset:8')
    a('ds_write_b32 v226, v228 offset:12')
    a('s_waitcnt lgkmcnt(0)')
    a('s_barrier')
    a('v_lshlrev_b32 v13, 1, v4')
    a('v_xor_b32 v13, v13, v3')
    a('v_lshlrev_b32 v13, 4, v13')
    a('v_lshrrev_b32 v22, 5, v0')
    a('v_and_b32 v23, 31, v0')
    a('v_lshrrev_b32 v19, 2, v23')
    a('v_lshlrev_b32 v19, 9, v19')
    a('v_lshl_add_u32 v19, v22, 6, v19')
    a('v_and_b32 v14, 3, v23')
    a('v_lshl_add_u32 v19, v14, 4, v19')
    a('s_mov_b32 s70, 288')
    a('v_mul_lo_u32 v20, v22, s70')
    a('v_lshl_add_u32 v20, v23, 3, v20')
    a('v_mul_lo_u32 v16, v5, s70')
    a('v_lshl_add_u32 v16, v4, 4, v16')
    a('v_lshlrev_b32 v29, 6, v5')
    a('v_lshl_add_u32 v29, v4, 4, v29')
    ln_compute(a, T, 12)
    a('s_mov_b32 s70, 288')
    a(f'v_mul_lo_u32 v14, v{T}, s70')
    a(f'v_and_b32 v15, 7, v{T+1}')
    a('v_lshl_add_u32 v14, v15, 5, v14')
    a(f'v_add_u32 v14, {A_XNA}, v14')
    a(f'v_lshrrev_b32 v15, 3, v{T+1}')
    a('v_cmp_eq_u32 vcc, s74, v15')
    a('s_and_saveexec_b64 s[80:81], vcc')
    a(f'ds_write_b128 v14, v[{T+4}:{T+7}]')
    a(f'ds_write_b128 v14, v[{T+8}:{T+11}] offset:16')
    a('s_mov_b64 exec, s[80:81]')
    a('s_mov_b32 s70, 160')
    a(f'v_mul_lo_u32 v14, v{T}, s70')
    a(f'v_and_b32 v15, 3, v{T+1}')
    a('v_lshl_add_u32 v14, v15, 5, v14')
    a(f'v_add_u32 v14, {A_XNF}, v14')
    a(f'v_lshrrev_b32 v15, 2, v{T+1}')
    a('v_cmp_eq_u32 vcc, s68, v15')
    a('s_and_saveexec_b64 s[80:81], vcc')
    a(f'ds_write_b128 v14, v[{T+4}:{T+7}]')
    a(f'ds_write_b128 v14, v[{T+8}:{T+11}] offset:16')
    a('s_mov_b64 exec, s[80:81]')
    a(f'v_add_u32 v15, {A_XNA}, v16')
    a('s_mov_b32 s70, 160')
    a('v_mul_lo_u32 v17, v5, s70')
    a('v_lshl_add_u32 v17, v4, 4, v17')
    a(f'v_add_u32 v17, {A_XNF}, v17')
    a('s_lshl_b32 s69, s3, 1')
    tr_base_p128(a, 18, 14, A_WQT, 69)
    for r in range(136, 148):
        a(f'v_mov_b32 v{r}, 0')
    a('s_waitcnt vmcnt(8)')
    wsync(a, 1, 226, 227, 228)
    stamp(a, 21)
    for ks in range(4):
        a(f'ds_read_b128 v[{36+8*ks}:{39+8*ks}], v15 offset:{ks*64}')
        a(f'ds_read_b64_tr_b16 v[{40+8*ks}:{41+8*ks}], v18 offset:{ks*4096}')
        a(f'ds_read_b64_tr_b16 v[{42+8*ks}:{43+8*ks}], v18 offset:{ks*4096+512}')
    for ks in range(4):
        a(f's_waitcnt lgkmcnt({12-3*(ks+1)})')
        a(f'v_mfma_f32_16x16x32_bf16 v[136:139], v[{40+8*ks}:{43+8*ks}], v[{36+8*ks}:{39+8*ks}], v[136:139]')
    a.label('KP_NL')
    a('ds_read_b32 v23, v226 offset:12')
    a('s_waitcnt lgkmcnt(0)')
    a('v_readfirstlane_b32 s100, v23')
    a('s_nop 3')
    a('s_cmp_eq_u32 s100, 0')
    a('s_cbranch_scc1 KP_NL')
    a('s_and_b32 s96, s100, 0xff')
    a('s_lshr_b32 s97, s100, 8')
    a('s_and_b32 s97, s97, 0xff')
    a('s_lshr_b32 s98, s100, 16')
    a('s_and_b32 s98, s98, 0xff')
    a('s_lshr_b32 s99, s100, 24')
    tag4(a, 136)
    stamp(a, 1)
    srd(a, 48, 18, 524288, WS_QPART)
    srd(a, 40, 18, 0xB0000, WS_FFNP)
    a('s_lshl_b32 s70, s73, 14')
    a('s_lshl_b32 s71, s74, 12')
    a('s_add_u32 s70, s70, s71')
    a('s_lshl_b32 s71, s75, 11')
    a('s_add_u32 s70, s70, s71')
    a('s_lshl_b32 s71, s3, 9')
    a('s_add_u32 s70, s70, s71')
    hm(a)
    a('buffer_store_dwordx4 v[136:139], v29, s[48:51], s70 offen sc1')
    fm(a)
    wsync(a, 2, 226, 227, 228)
    a('v_lshl_add_u32 v22, v8, 7, v9')
    a('s_lshl_b32 s70, s3, 12')
    a(f's_add_u32 s70, s70, {A_WQT}')
    a('v_add_u32 v22, s70, v22')
    a('v_xor_b32 v23, 64, v22')
    a('s_waitcnt vmcnt(1)')
    for i in range(4):
        a(f'ds_write_b128 v{22 + (i & 1)}, v[{120+4*i}:{123+4*i}] offset:{i*1024}')
    wsync(a, 3, 226, 227, 228)
    for ks in range(2):
        a(f'ds_read_b128 v[{36+4*ks}:{39+4*ks}], v17 offset:{ks*64}')
    for mat in range(2):
        for ks in range(2):
            r = 44 + 8 * mat + 4 * ks
            a(f'ds_read_b64_tr_b16 v[{r}:{r+1}], v18 offset:{mat*8192+ks*4096}')
            a(f'ds_read_b64_tr_b16 v[{r+2}:{r+3}], v18 offset:{mat*8192+ks*4096+512}')
    a('s_waitcnt lgkmcnt(0)')
    for mat in range(2):
        for ks in range(2):
            r = 44 + 8 * mat + 4 * ks
            a(f'v_mfma_f32_16x16x32_bf16 v[{140+4*mat}:{143+4*mat}], v[{r}:{r+3}], v[{36+4*ks}:{39+4*ks}], v[{140+4*mat}:{143+4*mat}]')
    stamp(a, 22)
    a.nop(8)
    tag4(a, 140); tag4(a, 144)
    a('s_mul_i32 s70, s68, 45056')
    a('s_lshl_b32 s71, s73, 11')
    a('s_add_u32 s70, s70, s71')
    a('s_lshl_b32 s71, s3, 9')
    a('s_add_u32 s70, s70, s71')
    a('s_cmp_ge_u32 s2, 176')
    a('s_cselect_b32 s70, 0x40000000, s70')
    hm(a)
    a('buffer_store_dwordx4 v[140:143], v29, s[40:43], s70 offen sc1')
    a('s_add_u32 s70, s70, 360448')
    a('buffer_store_dwordx4 v[144:147], v29, s[40:43], s70 offen sc1')
    fm(a)
    srd(a, 52, 18, 524288, WS_QABS)
    srd(a, 56, 18, 43 * 16384, WS_FFNO)
    srd(a, 60, 18, 131072, WS_STATS)
    srd(a, 64, 18, 8388608, WS_OPART)
    a('s_lshr_b32 s74, s2, 2')
    a('s_and_b32 s75, s2, 3')
    a(f'v_add_u32 v21, {A_QB}, v20')
    a(f'v_add_u32 v24, {A_QB}, v16')
    a('s_lshl_b32 s69, s3, 2')
    tr_base_p256(a, 26, 28, 0, 69)
    a('s_add_u32 s69, s69, 2')
    tr_base_p256(a, 27, 28, 0, 69)
    def issue_qp():
        a('s_lshl_b32 s70, s73, 14')
        for m in range(4):
            a(f'buffer_load_dwordx4 v[{36+4*m}:{39+4*m}], v19, s[48:51], s70 offen sc1')
            a('s_add_u32 s70, s70, 4096')
    poll_tag(a, issue_qp, [(36,None),(40,None),(44,None),(48,None)])
    stamp(a, 30)
    for e in range(4):
        a(f'v_add_f32 v{36+e}, v{36+e}, v{40+e}')
        a(f'v_add_f32 v{44+e}, v{44+e}, v{48+e}')
        a(f'v_add_f32 v{36+e}, v{36+e}, v{44+e}')
    a('v_cvt_pk_bf16_f32 v40, v36, v37')
    a('v_cvt_pk_bf16_f32 v41, v38, v39')
    a('ds_write_b64 v21, v[40:41]')
    wsync(a, 4, 226, 227, 228)
    for st in range(4):
        a(f'ds_read_b128 v[{36+4*st}:{39+4*st}], v24 offset:{st*64}')
    for r in range(56, 60):
        a(f'v_mov_b32 v{r}, 0')
    a('v_lshlrev_b32 v25, 16, v5')
    a('v_lshl_add_u32 v25, v4, 4, v25')
    a('s_lshl_b32 s70, s73, 11')
    a('s_lshl_b32 s71, s68, 8')
    a('s_add_u32 s70, s70, s71')
    a('s_lshl_b32 s71, s3, 6')
    a('s_add_u32 s70, s70, s71')
    a('s_waitcnt lgkmcnt(0)')
    for st in range(4):
        a(f'v_mfma_f32_16x16x32_bf16 v[56:59], v[{104+4*st}:{107+4*st}], v[{36+4*st}:{39+4*st}], v[56:59]')
    a.nop(10)
    tag4(a, 56)
    hm(a)
    a('buffer_store_dwordx4 v[56:59], v25, s[52:55], s70 offen sc1')
    fm(a)
    wsync(a, 5, 226, 227, 228)
    stamp(a, 31)
    a('s_mov_b64 exec, 1')
    a('ds_add_u32 v226, v227 offset:4')
    a('s_mov_b64 exec, -1')
    a('s_lshr_b32 s69, s2, 5')
    def issue_sent():
        a('s_lshl_b32 s70, s69, 16')
        a('s_lshl_b32 s71, s3, 14')
        a('s_add_u32 s70, s70, s71')
        a('buffer_load_dwordx4 v[128:131], v30, s[52:55], s70 offen sc1')
        a('buffer_load_dwordx4 v[132:135], v30, s[52:55], s70 offen offset:1024 sc1')
    poll_tag(a, issue_sent, [(128,None),(132,None)])
    def issue_qabs():
        a('s_lshl_b32 s70, s69, 16')
        a('s_lshl_b32 s71, s3, 14')
        a('s_add_u32 s70, s70, s71')
        a('s_add_u32 s70, s70, 2048')
        for i in range(2, 16):
            a(f'buffer_load_dwordx4 v[{128+4*i}:{131+4*i}], v30, s[52:55], s70 offen sc1')
            a('s_add_u32 s70, s70, 1024')
    poll_tag(a, issue_qabs, [(128+4*i,None) for i in range(2, 16)])
    a('s_cmp_lg_u32 s3, 2')
    a('s_cbranch_scc1 KP_NOW2')
    a.label('KP_W2L')
    a('ds_read_b32 v228, v226 offset:4')
    a('s_waitcnt lgkmcnt(0)')
    a('v_readfirstlane_b32 s71, v228')
    a('s_nop 3')
    a('s_cmp_ge_u32 s71, 4')
    a('s_cbranch_scc0 KP_W2L')
    a.label('KP_NOW2')
    a('v_lshrrev_b32 v14, 1, v2')
    a('v_lshlrev_b32 v14, 4, v14')
    a('s_and_b32 s70, s3, 1')
    a('s_lshl_b32 s70, s70, 5')
    a('v_xor_b32 v14, s70, v14')
    a('v_and_b32 v15, 1, v2')
    a('v_lshlrev_b32 v15, 3, v15')
    a('s_lshl_b32 s71, s3, 13')
    a(f's_add_u32 s71, s71, {R0}')
    a('v_add_u32 v15, s71, v15')
    for i in range(8):
        a(f'v_xor_b32 v9, {(((i & 3) << 2) | (i >> 2)) << 4}, v14')
        a('v_add_u32 v9, v9, v15')
        for p in range(2):
            r = 128 + 4 * (2 * i + p)
            a(f'v_cvt_pk_bf16_f32 v{r}, v{r}, v{r+1}')
            a(f'v_cvt_pk_bf16_f32 v{r+1}, v{r+2}, v{r+3}')
            a(f'ds_write_b64 v9, v[{r}:{r+1}] offset:{i*1024+p*512}')
    a('v_lshlrev_b32 v30, 4, v2')
    a('s_lshr_b32 s69, s2, 5')
    stamp(a, 2)
    a('v_and_b32 v224, 31, v2')
    a('v_lshrrev_b32 v225, 5, v2')
    a('v_and_b32 v9, 3, v224')
    a('v_lshlrev_b32 v9, 2, v9')
    a('v_lshrrev_b32 v10, 2, v224')
    a('v_and_b32 v10, 3, v10')
    a('v_or_b32 v9, v9, v10')
    a('v_xor_b32 v9, v9, v225')
    a('v_lshlrev_b32 v10, 10, v224')
    a('s_lshl_b32 s70, s3, 15')
    a('v_add_u32 v11, s70, v10')
    a(f'v_add_u32 v12, {R0}, v10')
    for e in range(8):
        a(f'v_xor_b32 v14, {2*e}, v9')
        a(f'v_lshl_add_u32 v{232+e}, v14, 4, v11')
        a(f'v_lshl_add_u32 v{240+e}, v14, 4, v12')
    for r in range(32, 48):
        a(f'v_mov_b32 v{r}, 0')
    for r in range(80, 128):
        a(f'v_mov_b32 v{r}, 0')
    a('v_and_b32 v9, 1, v4')
    a('v_lshrrev_b32 v10, 1, v7')
    a('v_lshl_add_u32 v10, v9, 1, v10')
    a('v_lshl_add_u32 v11, v225, 2, v6')
    a('v_lshlrev_b32 v11, 10, v11')
    a('s_lshl_b32 s70, s3, 8')
    a('v_add_u32 v11, s70, v11')
    a('v_and_b32 v9, 1, v7')
    a('v_lshl_add_u32 v11, v9, 3, v11')
    for sec in range(2):
        a(f'v_add_u32 v9, {2*sec}, v225')
        a('v_xor_b32 v9, v9, v10')
        for t in range(4):
            a(f'v_xor_b32 v14, {t}, v6')
            a('v_lshl_add_u32 v14, v14, 2, v9')
            a(f'v_lshl_add_u32 v{160+2*t+sec}, v14, 4, v11')
            if sec:
                a(f'v_add_u32 v{160+2*t+sec}, 8192, v{160+2*t+sec}')
    a('s_waitcnt lgkmcnt(0)')
    a('s_barrier')
    stamp(a, 3)
    def deferred_w():
        srd(a, 36, 10, 4194304)
        a('v_lshlrev_b32 v14, 4, v3')
        a('v_lshl_add_u32 v14, v4, 13, v14')
        a('s_lshr_b32 s70, s68, 1')
        a('s_lshl_b32 s70, s70, 7')
        a('s_and_b32 s71, s68, 1')
        a('s_lshl_b32 s71, s71, 2')
        a('s_add_u32 s70, s70, s71')
        a('s_lshl_b32 s71, s3, 5')
        a('s_add_u32 s70, s70, s71')
        a('s_lshl_b32 s70, s70, 13')
        a('s_lshl_b32 s71, s73, 8')
        a('s_add_u32 s70, s70, s71')
        for i in range(4):
            a(f'buffer_load_dwordx4 v[{192+4*i}:{195+4*i}], v14, s[36:39], s70 offen nt')
            a('s_add_u32 s70, s70, 65536')
        srd(a, 44, 12, 4194304)
        a('v_lshlrev_b32 v14, 4, v5')
        a('v_lshl_add_u32 v14, v8, 10, v14')
        a('s_lshl_b32 s70, s73, 17')
        a('s_lshl_b32 s71, s3, 15')
        a('s_add_u32 s70, s70, s71')
        a('s_lshl_b32 s71, s68, 7')
        a('s_add_u32 s70, s70, s71')
        for i in range(4):
            a(f'buffer_load_dwordx4 v[{208+4*i}:{211+4*i}], v14, s[44:47], s70 offen nt')
            a('s_add_u32 s70, s70, 8192')
    def rd(st):
        return [f'ds_read_b128 v[{48+4*(st&3)}:{51+4*(st&3)}], v{232+(st&7)} offset:{(st>>3)*256}',
                f'ds_read_b128 v[{64+4*(st&3)}:{67+4*(st&3)}], v{240+(st&7)} offset:{(st>>3)*256}']
    for st in range(3):
        for s in rd(st): a(s)
    for st in range(32):
        if st + 3 < 32:
            for s in rd(st + 3): a(s)
            a('s_waitcnt lgkmcnt(6)')
        else:
            a(f's_waitcnt lgkmcnt({2*(31-st)})')
        a(f'v_mfma_f32_32x32x16_bf16 v[32:47], v[{48+4*(st&3)}:{51+4*(st&3)}], v[{64+4*(st&3)}:{67+4*(st&3)}], v[32:47]')
        if st == 2:
            deferred_w()
    a('s_barrier')
    stamp(a, 40)
    for r in range(64, 80):
        a(f'v_mov_b32 v{r}, 0')
    def deferred_f():
        srd(a, 40, 18, 0xB0000, WS_FFNP)
        srd(a, 28, 14, 1409024)
        a('v_lshrrev_b32 v14, 2, v5')
        a('v_lshlrev_b32 v14, 9, v14')
        a('v_lshl_add_u32 v14, v8, 6, v14')
        a('v_lshl_add_u32 v14, v7, 4, v14')
        a('s_and_b32 s70, s3, 1')
        a('s_mul_i32 s70, s70, 360448')
        a('s_lshr_b32 s71, s3, 1')
        a('s_mul_i32 s71, s71, 180224')
        a('s_add_u32 s70, s70, s71')
        a('s_lshl_b32 s71, s74, 10')
        a('s_add_u32 s70, s70, s71')
        a('s_cmp_ge_u32 s2, 172')
        a('s_cselect_b32 s70, 0x40000000, s70')
        a('v_mov_b32 v229, v14')
        a('s_mov_b32 s82, s70')
        for i in range(4):
            a(f'buffer_load_dwordx4 v[{232+4*i}:{235+4*i}], v14, s[40:43], s70 offen sc1')
            a('s_add_u32 s70, s70, 45056')
        a('v_lshlrev_b32 v14, 4, v3')
        a('v_lshl_add_u32 v14, v4, 10, v14')
        a('s_lshl_b32 s70, s74, 15')
        a('s_lshl_b32 s71, s3, 13')
        a('s_add_u32 s70, s70, s71')
        a('s_lshl_b32 s71, s75, 8')
        a('s_add_u32 s70, s70, s71')
        a('s_cmp_ge_u32 s2, 172')
        a('s_cselect_b32 s70, 0x40000000, s70')
        for i in range(2):
            a(f'buffer_load_dwordx4 v[{184+4*i}:{187+4*i}], v14, s[28:31], s70 offen nt')
            a('s_add_u32 s70, s70, 4096')
    a('s_mov_b32 s70, 0x3db504f3')
    for i in range(8):
        bf16_round_pair(a, 32+2*i, 33+2*i, 32+2*i, 33+2*i, 48)
        a(f'v_mul_f32 v{32+2*i}, s70, v{32+2*i}')
        a(f'v_mul_f32 v{33+2*i}, s70, v{33+2*i}')
        bf16_round_pair(a, 32+2*i, 33+2*i, 32+2*i, 33+2*i, 48)
    a('v_max3_f32 v48, v32, v33, v34')
    for i in range(35, 47, 2):
        a(f'v_max3_f32 v48, v48, v{i}, v{i+1}')
    a('v_max_f32 v48, v48, v47')
    a('v_mov_b32 v49, v48')
    a('s_nop 1')
    a('v_permlane32_swap_b32 v48, v49')
    a('v_max_f32 v48, v48, v49')
    a('v_lshlrev_b32 v11, 2, v224')
    a(f'v_add_u32 v11, {P_ST}, v11')
    a('s_lshl_b32 s70, s3, 7')
    a('v_add_u32 v12, s70, v11')
    a('ds_write_b32 v12, v48')
    a('s_waitcnt lgkmcnt(0)')
    a('s_barrier')
    a('ds_read_b32 v48, v11')
    a('ds_read_b32 v49, v11 offset:128')
    a('ds_read_b32 v50, v11 offset:256')
    a('ds_read_b32 v51, v11 offset:384')
    a('s_waitcnt lgkmcnt(0)')
    a('v_max3_f32 v48, v48, v49, v50')
    a('v_max_f32 v48, v48, v51')
    a('s_mov_b32 s70, 0x3fb8aa3b')
    a('v_mul_f32 v49, s70, v48')
    for i in range(16):
        a(f'v_fma_f32 v{32+i}, v{32+i}, s70, -v49')
        a(f'v_exp_f32 v{32+i}, v{32+i}')
    a('s_nop 0')
    a('v_add_f32 v50, v32, v33')
    for i in range(2, 16):
        a(f'v_add_f32 v50, v50, v{32+i}')
    a('v_mov_b32 v51, v50')
    a('s_nop 1')
    a('v_permlane32_swap_b32 v50, v51')
    a('v_add_f32 v50, v50, v51')
    a('ds_write_b32 v12, v50 offset:512')
    for i in range(8):
        a(f'v_cvt_pk_bf16_f32 v{52+i}, v{32+2*i}, v{33+2*i}')
    a('s_lshl_b32 s70, s3, 11')
    a(f's_add_u32 s70, s70, {P_P}')
    a('v_add_u32 v14, s70, v30')
    a('ds_write_b128 v14, v[52:55]')
    a('ds_write_b128 v14, v[56:59] offset:1024')
    a('s_waitcnt lgkmcnt(0)')
    a('s_barrier')
    stamp(a, 41)
    a('ds_read_b32 v50, v11 offset:512')
    a('ds_read_b32 v51, v11 offset:640')
    a('ds_read_b32 v52, v11 offset:768')
    a('ds_read_b32 v53, v11 offset:896')
    a(f'v_add_u32 v14, {P_P}, v30')
    for u in range(8):
        a(f'ds_read_b128 v[{128+4*u}:{131+4*u}], v14 offset:{u*1024}')
    def trrd(u, t, buf):
        off = (u & 3) * 16384
        return [f'ds_read_b64_tr_b16 v[{buf}:{buf+1}], v{160+2*t} offset:{off}',
                f'ds_read_b64_tr_b16 v[{buf+2}:{buf+3}], v{161+2*t} offset:{off}']
    seq = [(u, t) for u in range(8) for t in range(4)]
    bufs = [168, 172, 176, 180]
    def issue(idx):
        u, t = seq[idx]
        if u == 4 and t == 0:
            for r in range(160, 168):
                a(f'v_add_u32 v{r}, 0x10000, v{r}')
        for s in trrd(u, t, bufs[idx & 3]):
            a(s)
    for idx in range(3):
        issue(idx)
    a('s_waitcnt lgkmcnt(6)')
    a('v_add_f32 v50, v50, v51')
    a('v_add_f32 v52, v52, v53')
    a('v_add_f32 v49, v50, v52')
    a('v_mov_b32 v230, v48')
    a('v_mov_b32 v231, v49')
    for idx in range(32):
        u, t = seq[idx]
        if idx + 3 < 32:
            issue(idx + 3)
            a('s_waitcnt lgkmcnt(6)')
        else:
            a(f's_waitcnt lgkmcnt({2*(31-idx)})')
        b = bufs[idx & 3]
        a(f'v_mfma_f32_32x32x16_bf16 v[{64+16*t}:{79+16*t}], v[{b}:{b+3}], v[{128+4*u}:{131+4*u}], v[{64+16*t}:{79+16*t}]')
        if idx == 2:
            deferred_f()
    a('s_barrier')
    stamp(a, 4)
    a('v_and_b32 v9, 7, v224')
    a('v_lshlrev_b32 v10, 3, v225')
    a('s_lshl_b32 s70, s3, 4')
    a('v_add_u32 v10, s70, v10')
    a('v_lshlrev_b32 v11, 10, v224')
    a.nop(6)
    for t in range(4):
        for i in range(8):
            a(f'v_cvt_pk_bf16_f32 v{128+8*t+i}, v{64+16*t+2*i}, v{65+16*t+2*i}')
        for i in range(2):
            a(f'v_xor_b32 v14, {2*t+i}, v9')
            a('v_add_u32 v14, v14, v10')
            a('v_lshl_add_u32 v14, v14, 4, v11')
            a(f'ds_write_b128 v14, v[{128+8*t+4*i}:{131+8*t+4*i}]')
    a('s_waitcnt lgkmcnt(0)')
    a('s_barrier')
    stamp(a, 42)
    a('s_lshl_b32 s70, s3, 13')
    a('s_lshl_b32 s71, s2, 15')
    a('s_add_u32 s71, s71, s70')
    for i in range(8):
        a(f'v_xor_b32 v14, {i << 4}, v30')
        a('v_add_u32 v14, s70, v14')
        a(f'ds_read_b128 v[{128+4*i}:{131+4*i}], v14 offset:{i*1024}')
    for i in range(8):
        a(f's_waitcnt lgkmcnt({7-i})')
        a(f'buffer_store_dwordx4 v[{128+4*i}:{131+4*i}], v30, s[64:67], s71 offen sc1')
        a('s_add_u32 s71, s71, 1024')
    a('s_waitcnt vmcnt(8)')
    a('s_cmp_ge_u32 s2, 172')
    a('s_cbranch_scc1 KP_FPOK')
    tag_check(a, [(232,None),(236,None),(240,None),(244,None)], 22, 23, 249)
    a('s_nop 3')
    a('s_cmp_eq_u64 vcc, 0')
    a('s_cbranch_scc1 KP_FPOK')
    def issue_fp():
        a('s_mov_b32 s70, s82')
        for i in range(4):
            a(f'buffer_load_dwordx4 v[{232+4*i}:{235+4*i}], v229, s[40:43], s70 offen sc1')
            a('s_add_u32 s70, s70, 45056')
    poll_tag(a, issue_fp, [(232,None),(236,None),(240,None),(244,None)], clean=False)
    a.label('KP_FPOK')
    untag(a, [(232,None),(236,None),(240,None),(244,None)])
    a('v_lshl_add_u32 v14, v4, 8, v13')
    a('s_and_b32 s70, s3, 1')
    a('s_lshl_b32 s70, s70, 7')
    a('v_xor_b32 v14, s70, v14')
    a('s_lshl_b32 s70, s3, 11')
    a(f's_add_u32 s70, s70, {F_WD}')
    a('v_add_u32 v14, s70, v14')
    a('ds_write_b128 v14, v[184:187]')
    a('ds_write_b128 v14, v[188:191] offset:1024')
    for e in range(4):
        a(f'v_add_f32 v{232+e}, v{232+e}, v{236+e}')
        a(f'v_add_f32 v{240+e}, v{240+e}, v{244+e}')
        a(f'v_add_f32 v{232+e}, v{232+e}, v{240+e}')
    a('v_lshlrev_b32 v21, 4, v0')
    a(f'v_add_u32 v21, {F_FS}, v21')
    a('ds_write_b128 v21, v[232:235]')
    a('v_lshl_add_u32 v14, v4, 8, v13')
    a('s_lshl_b32 s70, s3, 12')
    a(f's_add_u32 s70, s70, {D_WUV}')
    a('v_add_u32 v14, s70, v14')
    a('v_xor_b32 v15, 128, v14')
    for i in range(4):
        a(f'ds_write_b128 v{14 + ((i >> 1) & 1)}, v[{192+4*i}:{195+4*i}] offset:{i*1024}')
    a('v_lshrrev_b32 v14, 1, v8')
    a('v_and_b32 v14, 1, v14')
    a('v_lshlrev_b32 v14, 1, v14')
    a('v_xor_b32 v14, v14, v5')
    a('v_lshlrev_b32 v14, 4, v14')
    a('v_lshl_add_u32 v14, v8, 7, v14')
    a('s_lshl_b32 s70, s3, 12')
    a(f's_add_u32 s70, s70, {D_WO}')
    a('v_add_u32 v14, s70, v14')
    a('v_xor_b32 v15, 64, v14')
    for i in range(4):
        a(f'ds_write_b128 v{14 + (i & 1)}, v[{208+4*i}:{211+4*i}] offset:{i*1024}')
    a('s_waitcnt vmcnt(0) lgkmcnt(0)')
    a('s_barrier')
    a('s_cmp_lg_u32 s3, 0')
    a('s_cbranch_scc1 KP_NOST')
    if STPROD:
        a('v_lshlrev_b32 v14, 4, v224')
        a('s_lshl_b32 s70, s2, 9')
    else:
        a('v_lshlrev_b32 v14, 12, v224')
        a('s_lshl_b32 s70, s2, 4')
    a('v_mov_b32 v232, s100')
    a('v_mov_b32 v233, s100')
    a('s_mov_b32 exec_lo, -1')
    a('s_mov_b32 exec_hi, 0')
    a('buffer_store_dwordx4 v[230:233], v14, s[60:63], s70 offen sc1')
    a('s_mov_b64 exec, -1')
    a('ds_read_b128 v[96:99], v21')
    a('ds_read_b128 v[100:103], v21 offset:1024')
    a('ds_read_b128 v[104:107], v21 offset:2048')
    a('ds_read_b128 v[108:111], v21 offset:3072')
    a('s_waitcnt lgkmcnt(0)')
    for e in range(4):
        a(f'v_add_f32 v{96+e}, v{96+e}, v{104+e}')
        a(f'v_add_f32 v{100+e}, v{100+e}, v{108+e}')
    bf16_round_pair(a, 96, 97, 96, 97, 23)
    bf16_round_pair(a, 98, 99, 98, 99, 23)
    bf16_round_pair(a, 100, 101, 100, 101, 23)
    bf16_round_pair(a, 102, 103, 102, 103, 23)
    gelu4(a, [96, 97, 98, 99], 23)
    bf16_round_pair(a, 96, 97, 96, 97, 23)
    bf16_round_pair(a, 98, 99, 98, 99, 23)
    for e in range(4):
        a(f'v_mul_f32 v{96+e}, v{96+e}, v{100+e}')
    a('v_cvt_pk_bf16_f32 v104, v96, v97')
    a('v_cvt_pk_bf16_f32 v105, v98, v99')
    a('s_mov_b32 s70, 288')
    a('v_mul_lo_u32 v22, v8, s70')
    a('v_lshl_add_u32 v22, v5, 3, v22')
    a(f'v_add_u32 v22, {F_HB}, v22')
    a('ds_write_b64 v22, v[104:105]')
    a.label('KP_NOST')
    stamp(a, 5)
    a('s_waitcnt lgkmcnt(0)')
    a('s_barrier')
    a(f'v_add_u32 v22, {F_HB}, v16')
    a('ds_read_b128 v[32:35], v22')
    a(f'v_add_u32 v22, {F_WD}, v26')
    a(f'v_add_u32 v23, {F_WD}, v27')
    for tl in range(2):
        r = 64 + 4 * tl
        a(f'ds_read_b64_tr_b16 v[{r}:{r+1}], v{22+tl}')
        a(f'ds_read_b64_tr_b16 v[{r+2}:{r+3}], v{22+tl} offset:1024')
    for r in range(72, 80):
        a(f'v_mov_b32 v{r}, 0')
    a('s_lshl_b32 s70, s74, 14')
    a('s_lshl_b32 s71, s75, 12')
    a('s_add_u32 s70, s70, s71')
    a('s_lshl_b32 s71, s3, 10')
    a('s_add_u32 s70, s70, s71')
    a('s_cmp_ge_u32 s2, 172')
    a('s_cselect_b32 s70, 0x40000000, s70')
    a('s_waitcnt lgkmcnt(0)')
    for tl in range(2):
        r = 64 + 4 * tl
        a(f'v_mfma_f32_16x16x32_bf16 v[{72+4*tl}:{75+4*tl}], v[{r}:{r+3}], v[32:35], v[{72+4*tl}:{75+4*tl}]')
    a.nop(10)
    tag4(a, 72); tag4(a, 76)
    hm(a)
    a('buffer_store_dwordx4 v[72:75], v29, s[56:59], s70 offen sc1')
    a('buffer_store_dwordx4 v[76:79], v29, s[56:59], s70 offen offset:512 sc1')
    fm(a)
    srd(a, 48, 18, 1048576, WS_CTXP)
    srd(a, 40, 18, 524288, WS_ATTP)
    a(f'v_lshlrev_b32 v9, {9 if STPROD else 4}, v0')
    a('v_lshlrev_b32 v10, 20, v8')
    a('v_lshl_add_u32 v10, v5, 4, v10')
    def issue_S():
        a(f's_lshl_b32 s70, s73, {4 if STPROD else 12}')
        a('buffer_load_dwordx4 v[32:35], v9, s[60:63], s70 offen sc1')
    poll_gen(a, issue_S, lambda: a('v_cmp_ne_u32 vcc, s100, v34'))
    a('s_barrier')
    a('s_lshl_b32 s70, s3, 18')
    a('s_lshl_b32 s71, s73, 10')
    a('s_add_u32 s70, s70, s71')
    a('s_lshl_b32 s71, s68, 7')
    a('s_add_u32 s70, s70, s71')
    for i in range(8):
        a(f'buffer_load_dwordx4 v[{64+4*i}:{67+4*i}], v10, s[64:67], s70 offen sc1')
        a('s_add_u32 s70, s70, 32768')
    stamp(a, 6)
    a('v_mov_b32 v34, v32')
    swz_reduce32(a, 34, 35, 'v_max_f32')
    a('v_sub_f32 v34, v32, v34')
    a('v_mul_f32 v34, 0x3fb8aa3b, v34')
    a('v_exp_f32 v34, v34')
    a('s_nop 0')
    a('v_mul_f32 v36, v34, v33')
    swz_reduce32(a, 36, 35, 'v_add_f32')
    a('v_rcp_f32 v36, v36')
    a('s_nop 0')
    a('v_mul_f32 v34, v34, v36')
    a('v_lshlrev_b32 v35, 2, v0')
    a(f'ds_write_b32 v35, v34 offset:{D_AL}')
    a('s_waitcnt lgkmcnt(0)')
    a('s_barrier')
    a('v_lshlrev_b32 v35, 7, v8')
    a('s_lshl_b32 s70, s3, 5')
    a('v_add_u32 v35, s70, v35')
    a(f'ds_read_b128 v[36:39], v35 offset:{D_AL}')
    a(f'ds_read_b128 v[40:43], v35 offset:{D_AL+16}')
    for r in range(48, 56):
        a(f'v_mov_b32 v{r}, 0')
    a('s_waitcnt lgkmcnt(0)')
    for i in range(8):
        a(f's_waitcnt vmcnt({7-i})')
        for e in range(4):
            a(f'v_lshlrev_b32 v22, 16, v{64+4*i+e}')
            a(f'v_and_b32 v23, 0xffff0000, v{64+4*i+e}')
            a(f'v_fmac_f32 v{48+2*e}, v22, v{36+i}')
            a(f'v_fmac_f32 v{49+2*e}, v23, v{36+i}')
    stamp(a, 10)
    a('v_lshlrev_b32 v35, 5, v0')
    a(f'ds_write_b128 v35, v[48:51] offset:{D_CB}')
    a(f'ds_write_b128 v35, v[52:55] offset:{D_CB+16}')
    a('s_waitcnt lgkmcnt(0)')
    a('s_barrier')
    a('s_cmp_lg_u32 s3, 0')
    a('s_cbranch_scc1 KP_NOSUM')
    for w in range(1, 4):
        a(f'ds_read_b128 v[{56+8*(w-1)}:{59+8*(w-1)}], v35 offset:{D_CB+w*2048}')
        a(f'ds_read_b128 v[{60+8*(w-1)}:{63+8*(w-1)}], v35 offset:{D_CB+w*2048+16}')
    a('s_waitcnt lgkmcnt(0)')
    for e in range(8):
        a(f'v_add_f32 v{48+e}, v{48+e}, v{56+e}')
        a(f'v_add_f32 v{64+e}, v{64+e}, v{72+e}')
        a(f'v_add_f32 v{48+e}, v{48+e}, v{64+e}')
    for e in range(4):
        a(f'v_cvt_pk_bf16_f32 v{56+e}, v{48+2*e}, v{49+2*e}')
    a('s_mov_b32 s70, 160')
    a('v_mul_lo_u32 v35, v8, s70')
    a('v_lshl_add_u32 v35, v5, 4, v35')
    a(f'ds_write_b128 v35, v[56:59] offset:{D_OC}')
    a.label('KP_NOSUM')
    a('s_mov_b32 s70, 160')
    a('v_mul_lo_u32 v24, v5, s70')
    a('v_lshl_add_u32 v24, v4, 4, v24')
    for r in range(96, 104):
        a(f'v_mov_b32 v{r}, 0')
    a('s_lshl_b32 s70, s2, 12')
    a('s_lshl_b32 s71, s3, 10')
    a('s_add_u32 s70, s70, s71')
    a('s_waitcnt lgkmcnt(0)')
    a('s_barrier')
    for ks in range(2):
        a(f'ds_read_b128 v[{32+4*ks}:{35+4*ks}], v24 offset:{D_OC+ks*64}')
        for tl in range(2):
            r = 64 + 8 * ks + 4 * tl
            a(f'ds_read_b64_tr_b16 v[{r}:{r+1}], v{26+tl} offset:{D_WUV+ks*8192}')
            a(f'ds_read_b64_tr_b16 v[{r+2}:{r+3}], v{26+tl} offset:{D_WUV+ks*8192+1024}')
    a('s_waitcnt lgkmcnt(0)')
    for ks in range(2):
        for tl in range(2):
            r = 64 + 8 * ks + 4 * tl
            a(f'v_mfma_f32_16x16x32_bf16 v[{96+4*tl}:{99+4*tl}], v[{r}:{r+3}], v[{32+4*ks}:{35+4*ks}], v[{96+4*tl}:{99+4*tl}]')
    a.nop(10)
    tag4(a, 96); tag4(a, 100)
    hm(a)
    a('buffer_store_dwordx4 v[96:99], v29, s[48:51], s70 offen sc1')
    a('buffer_store_dwordx4 v[100:103], v29, s[48:51], s70 offen offset:512 sc1')
    fm(a)
    stamp(a, 11)
    a('s_lshl_b32 s69, s3, 1')
    tr_base_p128(a, 26, 27, D_WO, 69)
    def issue_ctx():
        a('s_lshl_b32 s70, s73, 15')
        for m in range(8):
            a(f'buffer_load_dwordx4 v[{64+4*m}:{67+4*m}], v19, s[48:51], s70 offen sc1')
            a('s_add_u32 s70, s70, 4096')
    poll_tag(a, issue_ctx, [(64+4*m,None) for m in range(8)])
    stamp(a, 7)
    for e in range(4):
        a(f'v_add_f32 v{64+e}, v{64+e}, v{68+e}')
        a(f'v_add_f32 v{72+e}, v{72+e}, v{76+e}')
        a(f'v_add_f32 v{80+e}, v{80+e}, v{84+e}')
        a(f'v_add_f32 v{88+e}, v{88+e}, v{92+e}')
        a(f'v_add_f32 v{64+e}, v{64+e}, v{72+e}')
        a(f'v_add_f32 v{80+e}, v{80+e}, v{88+e}')
        a(f'v_add_f32 v{64+e}, v{64+e}, v{80+e}')
    a('v_cvt_pk_bf16_f32 v68, v64, v65')
    a('v_cvt_pk_bf16_f32 v69, v66, v67')
    a(f'ds_write_b64 v20, v[68:69] offset:{D_CX}')
    for r in range(56, 60):
        a(f'v_mov_b32 v{r}, 0')
    a('s_lshl_b32 s70, s73, 14')
    a('s_lshl_b32 s71, s68, 11')
    a('s_add_u32 s70, s70, s71')
    a('s_lshl_b32 s71, s3, 9')
    a('s_add_u32 s70, s70, s71')
    a('s_waitcnt lgkmcnt(0)')
    a('s_barrier')
    for ks in range(4):
        a(f'ds_read_b128 v[{32+4*ks}:{35+4*ks}], v16 offset:{D_CX+ks*64}')
        a(f'ds_read_b64_tr_b16 v[{64+4*ks}:{65+4*ks}], v26 offset:{ks*4096}')
        a(f'ds_read_b64_tr_b16 v[{66+4*ks}:{67+4*ks}], v26 offset:{ks*4096+512}')
    for ks in range(4):
        a(f's_waitcnt lgkmcnt({12-3*(ks+1)})')
        a(f'v_mfma_f32_16x16x32_bf16 v[56:59], v[{64+4*ks}:{67+4*ks}], v[{32+4*ks}:{35+4*ks}], v[56:59]')
    a.nop(10)
    tag4(a, 56)
    hm(a)
    a('buffer_store_dwordx4 v[56:59], v29, s[40:43], s70 offen sc1')
    fm(a)
    stamp(a, 12)
    srd(a, 20, 4, 8192)
    srd(a, 28, 16, 8192)
    a('v_and_b32 v9, 3, v0')
    a('v_lshrrev_b32 v10, 2, v0')
    a('v_lshlrev_b32 v11, 14, v10')
    a('v_lshl_add_u32 v11, v9, 4, v11')
    a('v_lshlrev_b32 v12, 1, v0')
    a('s_lshl_b32 s69, s2, 5')
    a('buffer_load_ushort v40, v12, s[20:23], s69 offen')
    def issue_fin():
        a('s_and_b32 s70, s2, 31')
        a('s_lshl_b32 s70, s70, 9')
        a('s_lshr_b32 s71, s2, 5')
        a('s_lshl_b32 s71, s71, 6')
        a('s_add_u32 s70, s70, s71')
        a('buffer_load_dwordx4 v[64:67], v11, s[40:43], s70 offen sc1')
        a('buffer_load_dwordx4 v[68:71], v11, s[56:59], s70 offen sc1')
    a('v_cmp_gt_u32 s[76:77], 32, v10')
    a('v_cmp_gt_u32 s[78:79], 43, v10')
    a('s_nop 1')
    poll_tag(a, issue_fin, [(64,76),(68,78)])
    stamp(a, 13)
    a('v_lshlrev_b32 v14, 4, v0')
    a(f'v_add_u32 v14, {D_FA}, v14')
    a('ds_write_b128 v14, v[64:67]')
    a('ds_write_b128 v14, v[68:71] offset:4096')
    a('s_waitcnt lgkmcnt(0)')
    a('s_barrier')
    a('v_cmp_gt_u32 vcc, 16, v0')
    a('s_and_saveexec_b64 s[80:81], vcc')
    a('s_cbranch_execz KP_FIN')
    a('v_lshlrev_b32 v14, 2, v0')
    a(f'v_add_u32 v14, {D_FA}, v14')
    for g in range(32):
        a(f'ds_read_b32 v{64+g}, v14 offset:{g*64}')
    for g in range(43):
        a(f'ds_read_b32 v{128+g}, v14 offset:{4096+g*64}')
    a('s_waitcnt lgkmcnt(0)')
    for step in (16, 8, 4, 2, 1):
        for i in range(step):
            a(f'v_add_f32 v{64+i}, v{64+i}, v{64+i+step}')
    for i in range(11):
        a(f'v_add_f32 v{128+i}, v{128+i}, v{160+i}')
    for step in (16, 8, 4, 2, 1):
        for i in range(step):
            a(f'v_add_f32 v{128+i}, v{128+i}, v{128+i+step}')
    a('v_lshlrev_b32 v40, 16, v40')
    bf16_round_pair(a, 64, 128, 64, 128, 15)
    a('v_add_f32 v64, v64, v40')
    bf16_round_pair(a, 64, 65, 64, 64, 15)
    a('v_add_f32 v64, v64, v128')
    a('v_cvt_pk_bf16_f32 v64, v64, v64')
    a('buffer_store_short v64, v12, s[28:31], s69 offen')
    a.label('KP_FIN')
    a('s_mov_b64 exec, s[80:81]')
    if STAMP:
        stamp(a, 8)
        a('s_cmp_lg_u32 s3, 0')
        a('s_cbranch_scc1 KP_EXIT')
        srd(a, 76, 18, 1 << 20, WS_STAMP)
        a('s_lshl_b32 s80, s2, 7')
        a('v_mov_b32 v250, 0')
        for i in range(6):
            a(f'v_mov_b32 v251, s{84+2*i}')
            a(f'buffer_store_dword v251, v250, s[76:79], s80 offen offset:{4*i}')
    a('s_branch KP_EXIT')

    a.label('KP_LOADER')
    srd_inplace(a, 44, 256)
    a('s_sub_u32 s69, s3, 4')
    a('v_lshlrev_b32 v3, 4, v2')
    a('s_lshl_b32 s70, s2, 17')
    a('s_lshl_b32 s71, s69, 15')
    a('s_add_u32 s70, s70, s71')
    a(f'v_mov_b32 v5, {A_CNT}')
    a('s_mov_b32 s76, 0')
    a('s_barrier')
    a('s_cmp_lg_u32 s69, 3')
    a('s_cbranch_scc1 KP_LROW')
    a('v_mov_b32 v7, 0')
    def issue_n():
        a('buffer_load_dword v6, v7, s[44:47], 0 offen sc1')
    poll_gen(a, issue_n, lambda: a('v_cmp_eq_u32 vcc, 0, v6'), SBSLEEP)
    a('v_or_b32 v6, 1, v6')
    a('ds_write_b32 v5, v6 offset:12')
    a.label('KP_LROW')
    a('s_and_b32 s77, s76, 3')
    a('s_lshl_b32 s77, s77, 2')
    a('s_lshr_b32 s78, s76, 2')
    a('s_and_b32 s78, s78, 3')
    a('s_or_b32 s77, s77, s78')
    a('s_lshl_b32 s77, s77, 4')
    a('v_xor_b32 v4, s77, v3')
    a('s_mov_b32 m0, s71')
    a('s_add_u32 s71, s71, 1024')
    a('buffer_load_dwordx4 v4, s[24:27], s70 offen nt lds')
    a('s_add_u32 s70, s70, 1024')
    a(f's_cmp_ge_u32 s76, {RSW}')
    a('s_cbranch_scc1 KP_LT2')
    a(f's_waitcnt vmcnt({THR1})')
    a.label('KP_LT2')
    a(f's_waitcnt vmcnt({THROTTLE})')
    a('s_add_u32 s76, s76, 1')
    a('s_cmp_lt_u32 s76, 32')
    a('s_cbranch_scc1 KP_LROW')
    a('s_waitcnt vmcnt(0)')
    a('s_barrier')
    a.label('KP_EXIT')
    a('s_endpgm')

def main(out):
    a = Asm()
    a.raw(HDR.rstrip('\n'))
    a.raw(f'; @launch grid=(256,1,1) block=(512,1,1) lds={KP_LDS}')
    a.raw('.amdgcn_target "amdgcn-amd-amdhsa--gfx950"')
    a.raw('.text')
    a.raw(f'.globl {KNAME}')
    a.raw('.p2align 8')
    a.raw(f'.type {KNAME},@function')
    gen_kp(a)
    a.raw('.section .rodata,"a"')
    a.raw('.p2align 6')
    a.raw(kd(KNAME))
    open(out, 'w').write('\n'.join(a.L) + '\n')

if __name__ == '__main__':
    if 'stamp' in sys.argv[2:]: STAMP = True
    if 'head' in sys.argv[2:]: SMAP.clear(); SMAP.update({0:0,21:1,22:2,1:3,2:4,3:5})
    if 'chain' in sys.argv[2:]: SMAP.clear(); SMAP.update({0:0,1:1,30:2,31:3,2:4,3:5})
    if 'mid' in sys.argv[2:]: SMAP.clear(); SMAP.update({3:0,40:1,41:2,4:3,42:4,5:5})
    if 'tail' in sys.argv[2:]: SMAP.clear(); SMAP.update({0:0,5:1,6:2,7:3,13:4,8:5})
    for x in sys.argv[2:]:
        if x.startswith('thr'): THROTTLE = int(x[3:])
        if x.startswith('slp'): SLEEP = int(x[3:])
        if x == 'pzsc1': PZ_POL = ' sc1'
        if x == 'nosent': SENT = False
        if x.startswith('qpos'): QPOS = int(x[4:])
        if x == 'stprod': STPROD = True
        if x.startswith('rsw'): RSW = int(x[3:])
        if x.startswith('tha'): THR1 = int(x[3:])
        if x.startswith('sbs'): SBSLEEP = int(x[3:])
        if x == 'late': LATE = True
    main(sys.argv[1] if len(sys.argv) > 1 else 'parallel_sum__compressed_kv_cla__geglu_ffn__decode.s')
```
